```python
import torch

def _softmax(x, axis=-1):
    return torch.softmax(x, dim=axis)
def _gelu(x):
    return torch.nn.functional.gelu(x, approximate="tanh")
def _silu(x):
    return torch.nn.functional.silu(x)
def _sigmoid(x):
    return torch.sigmoid(x)
def _layernorm(x, axis=-1, eps=1e-5):
    m = x.mean(dim=axis, keepdim=True)
    v = x.var(dim=axis, keepdim=True, unbiased=False)
    return (x - m) / torch.sqrt(v + eps)
def _scatter_add(tgt, idx, src, axis=0):
    return tgt.clone().index_add_(axis, idx, src)
def _segment_sum(src, seg, n):
    out = torch.zeros((n,) + src.shape[1:], dtype=src.dtype)
    return out.index_add_(0, seg, src)
def _pad(x, pw):
    flat = tuple(v for pair in reversed(pw) for v in pair)
    return torch.nn.functional.pad(x, flat)

kernel_name = 'standalone__mha_softmax__near_ridge'

def setup_inputs():

    _w = (lambda a: (lambda t: t.to(torch.bfloat16) if t.is_floating_point() else t)(torch.as_tensor(a)))
    B, H, Sq, Sk, D = 16, 32, 288, 1024, 128
    return {
        "q": _w((lambda *s: torch.randn(*s, dtype=torch.bfloat16) * 0.8)(B, H, Sq, D)),
        "k": _w((lambda *s: torch.randn(*s, dtype=torch.bfloat16) * 0.8)(B, H, Sk, D)),
        "v": _w((lambda *s: torch.randn(*s, dtype=torch.bfloat16) * 0.05)(B, H, Sk, D)),
    }

def reference(q, k, v):
    scale = q.shape[-1] ** -0.5
    scores = torch.einsum("bhqd,bhkd->bhqk", q, k) * scale
    p = _softmax(scores, axis=-1)
    return torch.einsum("bhqk,bhkd->bhqd", p, v)
```

```python
import re

REG = re.compile(r'^(-|abs\()?([vas])(\d+)\)?$')
RNG = re.compile(r'^(-)?([vas])\[(\d+):(\d+)\]$')
TRANS = ('v_exp_f32', 'v_rcp_f32', 'v_log_f32', 'v_rsq_f32', 'v_sqrt_f32')


def regs_of(tok):
    tok = tok.strip()
    m = REG.match(tok)
    if m:
        return [(m.group(2), int(m.group(3)))]
    m = RNG.match(tok)
    if m:
        return [(m.group(2), i) for i in range(int(m.group(3)), int(m.group(4)) + 1)]
    if tok == 'vcc':
        return [('vcc', 0)]
    if tok == 'm0':
        return [('m0', 0)]
    if tok == 'exec':
        return [('exec', 0)]
    return []


class I:
    __slots__ = ('text', 'op', 'kind', 'dst', 'src', 'srcC', 'cost', 'earliest', 'tag', 'states', 'tgap')

    def __init__(self, text, cost=None, earliest=None, tag=None):
        self.text = text
        self.earliest = earliest
        self.tag = tag
        t = text.split(';')[0].strip()
        self.dst = set(); self.src = set(); self.srcC = set()
        self.states = 1
        if t.endswith(':') or t == '' or t.startswith('.'):
            self.op = 'label'; self.kind = 'label'; self.cost = 0; self.states = 0
            return
        parts = t.split(None, 1)
        op = parts[0]; self.op = op
        rest = parts[1] if len(parts) > 1 else ''
        ops = [x.strip() for x in rest.split(',')] if rest else []
        mods = []
        if ops:
            sp = ops[-1].split()
            ops[-1] = sp[0] if sp else ''
            mods = sp[1:]
        R = [regs_of(x) for x in ops]
        c = 4
        if op.startswith('v_smfmac'):
            self.kind = 'mfma'; self.dst = set(R[0]); self.src = set(R[0] + R[1] + R[2] + R[3]); self.srcC = set(R[0]); c = 12
        elif op.startswith('v_mfma'):
            self.kind = 'mfma'; self.dst = set(R[0]); self.src = set(R[1] + R[2] + R[3]); self.srcC = set(R[3]); c = 8
        elif op.startswith('v_cmp'):
            self.kind = 'valu'; self.dst = set(R[0]); self.src = set(sum(R[1:], []))
        elif op.startswith('v_permlane32_swap'):
            self.kind = 'valu'; self.dst = set(R[0] + R[1]); self.src = set(R[0] + R[1])
        elif op.startswith('v_fmac'):
            self.kind = 'valu'; self.dst = set(R[0]); self.src = set(sum(R, []))
        elif op.startswith('v_'):
            self.kind = 'trans' if op in TRANS else 'valu'
            self.dst = set(R[0]); self.src = set(sum(R[1:], []))
            if self.kind == 'trans': c = 8
        elif op.startswith('ds_read'):
            self.kind = 'dsr'; self.dst = set(R[0]); self.src = set(R[1])
        elif op.startswith('ds_write'):
            self.kind = 'dsw'; self.src = set(sum(R, []))
        elif op.startswith('buffer_load'):
            if 'lds' in mods:
                self.kind = 'dma'; self.src = set(sum(R, [])) | {('m0', 0)}
            else:
                self.kind = 'vld'; self.dst = set(R[0]); self.src = set(sum(R[1:], []))
        elif op.startswith(('buffer_store', 'buffer_atomic')):
            self.kind = 'vst'; self.src = set(sum(R, [])); self.srcC = set(R[0])
        elif op == 's_waitcnt':
            self.kind = 'wait'
        elif op == 's_barrier':
            self.kind = 'barrier'
        elif op == 's_nop':
            self.kind = 'nop'; self.states = int(ops[0], 0) + 1; c = 4 * self.states if self.states > 1 else 4
        elif op.startswith('s_cbranch') or op in ('s_branch', 's_endpgm'):
            self.kind = 'branch'
            if 'vcc' in op: self.src = {('vcc', 0)}
            if 'scc' in op: self.src = {('scc', 0)}
        elif op.startswith('s_cmp'):
            self.kind = 'salu'; self.src = set(sum(R, [])); self.dst = {('scc', 0)}
        elif op.startswith('s_load') or op.startswith('s_mem'):
            self.kind = 'smem'; self.dst = set(R[0]); self.src = set(sum(R[1:], []))
        elif op.startswith('s_'):
            self.kind = 'salu'; self.dst = set(R[0]) if R else set(); self.src = set(sum(R[1:], []))
            if not op.startswith(('s_mov', 's_mul', 's_cselect', 's_setprio')):
                self.dst = self.dst | {('scc', 0)}
            if op.startswith('s_cselect'): self.src |= {('scc', 0)}
        else:
            raise ValueError('unknown op ' + text)
        self.cost = c if cost is None else cost

    def __repr__(self):
        return self.text


def isvalu(i):
    return i.kind in ('valu', 'trans')


def vec(s):
    return {r for r in s if r[0] in 'va' and len(r[0]) == 1}


def sg(s):
    return {r for r in s if r[0] in ('s', 'vcc')}


def need_states(p, c):
    n = 0
    if p.kind == 'mfma':
        if c.kind == 'mfma':
            if p.dst & (c.src - c.srcC) or (p.dst & c.srcC and False):
                n = max(n, 12)
            if p.dst & c.srcC and p.dst != c.srcC:
                n = max(n, 10)
        elif isvalu(c) or c.kind in ('dsr', 'dsw', 'vld', 'vst', 'dma'):
            if p.dst & (c.src | c.dst):
                n = max(n, 12)
            if isvalu(c) and (p.srcC & c.dst):
                n = max(n, 7)
    if isvalu(p):
        if c.kind == 'mfma' and vec(p.dst) & c.src:
            n = max(n, 2)
        if p.kind == 'trans' and (c.kind == 'valu') and p.dst & c.src:
            n = max(n, 1)
        if c.op.startswith('v_permlane') and vec(p.dst) & c.src:
            n = max(n, 2)
        if c.op.startswith(('v_readfirstlane', 'v_readlane')) and vec(p.dst) & c.src:
            n = max(n, 1)
        if isvalu(c) and sg(p.dst) & c.src:
            n = max(n, 2)
        if c.kind in ('vld', 'vst', 'dma') and sg(p.dst) & c.src:
            n = max(n, 5)
        if c.kind in ('salu', 'branch') and sg(p.dst) & c.src and c.kind == 'salu':
            n = max(n, 1)
        if 'sdwa' in p.op and isvalu(c) and p.dst & c.src:
            n = max(n, 1)
    if p.kind == 'salu' and ('m0', 0) in p.dst and c.kind == 'dma':
        n = max(n, 1)
    if p.kind == 'vst' and (p.srcC & c.dst):
        n = max(n, 2)
    if p.kind == 'dsw' and False:
        pass
    return n


def required_pad(prev, c):
    dist = 0; pad = 0
    for p in reversed(prev):
        if p.kind == 'label':
            continue
        n = need_states(p, c)
        if n > dist:
            pad = max(pad, n - dist)
        dist += p.states
        if dist >= 13:
            break
    return pad


def fix_hazards(seq, prefix=(), insert=True, where=''):
    out = list(prefix); n0 = len(out); cnt = 0
    for c in seq:
        if c.kind != 'label':
            pad = required_pad(out, c)
            if pad:
                if not insert:
                    raise RuntimeError(f'hazard in {where}: need {pad} before "{c.text}"; prev: {[x.text for x in out[-6:]]}')
                out.append(I(f's_nop {pad - 1}')); cnt += 1
        out.append(c)
    return out[n0:], cnt


class Lgkm:
    def __init__(self, q=None):
        self.q = list(q or [])

    def copy(self):
        return Lgkm(self.q)


def parse_wait(text):
    m = re.search(r'lgkmcnt\((\d+)\)', text)
    return int(m.group(1)) if m else None


def insert_lgkm(seq, state, settle=170, t0=0, insert=True, where=''):
    out = []; t = t0; pipe = t0; q = state.q
    for c in seq:
        if c.kind == 'label':
            out.append(c); continue
        if c.kind == 'wait':
            n = parse_wait(c.text)
            if n is not None:
                del q[:max(0, len(q) - n)]
        else:
            touch = c.src | c.dst
            k = -1
            for idx, (regs, ti) in enumerate(q):
                if regs & touch and not (c.kind == 'dsr' and not (regs & c.src)):
                    k = idx
            if k >= 0:
                if not insert:
                    raise RuntimeError(f'lgkm missing in {where} before "{c.text}"')
                while k + 1 < len(q) and t - q[k + 1][1] >= settle:
                    k += 1
                k = max(k, len(q) - 16)
                n = len(q) - 1 - k
                w = I(f's_waitcnt lgkmcnt({n})'); w.tag = 'autowait'
                out.append(w); t += 4
                del q[:k + 1]
        if c.kind == 'mfma':
            t = max(t, pipe); pipe = t + 32
        if c.kind in ('dsr', 'dsw'):
            q.append((set(c.dst), t))
            if len([1 for r, ti in q if t - ti < 300]) > 15:
                raise RuntimeError(f'more than 15 LDS ops outstanding in {where} at "{c.text}"')
        if c.kind == 'smem':
            raise RuntimeError('smem inside lgkm-managed code')
        t += c.cost
        out.append(c)
    state.q = [(r, ti - t) for (r, ti) in q]
    return out, t


def est_cycles(seq):
    t = 0; pipe = 0
    for c in seq:
        if c.kind == 'label': continue
        if c.kind == 'mfma':
            t = max(t, pipe); pipe = t + 32
        t += c.cost
    return max(t, pipe)


class Stream:
    def __init__(self, name, ins, earliest=0, deadline=10 ** 9):
        self.name = name; self.ins = list(ins); self.earliest = earliest; self.deadline = deadline; self.pos = 0; self.after = None

    def rem_cost(self):
        return sum(i.cost for i in self.ins[self.pos:])


def schedule(M, fixed, fixed_end, reads, streams, lg, prefix, cap=24, maxds=2, settle=170, where='', caps=None, flush=False, late=None):
    n = len(M)
    gaps = [list(fixed.get(g, [])) for g in range(n)]
    ri = 0; lastg = -100
    for g in range(n):
        k = 0
        used = sum(i.cost for i in gaps[g]) + sum(i.cost for i in fixed_end.get(g, []))
        while ri < len(reads) and reads[ri][1] <= g and lastg + reads[ri][2] <= g and k < maxds and used + reads[ri][0].cost <= 24:
            gaps[g].append(reads[ri][0]); used += reads[ri][0].cost
            reads[ri][0].tgap = g
            if reads[ri][0].kind in ('dsr', 'dsw'): k += 1
            ri += 1; lastg = g
    assert ri == len(reads), f'{where}: reads left over {len(reads) - ri}'
    if late: streams = list(streams) + late()
    seq = []
    for g in range(n):
        seq.append(M[g]); M[g].tgap = g
        seq += gaps[g]; seq += fixed_end.get(g, [])
    lg1 = lg.copy()
    seq1, _ = insert_lgkm(seq, lg1, settle=settle, where=where)
    head = []; gl = []; cur = head
    for c in seq1:
        if c.kind == 'mfma':
            cur = []; gl.append(cur)
        else:
            cur.append(c)
    out = list(head)
    hist = list(prefix) + list(head)
    report = []
    for g in range(n):
        out.append(M[g]); hist.append(M[g])
        items = gl[g]
        ne = len(fixed_end.get(g, []))
        cut = len(items)
        fe = fixed_end.get(g, [])
        while cut > 0 and (items[cut - 1].tag == 'autowait' or items[cut - 1] in fe):
            cut -= 1
        first, tail = items[:cut], items[cut:]
        used = sum(i.cost for i in items)
        for c in first:
            out.append(c); hist.append(c)
        capg = caps(g) if caps else cap
        while True:
            cand = [s for s in streams if s.pos < len(s.ins) and s.earliest <= g
                    and (s.after is None or s.after.pos >= len(s.after.ins))
                    and (s.ins[s.pos].earliest is None or s.ins[s.pos].earliest <= g)]
            cand.sort(key=lambda s: s.deadline)
            pick = None
            for s in cand:
                c = s.ins[s.pos]
                force = s.deadline <= g
                if (used + c.cost <= capg or force) and required_pad(hist, c) == 0:
                    pick = s; break
            if pick is None:
                break
            c = pick.ins[pick.pos]; pick.pos += 1
            out.append(c); hist.append(c); used += c.cost
        for s in streams:
            if s.deadline <= g and s.pos < len(s.ins):
                raise RuntimeError(f'{where}: stream {s.name} missed deadline {s.deadline} at gap {g}, left {len(s.ins) - s.pos}')
        for c in tail:
            out.append(c); hist.append(c)
        report.append(used)
    left = [s for s in streams if s.pos < len(s.ins)]
    if left:
        if not flush:
            raise RuntimeError(f'{where}: streams unfinished: {[(s.name, len(s.ins) - s.pos) for s in left]}')
        while any(s.pos < len(s.ins) for s in streams):
            for s in streams:
                if s.pos < len(s.ins) and (s.after is None or s.after.pos >= len(s.after.ins)):
                    out.append(s.ins[s.pos]); s.pos += 1
    lg.q = lg1.q
    return out, report
```

```python
import os, sys, struct, math
sys.path.insert(0, os.path.dirname(os.path.abspath(__file__)))
from asmlib import *

E = lambda k, d: int(os.environ.get(k, d))
STAMP = E('STAMP', 0)
CAP = E('CAP', 24)
DMAC = E('DMAC', 16)
NTAIL = E('NTAIL', 6)
SETTLE = E('SETTLE', 170)
THR = float(os.environ.get('THR', 1024.0))
VERB = E('VERB', 0)
NODMA = E('NODMA', 0)
LDP = os.environ.get('LDP', ' nt')
STP = os.environ.get('STP', ' nt')

NAME = 'standalone__mha_softmax__near_ridge_kernel'
SA = [16, 48]; SB = [32, 64]; SX = 80; NA = 96; NB = 112; NX = 128; QX = 144; RING = 176
KA = 208; VA = 212; KXA = 214; VXA = 218; VOK = 220; VOV = 224
LA, LB, LX, LSA, LSB, LSX, CHK = 228, 229, 230, 231, 232, 233, 234
T = 236
VL = 0
VQB = 1
OA, OB, OX, QA, QB = 0, 64, 128, 192, 224
sQ, sK, sV, sO, sKR, sVR = 4, 8, 12, 16, 20, 24
sKoff, sVoff, sKm, sVm, sP, sHead, sW, sW8, sThr, sMask, sC, sH, sKb, sQb, sScr = 28, 29, 30, 31, 32, 33, 34, 35, 36, 37, 38, 40, 41, 42, 43
sT = 44
sWS = 60
sST = 64
QXL = 0x26000
f2u = lambda x: struct.unpack('<I', struct.pack('<f', x))[0]
CSC = f2u(math.log2(math.e) / math.sqrt(128.0))

v = lambda a, n=1: f'v{a}' if n == 1 else f'v[{a}:{a + n - 1}]'
a_ = lambda a, n=1: f'a{a}' if n == 1 else f'a[{a}:{a + n - 1}]'
s_ = lambda a, n=1: f's{a}' if n == 1 else f's[{a}:{a + n - 1}]'
ring = lambda f: RING + 4 * (f % 8)


def L(txt):
    return [I(x) for x in txt.strip().split('\n') if x.strip()]


def mfma(d, a, b, c):
    return I(f'v_mfma_f32_32x32x16_bf16 {d}, {a}, {b}, {c}')


def kread(dst, areg, slot, ks):
    return I(f'ds_read_b128 {v(dst, 4)}, {v(areg + (ks & 3))} offset:{slot * 8192 + (ks >> 2) * 1024}')


def vread(dst, areg, slot, s, db):
    return [I(f'ds_read_b64_tr_b16 {v(dst + 2 * u, 2)}, {v(areg + (db & 1))} offset:{slot * 8192 + (2 * s + u) * 2048 + (db >> 1) * 1024}') for u in range(2)]


def dma(voff, srd, soff, imm):
    o = f' offset:{imm}' if imm else ''
    return I(f'buffer_load_dwordx4 {v(voff)}, {s_(srd, 4)}, {s_(soff)} offen{o}{LDP} lds', cost=DMAC)


def batch(ringk):
    srd, off, m, vo = (sKR, sKoff, sKm, VOK) if ringk == 'K' else (sVR, sVoff, sVm, VOV)
    o = []
    for b in range(4):
        o += [I(f's_add_u32 m0, {s_(m)}, {b * 8192}'), I('s_nop 0'), dma(vo + b, srd, off, 0), dma(vo + b, srd, off, 2048)]
    o += [I(f's_add_u32 {s_(off)}, {s_(off)}, 0x8000'), I(f's_xor_b32 {s_(m)}, {s_(m)}, 0x8000')]
    return o


def set_srd(dst, src):
    return L(f's_mov_b32 s{dst}, s{src}\ns_mov_b32 s{dst + 1}, s{src + 1}\ns_mov_b32 s{dst + 2}, s{src + 2}\ns_mov_b32 s{dst + 3}, 0x20000')


def softmax(S, ls):
    e = lambda r: I(f'v_exp_f32 {v(S + r)}, {v(S + r)}')
    ad = lambda r: I(f'v_add_f32 {v(ls)}, {v(S) if r == 1 else v(ls)}, {v(S + r)}')
    cv = lambda t: I(f'v_cvt_pk_bf16_f32 {v(S + t)}, {v(S + 2 * t)}, {v(S + 2 * t + 1)}')
    o = [e(0), e(1)]
    for r in range(2, 16):
        o.append(e(r)); o.append(ad(r - 1))
        if r in (3, 5, 7, 9): o.append(cv((r - 3) // 2))
    o.append(ad(15))
    return o


def latecvt(S):
    return [I(f'v_cvt_pk_bf16_f32 {v(S + 8 + t)}, {v(S + 8 + 2 * t)}, {v(S + 8 + 2 * t + 1)}') for t in range(4)]


def rowmax(S, t):
    o = [I(f'v_max3_f32 {v(t)}, {v(S)}, {v(S + 1)}, {v(S + 2)}')]
    for k in range(6):
        o.append(I(f'v_max3_f32 {v(t)}, {v(t)}, {v(S + 3 + 2 * k)}, {v(S + 4 + 2 * k)}'))
    o.append(I(f'v_max_f32 {v(t)}, {v(t)}, {v(S + 15)}'))
    o.append(I(f'v_mov_b32 {v(t + 1)}, {v(t)}'))
    o.append(I(f'v_permlane32_swap_b32 {v(t)}, {v(t + 1)}'))
    return o


nstamp = [0]
def stamp():
    if not STAMP: return []
    k = nstamp[0]; nstamp[0] += 1
    x = I(f's_memtime {s_(sST + 2 * k, 2)}'); x.kind = 'salu'
    return [x, I('s_waitcnt lgkmcnt(0)')]


def startup():
    o = L(f'''
s_cmp_ge_u32 s2, 256
s_cbranch_scc1 L_end
s_load_dwordx4 s[44:47], s[0:1], 0
s_load_dwordx4 s[48:51], s[0:1], 16
''')
    if STAMP:
        o += L(f's_load_dwordx2 s[52:53], s[0:1], 40\ns_memrealtime s[{sST + 30}:{sST + 31}]')
    o += L(f'''
v_lshrrev_b32 v2, 6, v0
v_and_b32 v0, 63, v0
v_readfirstlane_b32 s{sW}, v2
v_lshrrev_b32 v3, 3, v0
v_and_b32 v4, 7, v0
v_and_b32 v5, 2, v3
v_lshlrev_b32 v5, 1, v5
v_xor_b32 v4, v4, v5
v_lshrrev_b32 v6, 2, v3
s_lshr_b32 s54, s{sW}, 1
s_and_b32 s55, s{sW}, 1
s_lshl_b32 s56, s54, 1
v_xor_b32 v6, s56, v6
v_xor_b32 v6, v4, v6
s_lshl_b32 s56, s54, 12
s_lshl_b32 s57, s55, 7
s_add_u32 s57, s57, s56
v_lshlrev_b32 v3, 8, v3
v_add_u32 v3, s57, v3
v_lshl_add_u32 v{VOK}, v6, 4, v3
v_lshl_add_u32 v{VOV}, v4, 4, v3
s_lshl_b32 s55, s55, 10
s_add_u32 s58, s56, s55
s_add_u32 s{sKm}, s58, 0x8000
s_add_u32 s{sVm}, s58, 0x18000
s_lshl_b32 s{sW8}, s{sW}, 13
s_mov_b32 s{sHead}, s2
s_lshl_b32 s{sKb}, s2, 18
s_mul_i32 s{sQb}, s2, 73728
''')
    for b in range(1, 4):
        o += L(f'v_add_u32 v{VOK + b}, {b * 8192}, v{VOK}\nv_add_u32 v{VOV + b}, {b * 8192}, v{VOV}')
    o += L('s_waitcnt lgkmcnt(0)')
    for d, b, n in ((sQ, 44, 37748736), (sK, 46, 134217728), (sV, 48, 134217728), (sO, 50, 37748736)):
        o += L(f's_mov_b32 s{d}, s{b}\ns_and_b32 s{d + 1}, s{b + 1}, 0xffff\ns_mov_b32 s{d + 2}, {n}\ns_mov_b32 s{d + 3}, 0x20000')
    if STAMP:
        o += L(f's_mov_b32 s{sWS}, s52\ns_and_b32 s{sWS + 1}, s53, 0xffff\ns_mov_b32 s{sWS + 2}, 0x100000\ns_mov_b32 s{sWS + 3}, 0x20000')
    o += set_srd(sKR, sQ) + set_srd(sVR, sQ)
    o += L(f's_mov_b32 s{sKoff}, s{sQb}\ns_add_u32 s{sVoff}, s{sQb}, 0x8000')
    o += batch('K')
    o += L(f's_add_u32 m0, s58, {QXL}\ns_add_u32 s59, s{sQb}, 0x10000')
    o += [dma(VOK, sQ, 59, 0), dma(VOK, sQ, 59, 2048)]
    o += batch('V')
    o += set_srd(sKR, sK) + set_srd(sVR, sV)
    o += L(f's_mov_b32 s{sKoff}, s{sKb}\ns_mov_b32 s{sVoff}, s{sKb}')
    o += batch('K') + batch('V')
    o += L(f'''
s_mov_b32 s{sThr}, {hex(f2u(THR))}
s_mov_b32 s{sMask}, 0xffff0000
s_mov_b32 s{sC}, {hex(CSC)}
s_mov_b32 s{sC + 1}, {hex(CSC)}
s_mov_b32 s{sH}, 0
s_mov_b32 s{sScr}, 0x18000
v_and_b32 v2, 31, v0
v_lshrrev_b32 v3, 5, v0
v_lshrrev_b32 v4, 3, v2
v_lshlrev_b32 v4, 11, v4
v_and_b32 v5, 7, v2
v_lshl_add_u32 v4, v5, 7, v4
v_and_b32 v5, 2, v2
v_lshlrev_b32 v5, 1, v5
v_xor_b32 v5, v5, v3
v_lshl_add_u32 v{VQB}, v5, 4, v4
s_add_u32 s54, s{sW8}, 0x10000
v_add_u32 v{VQB}, s54, v{VQB}
v_bfe_u32 v6, v2, 2, 1
v_bfe_u32 v7, v2, 4, 1
v_lshl_add_u32 v6, v7, 1, v6
v_xor_b32 v5, v5, v6
v_lshl_add_u32 v{KA}, v5, 4, v4
v_add_u32 v{KA}, 0x8000, v{KA}
v_xor_b32 v{KA + 1}, 32, v{KA}
v_xor_b32 v{KA + 2}, 64, v{KA}
v_xor_b32 v{KA + 3}, 0x60, v{KA}
''')
    for m in range(4):
        o += L(f'v_add_u32 v{KXA + m}, s{sW8}, v{KA + m}')
    o += L(f'''
v_bfe_u32 v2, v0, 2, 2
v_lshl_add_u32 v4, v3, 2, v2
v_lshlrev_b32 v4, 7, v4
v_lshrrev_b32 v2, 1, v2
v_lshl_add_u32 v4, v2, 6, v4
v_and_b32 v2, 1, v0
v_lshl_add_u32 v4, v2, 5, v4
v_bfe_u32 v2, v0, 4, 1
v_lshl_add_u32 v4, v2, 4, v4
v_bfe_u32 v2, v0, 1, 1
v_lshl_add_u32 v4, v2, 3, v4
v_add_u32 v{VA}, 0x18000, v4
v_xor_b32 v{VA + 1}, 64, v{VA}
v_add_u32 v{VXA}, s54, v4
v_xor_b32 v{VXA + 1}, 64, v{VXA}
s_waitcnt vmcnt(16)
s_barrier
s_branch L_q
''')
    return o


def qphase():
    o = L('L_head:\ns_barrier') + batch('V') + L('L_q:')
    o += stamp()
    TB = T + 8; TX = T + 12; Z = T + 16
    o += L(f'v_and_b32 v{TB}, 0x8000, v{VA}\nv_add_u32 v{TB}, v{TB}, v{VQB}')
    rd = [kread(16 + 4 * ks, KXA, 0, ks) for ks in range(8)]
    rd += [kread(48 + 4 * ks, TB, 0, ks) for ks in range(8)]
    rd += [kread(QX + 4 * ks, TX, 0, ks) for ks in range(8)]
    o += rd[:8]
    o += L(f'v_xor_b32 v{TB + 1}, 32, v{TB}\nv_xor_b32 v{TB + 2}, 64, v{TB}\nv_xor_b32 v{TB + 3}, 0x60, v{TB}')
    o += rd[8:12]
    for m in range(4):
        o += L(f'v_and_b32 v{TX + m}, 0x7fff, v{KA + m}\nv_add_u32 v{TX + m}, {QXL}, v{TX + m}\nv_mov_b32 v{Z + m}, 0')
    nr = 12; nz = 0
    for f in range(24):
        x = (16 + 4 * f) if f < 16 else QX + 4 * (f - 16)
        for k in range(4): o.append(I(f'v_lshlrev_b32 v{T + 2 * k}, 16, v{x + k}'))
        for k in range(4): o.append(I(f'v_and_b32 v{T + 2 * k + 1}, s{sMask}, v{x + k}'))
        if nr < 24:
            o.append(rd[nr]); nr += 1
        for k in range(4): o.append(I(f'v_pk_mul_f32 {v(T + 2 * k, 2)}, {v(T + 2 * k, 2)}, {s_(sC, 2)}'))
        if f % 2 == 0:
            o.append(mfma(a_(16 * nz, 16), v(Z, 4), v(Z, 4), '0')); nz += 1
        for k in range(4): o.append(I(f'v_cvt_pk_bf16_f32 v{x + k}, v{T + 2 * k}, v{T + 2 * k + 1}'))
        if f < 16:
            for k in range(4): o.append(I(f'v_accvgpr_write_b32 a{QA + 4 * f + k}, v{x + k}'))
        if f == 12:
            for r in list(range(KA, KA + 4)) + list(range(KXA, KXA + 4)) + [VA, VA + 1, VXA, VXA + 1]:
                o.append(I(f'v_xor_b32 v{r}, 0x8000, v{r}'))
    assert nz == 12
    o += L(f'''
s_cmp_eq_u32 s{sH}, 0
s_cbranch_scc0 L_q1
s_waitcnt vmcnt(8)
L_q1:
s_waitcnt vmcnt(26) lgkmcnt(0)
s_barrier
''')
    o += stamp()
    return o


def pq(lg, prefix):
    pre = [kread(ring(ks), KA, 0, ks) for ks in range(8)]
    pre += L(f's_and_b32 s58, s{sKm}, 0x7fff\ns_add_u32 m0, s58, {QXL}\ns_add_u32 s59, s{sQb}, {256 * 73728 + 0x10000}')
    pre += [dma(VOK, sQ, 59, 0), dma(VOK, sQ, 59, 2048)]
    pre, _ = insert_lgkm(pre, lg, where='pq-pre')
    M = []
    for S, Q in ((SA[0], lambda k: a_(QA + 4 * k, 4)), (SB[0], lambda k: a_(QB + 4 * k, 4)), (SX, lambda k: v(QX + 4 * k, 4))):
        for ks in range(8):
            M.append(mfma(v(S, 16), v(ring(ks), 4), Q(ks), '0' if ks == 0 else v(S, 16)))
    for S, N, Q in ((SA[1], NA, QA), (SB[1], NB, QB)):
        for ks in range(8):
            M.append(mfma(v(S, 16), v(ring(ks), 4), a_(Q + 4 * ks, 4), v(N, 16) if ks == 0 else v(S, 16)))
    fixed = {}; fe = {}
    kb = batch('K')
    kb = [x for x in kb if x.kind != 'nop']
    g = 0
    for b in range(4):
        fe.setdefault(g, []).append(kb[3 * b]); fixed.setdefault(g + 1, []).append(kb[3 * b + 1]); fixed.setdefault(g + 2, []).append(kb[3 * b + 2])
        g += 2
    fixed.setdefault(g + 1, []).extend(kb[12:])
    fixed.setdefault(g + 1, []).extend(L(f'v_mov_b32 v{LA}, 0\nv_mov_b32 v{LB}, 0\nv_mov_b32 v{LX}, 0'))
    fixed.setdefault(0, []).extend(L(f's_mov_b64 vcc, 0\ns_mov_b32 s{sP}, 0'))
    reads = [(kread(ring(ks), KA, 1, ks), 16 + ks, 0) for ks in range(8)]
    reads += [(I('s_waitcnt vmcnt(14) lgkmcnt(0)'), 30, 3), (I('s_barrier'), 0, 0)]
    for f in range(NTAIL):
        for x in vread(ring(f), VA, 0, f >> 2, f & 3):
            reads.append((x, 32 + f, 0))
    def mx(S, N, t):
        o = rowmax(S, t)
        o.append(I(f'v_min_f32 {v(N)}, -{v(t)}, -{v(t + 1)}'))
        o += [I(f'v_mov_b32 {v(N + r)}, {v(N)}') for r in range(1, 16)]
        return o
    def sm0(S, N, ls):
        return [I(f'v_add_f32 {v(S + r)}, {v(N)}, {v(S + r)}') for r in range(16)] + softmax(S, ls)
    sAm = Stream('Amax', mx(SA[0], NA, T), 8, 22); sBm = Stream('Bmax', mx(SB[0], NB, T + 2), 16, 30)
    sXm = Stream('Xmax', mx(SX, NX, T + 4), 24, 1000)
    sAs = Stream('Asm', sm0(SA[0], NA, LSA), 8, 1001); sAs.after = sAm
    sBs = Stream('Bsm', sm0(SB[0], NB, LSB), 16, 1002); sBs.after = sBm
    out, rep = schedule(M, fixed, fe, reads, [sAm, sBm, sXm, sAs, sBs], lg, prefix + pre, cap=24, where='pq', flush=True, settle=SETTLE)
    if VERB: print('; pq gaps', rep, file=sys.stderr)
    return pre + out


def body(lg, prefix):
    M = []; frags = []
    def addfrag(rd, ms):
        f = len(frags)
        frags.append([rd(ring(f)), len(M), len(M) + len(ms) - 1])
        for m in ms: M.append(m(v(ring(f), 4)))
    start = []; qstart = []
    for k in range(4):
        b = k & 1
        start.append(len(M))
        for s in range(2):
            for db in range(4):
                addfrag(lambda d, s=s, db=db: vread(d, VA, k, s, db),
                        [lambda A, s=s, db=db: mfma(a_(OA + 16 * db, 16), A, v(SA[b] + 8 * s, 4), a_(OA + 16 * db, 16)),
                         lambda A, s=s, db=db: mfma(a_(OB + 16 * db, 16), A, v(SB[b] + 8 * s, 4), a_(OB + 16 * db, 16))])
        qstart.append(len(M))
        for ks in range(8):
            addfrag(lambda d, ks=ks: [kread(d, KA, (k + 2) & 3, ks)],
                    [lambda A, ks=ks: mfma(v(SA[b], 16), A, a_(QA + 4 * ks, 4), v(NA, 16) if ks == 0 else v(SA[b], 16)),
                     lambda A, ks=ks: mfma(v(SB[b], 16), A, a_(QB + 4 * ks, 4), v(NB, 16) if ks == 0 else v(SB[b], 16))])
            if k == 0:
                addfrag(lambda d, ks=ks: [kread(d, KXA, 0, ks)],
                        [lambda A, ks=ks: mfma(v(SX, 16), A, v(QX + 4 * ks, 4), v(NX, 16) if ks == 0 else v(SX, 16))])
            if k == 3:
                s, db = ks >> 2, ks & 3
                addfrag(lambda d, s=s, db=db: vread(d, VXA, 0, s, db),
                        [lambda A, s=s, db=db: mfma(a_(OX + 16 * db, 16), A, v(SX + 8 * s, 4), a_(OX + 16 * db, 16))])
    n = len(M); nf = len(frags)
    assert n == 144 and nf == 80
    end = start[1:] + [n]
    reads = []
    tog = lambda r: (I(f'v_xor_b32 v{r}, 0x8000, v{r}'), 0, 0)
    BARW = E('BARW', 3)
    for f in range(NTAIL, nf + NTAIL):
        e = frags[f - 8][2] if f >= 8 else 0
        if f == 40:
            reads += [(I('s_waitcnt vmcnt(12) lgkmcnt(0)', tag='Bk'), 0, BARW), (I('s_barrier', tag='Bk'), 0, 0)]
        if f == 80:
            reads += [(I('s_waitcnt vmcnt(12) lgkmcnt(0)', tag='Bv'), 0, BARW), (I('s_barrier', tag='Bv'), 0, 0)]
        if f < nf:
            rs = frags[f][0]
        else:
            rs = vread(ring(f), VA, 0, (f - nf) >> 2, (f - nf) & 3)
        for x in rs: reads.append((x, e, 0))
    fixed = {}; fe = {}
    VD = [int(x) for x in os.environ.get('VD', '1,6,11,17,23,29,35,42').split(',')]
    KD = [int(x) for x in os.environ.get('KD', '66,73,80,88,96,105,112,122').split(',')]
    for D, srd, off, m, vo in ((VD, sVR, sVoff, sVm, VOV), (KD, sKR, sKoff, sKm, VOK)):
        for i, g in enumerate(D):
            if NODMA: continue
            if i % 2 == 0:
                fe.setdefault(g - 1, []).append(I(f's_add_u32 m0, {s_(m)}, {(i // 2) * 8192}'))
            fixed.setdefault(g, []).append(dma(vo + i // 2, srd, off, (i % 2) * 2048))
        fixed.setdefault(D[-1] + 1, []).extend([I(f's_add_u32 {s_(off)}, {s_(off)}, 0x8000'), I(f's_xor_b32 {s_(m)}, {s_(m)}, 0x8000')])
    for k in range(1, 4):
        fe.setdefault(start[k] - 1, []).extend(L(f's_cbranch_vccnz L_slow{k}\nL_back{k}:'))
    gX = qstart[3]
    fe.setdefault(gX, []).extend(L('s_cbranch_vccnz L_slowX\nL_backX:'))
    fe.setdefault(n - 2, []).extend(L(f's_add_u32 s{sP}, s{sP}, 1'))
    fe.setdefault(n - 1, []).extend(L(f's_cmp_lt_u32 s{sP}, 6\ns_cbranch_scc1 L_loop'))
    streams = []
    for k in range(4):
        b = k & 1; nb = b ^ 1
        streams.append(Stream(f'late{k}', latecvt(SA[b]) + latecvt(SB[b]), start[k], start[k] + 6))
        cmp_ = I(f'v_cmp_nge_f32 vcc, s{sThr}, v{CHK}', earliest=(gX + 1 if k == 3 else None))
        ins = L(f'v_add_f32 v{LA}, v{LA}, v{LSA}\nv_add_f32 v{LB}, v{LB}, v{LSB}') + softmax(SA[nb], LSA) + softmax(SB[nb], LSB) \
            + L(f'v_add_f32 v{CHK}, v{LSA}, v{LSB}') + [cmp_]
        streams.append(Stream(f'sm{k}', ins, start[k], end[k] - 2))
    streams.append(Stream('smX', softmax(SX, LSX) + [I(f'v_cmp_nge_f32 vcc, s{sThr}, v{LSX}', earliest=start[3])], start[1], gX - 1))
    streams.append(Stream('lateX', latecvt(SX) + L(f'v_add_f32 v{LX}, v{LX}, v{LSX}'), gX + 1, gX + 11))
    def gap_of(f, last):
        return frags[f][0][-1 if last else 0].tgap
    class Lazy(Stream): pass
    tg = lambda r: I(f'v_xor_b32 v{r}, 0x8000, v{r}')
    def mk_toggles():
        o = []
        o.append(Stream('togKA', [tg(KA + m) for m in range(4)], gap_of(39, True), gap_of(48, False) - 1))
        o.append(Stream('togKXA', [tg(KXA + m) for m in range(4)], gap_of(23, True), n - 3))
        first_tail = [r for r in reads if r[0].tag == 'Bv'][-1][0].tgap
        o.append(Stream('togVA', [tg(VA), tg(VA + 1)], gap_of(63, True), first_tail - 1))
        o.append(Stream('togVXA', [tg(VXA), tg(VXA + 1)], 0, gap_of(65, False) - 1))
        return o
    def caps(g):
        if g == n - 1: return 0
        return CAP
    out, rep = schedule(M, fixed, fe, reads, streams, lg, prefix, caps=caps, where='body', settle=SETTLE, late=mk_toggles)
    if VERB:
        for k in range(4): print(f'; body step{k} gaps', rep[start[k]:end[k]], file=sys.stderr)
        print('; Bk gap', [r[0].tgap for r in reads if r[0].tag == 'Bk'], 'Bv gap', [r[0].tgap for r in reads if r[0].tag == 'Bv'], file=sys.stderr)
    cnt = [0, 0, 0]; k = 0
    for c in out:
        if c.kind == 'wait' and c.tag in ('Bk', 'Bv'): k += 1; pend = True
        if c.kind == 'dma': cnt[k] += 1
    assert NODMA or cnt == [8, 8, 0], cnt
    return L('L_loop:\ns_cbranch_vccnz L_slow0\nL_back0:') + out


def special():
    o = L(f'''
s_cmp_eq_u32 s{sP}, 6
s_cbranch_scc0 L_sp7
''') + set_srd(sKR, sQ) + L(f'''
s_add_u32 s{sKoff}, s{sQb}, {256 * 73728}
s_branch L_loop
L_sp7:
s_cmp_eq_u32 s{sP}, 7
s_cbranch_scc0 L_epi
''') + set_srd(sKR, sK) + set_srd(sVR, sQ) + L(f'''
s_add_u32 s{sKoff}, s{sKb}, {256 * 262144}
s_add_u32 s{sVoff}, s{sQb}, {256 * 73728 + 0x8000}
s_branch L_loop
L_epi:
''')
    return o


def epilogue():
    o = L('s_waitcnt lgkmcnt(0)') + stamp()
    o += set_srd(sVR, sV) + L(f's_add_u32 s{sVoff}, s{sKb}, {256 * 262144}')
    WA = T; RA = T + 4; GO = T + 6; R = T + 8; L16 = T + 12; L8 = T + 13
    o += L(f'''
s_mul_i32 s44, s{sW}, 12288
s_add_u32 s44, s44, s{sScr}
v_and_b32 v2, 31, v0
v_lshrrev_b32 v3, 5, v0
v_lshlrev_b32 v3, 1, v3
v_and_b32 v4, 7, v0
v_xor_b32 v3, v3, v4
v_lshlrev_b32 v2, 8, v2
v_lshl_add_u32 v2, v3, 4, v2
v_add_u32 v{WA}, s44, v2
v_xor_b32 v{WA + 1}, 16, v{WA}
v_xor_b32 v{WA + 2}, 64, v{WA}
v_xor_b32 v{WA + 3}, 0x50, v{WA}
v_lshrrev_b32 v2, 4, v0
v_and_b32 v3, 15, v0
v_xor_b32 v3, v3, v2
v_lshlrev_b32 v2, 8, v2
v_lshl_add_u32 v2, v3, 4, v2
v_add_u32 v{RA}, s44, v2
v_xor_b32 v{RA + 1}, 64, v{RA}
v_lshlrev_b32 v{GO}, 4, v0
v_add_u32 v{L16}, s{sScr}, v{GO}
s_add_u32 s45, s{sScr}, 49152
v_lshl_add_u32 v{L8}, v0, 3, s45
s_add_u32 s46, s{sQb}, s{sW8}
s_add_u32 s47, s46, 4096
s_add_u32 s48, s46, 0x8000
s_add_u32 s49, s46, 0x9000
''')
    for l, r in ((LA, R), (LB, R + 2), (LX, None)):
        o += L(f'v_mov_b32 v2, v{l}\nv_permlane32_swap_b32 v{l}, v2\nv_add_f32 v{l}, v{l}, v2')
        if r: o += L(f'v_rcp_f32 v{r}, v{l}\nv_mov_b32 v{r + 1}, v{r}')
    def norm(O, r, db, tmp, out):
        x = [I(f'v_accvgpr_read_b32 v{tmp + k}, a{O + 16 * db + k}') for k in range(16)]
        x += [I(f'v_pk_mul_f32 {v(tmp + 2 * k, 2)}, {v(tmp + 2 * k, 2)}, {v(r, 2)}') for k in range(8)]
        x += [I(f'v_cvt_pk_bf16_f32 v{out + k}, v{tmp + 2 * k}, v{tmp + 2 * k + 1}') for k in range(8)]
        x += [I(f'ds_write_b128 v{WA + 2 * (db & 1) + e}, {v(out + 4 * e, 4)} offset:{(db >> 1) * 128}') for e in range(2)]
        return x
    def rdback(dst):
        return [I(f'ds_read_b128 {v(dst + 4 * i, 4)}, v{RA + (i & 1)} offset:{i * 1024}') for i in range(8)]
    def stores(src, so):
        return [I(f'buffer_store_dwordx4 {v(src + 4 * i, 4)}, v{GO}, {s_(sO, 4)}, s{so + (i >> 2)} offen offset:{(i & 3) * 1024}{STP}') for i in range(8)]
    TM = 80; OU = [96, 104]
    for db in range(4): o += norm(OA, R, db, TM, OU[db & 1])
    o += rdback(16)
    nb = [norm(OB, R + 2, db, TM, OU[db & 1]) for db in range(4)]
    st = stores(16, 46)
    o += nb[0]
    x = nb[1]
    for i in range(8):
        o += x[4 * i:4 * i + 4]; o.append(st[i])
    o += x[32:]
    o += nb[2] + nb[3]
    o += rdback(48)
    stB = stores(48, 48)
    OWN = 80; RX = [16, 32, 176]; ST = 112
    o += L(f'v_mov_b32 v{NX + 1}, v{LX}')
    o += stB
    o += L(f'''
s_cmp_eq_u32 s{sW}, 1
s_cbranch_scc1 L_xv1
s_cmp_eq_u32 s{sW}, 2
s_cbranch_scc1 L_xv2
s_cmp_eq_u32 s{sW}, 3
s_cbranch_scc1 L_xv3
''')
    variants = []
    for w in range(4):
        x = L(f'L_xv{w}:')
        for dq in range(1, 4):
            d = (w + dq) & 3
            for qd in range(4):
                x.append(I(f'ds_write_b128 v{L16}, {a_(OX + 16 * d + 4 * qd, 4)} offset:{w * 12288 + (dq - 1) * 4096 + qd * 1024}'))
            x.append(I(f'ds_write_b64 v{L8}, {v(NX, 2)} offset:{d * 2048 + (dq - 1) * 512}'))
        x += [I(f'v_accvgpr_read_b32 v{OWN + k}, a{OX + 16 * w + k}') for k in range(16)]
        x += L('s_waitcnt lgkmcnt(0)\ns_barrier')
        for dq in range(1, 4):
            x.append(I(f'ds_read_b64 {v(ST + 2 * (dq - 1), 2)}, v{L8} offset:{w * 2048 + (dq - 1) * 512}'))
        for dq in range(1, 4):
            src = (w - dq) & 3
            for qd in range(4):
                x.append(I(f'ds_read_b128 {v(RX[dq - 1] + 4 * qd, 4)}, v{L16} offset:{src * 12288 + (dq - 1) * 4096 + qd * 1024}'))
        if w < 3: x += L('s_branch L_xj')
        variants.append(x)
    G = 118
    j = L(f'''
L_xj:
v_and_b32 v2, 31, v0
v_lshrrev_b32 v3, 5, v0
v_lshlrev_b32 v3, 1, v3
v_bfe_u32 v4, v0, 1, 2
v_xor_b32 v3, v3, v4
v_lshlrev_b32 v2, 6, v2
v_lshl_add_u32 v2, v3, 4, v2
s_lshl_b32 s44, s{sW}, 11
s_add_u32 s50, s45, s44
v_add_u32 v{WA}, s50, v2
v_xor_b32 v{WA + 1}, 16, v{WA}
v_lshrrev_b32 v2, 4, v0
v_lshrrev_b32 v3, 5, v0
v_and_b32 v4, 3, v0
v_xor_b32 v3, v3, v4
v_bfe_u32 v4, v0, 2, 2
v_lshlrev_b32 v4, 11, v4
v_lshl_add_u32 v4, v2, 6, v4
v_lshl_add_u32 v4, v3, 4, v4
s_lshl_b32 s51, s{sW}, 9
s_add_u32 s51, s51, s45
v_add_u32 v{RA}, s51, v4
v_xor_b32 v{RA + 1}, 32, v{RA}
s_add_u32 s44, s44, s{sQb}
s_add_u32 s44, s44, 0x10000
v_min3_f32 v2, v{NX}, v{ST}, v{ST + 2}
v_min_f32 v2, v2, v{ST + 4}
v_sub_f32 v{G}, v2, v{NX}
v_sub_f32 v{G + 2}, v2, v{ST}
v_sub_f32 v{G + 4}, v2, v{ST + 2}
v_sub_f32 v{G + 6}, v2, v{ST + 4}
v_exp_f32 v{G}, v{G}
v_exp_f32 v{G + 2}, v{G + 2}
v_exp_f32 v{G + 4}, v{G + 4}
v_exp_f32 v{G + 6}, v{G + 6}
v_mul_f32 v3, v{G}, v{NX + 1}
v_fmac_f32 v3, v{G + 2}, v{ST + 1}
v_fmac_f32 v3, v{G + 4}, v{ST + 3}
v_fmac_f32 v3, v{G + 6}, v{ST + 5}
v_rcp_f32 v3, v3
''')
    for k in range(4):
        j += L(f'v_mul_f32 v{G + 2 * k}, v{G + 2 * k}, v3')
    for k in range(4):
        j += L(f'v_mov_b32 v{G + 2 * k + 1}, v{G + 2 * k}')
    for k in range(8): j.append(I(f'v_pk_mul_f32 {v(OWN + 2 * k, 2)}, {v(OWN + 2 * k, 2)}, {v(G, 2)}'))
    for dq in range(1, 4):
        for k in range(8):
            j.append(I(f'v_pk_fma_f32 {v(OWN + 2 * k, 2)}, {v(RX[dq - 1] + 2 * k, 2)}, {v(G + 2 * dq, 2)}, {v(OWN + 2 * k, 2)}'))
    for k in range(8): j.append(I(f'v_cvt_pk_bf16_f32 v{96 + k}, v{OWN + 2 * k}, v{OWN + 2 * k + 1}'))
    j += L(f'''
ds_write_b128 v{WA}, v[96:99]
ds_write_b128 v{WA + 1}, v[100:103]
s_waitcnt lgkmcnt(0)
s_barrier
ds_read_b128 v[104:107], v{RA}
ds_read_b128 v[108:111], v{RA + 1} offset:256
''')
    j += [I(f'buffer_store_dwordx4 {v(104 + 4 * i, 4)}, v{GO}, {s_(sO, 4)}, s44 offen offset:{i * 1024}{STP}') for i in range(2)]
    j += stamp()
    j += L(f'''
s_cmp_eq_u32 s{sH}, 1
s_cbranch_scc1 L_fin
s_mov_b32 s{sH}, 1
s_mov_b32 s{sScr}, 0x8000
s_add_u32 s{sKb}, s{sKb}, {256 * 262144}
s_add_u32 s{sQb}, s{sQb}, {256 * 73728}
''')
    if STAMP:
        for k in range(10):
            j += L(f's_mov_b32 s{sST + 12 + k}, s{sST + k}')
    j += L('s_waitcnt vmcnt(26)\ns_branch L_head\nL_fin:')
    if STAMP:
        j += L(f's_waitcnt vmcnt(0)\ns_memrealtime s[{sST + 32}:{sST + 33}]\ns_memtime s[{sST + 10}:{sST + 11}]\ns_waitcnt lgkmcnt(0)')
        for x in j[-3:-1]: x.kind = 'salu'
        j += L(f'''
v_mov_b32 v10, s{sST + 30}
v_mov_b32 v11, s{sST + 31}
v_mov_b32 v12, s{sST + 32}
v_mov_b32 v13, s{sST + 33}
s_lshl_b32 s54, s2, 6
s_lshl_b32 s55, s{sW}, 4
s_add_u32 s54, s54, s55
v_mov_b32 v14, 0
s_mov_b64 exec, 1
buffer_store_dwordx4 v[10:13], v14, {s_(sWS, 4)}, s54 offen
s_lshl_b32 s54, s54, 3
s_add_u32 s54, s54, 0x10000
''')
        for k in range(6):
            for q in range(4): j += L(f'v_mov_b32 v{16 + 4 * k + q}, s{sST + 4 * k + q}')
            j += L(f'buffer_store_dwordx4 {v(16 + 4 * k, 4)}, v14, {s_(sWS, 4)}, s54 offen offset:{16 * k}')
    j += L('L_end:\ns_endpgm')
    return o, variants, j


def slow(k):
    KF = T
    VO = T + 16; t = 2
    o = L(f'L_slow{k}:\ns_nop 15')
    o += L(f'v_and_b32 v{VO}, 31, v0\nv_lshrrev_b32 v{VO + 1}, 5, v0\nv_lshlrev_b32 v{VO}, 8, v{VO}\nv_lshl_add_u32 v{VO}, v{VO + 1}, 4, v{VO}')
    o += L(f's_lshl_b32 s44, s{sP}, 15\ns_add_u32 s44, s44, s{sKb}')
    if k == 'X':
        o += L(f's_add_u32 s44, s44, s{sW8}')
        tiles = [(SX, NX, lambda q: v(QX + 4 * q, 4), OX, LX, LSX, None)]
    else:
        if k: o += L(f's_add_u32 s44, s44, {k * 8192}')
        b = k & 1
        tiles = [(SA[b], NA, lambda q: a_(QA + 4 * q, 4), OA, LA, LSA, SA[b ^ 1]), (SB[b], NB, lambda q: a_(QB + 4 * q, 4), OB, LB, LSB, SB[b ^ 1])]
    for half in range(2):
        for q in range(4):
            o += L(f'buffer_load_dwordx4 {v(KF + 4 * q, 4)}, v{VO}, {s_(sK, 4)}, s44 offen offset:{(4 * half + q) * 32}')
        o += L('s_waitcnt vmcnt(0)')
        for q in range(4):
            ks = 4 * half + q
            for (S, N, Q, O, l, ls, S2) in tiles:
                o.append(mfma(v(S, 16), v(KF + 4 * q, 4), Q(ks), '0' if ks == 0 else v(S, 16)))
        o += L('s_nop 15')
    for (S, N, Q, O, l, ls, S2) in tiles:
        o += rowmax(S, t)
        o += L(f'v_min3_f32 v{t + 2}, -v{t}, -v{t + 1}, v{N}\nv_sub_f32 v{t + 3}, v{t + 2}, v{N}\nv_exp_f32 v{t + 4}, v{t + 3}')
        o += [I(f'v_mov_b32 v{N + r}, v{t + 2}') for r in range(16)]
        o += L(f'v_mul_f32 v{l}, v{l}, v{t + 4}')
        if S2 is not None:
            o += [I(f'v_add_f32 v{S2 + r}, v{t + 3}, v{S2 + r}') for r in range(16)]
        o += [I(f'v_add_f32 v{S + r}, v{t + 2}, v{S + r}') for r in range(16)]
        o += softmax(S, ls)
        for c in range(8):
            o += [I(f'v_accvgpr_read_b32 v{KF + r}, a{O + 8 * c + r}') for r in range(8)]
            o += [I(f'v_mul_f32 v{KF + r}, v{KF + r}, v{t + 4}') for r in range(8)]
            o += [I(f'v_accvgpr_write_b32 a{O + 8 * c + r}, v{KF + r}') for r in range(8)]
    o += L(f's_nop 3\ns_branch L_back{k}')
    return o


def main():
    st, n0 = fix_hazards(startup())
    lg = Lgkm()
    qp, _ = insert_lgkm(qphase(), lg, where='qphase', settle=120)
    qp, n1 = fix_hazards(qp, st[-14:])
    assert not lg.q
    p = pq(lg, qp[-14:])
    p, n2 = fix_hazards(p, qp[-14:])
    q_entry = [r for r, t in lg.q]
    lg1 = lg.copy(); b0 = body(lg1, p[-14:])
    lg2 = lg1.copy(); b = body(lg2, b0[-14:])
    assert [r for r, t in lg2.q] == q_entry == [r for r, t in lg1.q], 'queue mismatch'
    fix_hazards(b, p[-14:], insert=False, where='body(entry)')
    fix_hazards(b, b[-16:], insert=False, where='body(back)')
    lgv = lg1.copy(); insert_lgkm(b, lgv, insert=False, where='body verify')
    lgv = Lgkm(); insert_lgkm(p, lgv, insert=False, where='pq verify')
    sp = special()
    e0, var, ej = epilogue()
    lg = lg2.copy()
    e0, _ = insert_lgkm(e0, lg, where='epi', settle=120)
    e0, n3 = fix_hazards(e0, b[-16:])
    vs = []
    for x in var:
        l2 = lg.copy()
        x, _ = insert_lgkm(x, l2, where='xv', settle=120)
        x, _ = fix_hazards(x, e0[-20:-6])
        vs += x
    ej, _ = insert_lgkm(ej, l2, where='ej', settle=120)
    ej, n4 = fix_hazards(ej, vs[-14:])
    fix_hazards(qp, ej[-30:], insert=False, where='qphase(back)')
    sl = []
    for k in (0, 1, 2, 3, 'X'):
        x, _ = fix_hazards(slow(k)); sl += x
    if VERB:
        print(f'; nops: startup {n0} q {n1} pq {n2} epi {n3} ej {n4}', file=sys.stderr)
        print(f'; est cycles: q {est_cycles(qp)} pq {est_cycles(p)} body {est_cycles(b)} epi {est_cycles(e0)} xv {est_cycles(var[0])} ej {est_cycles(ej)}', file=sys.stderr)
        print(f'; body instrs {len(b)} waits {sum(1 for c in b if c.kind == "wait")}', file=sys.stderr)
    out = ['; @launch grid=(256,1,1) block=(256,1,1) lds=163840',
           '.amdgcn_target "amdgcn-amd-amdhsa--gfx950"', '.text', f'.globl {NAME}', '.p2align 8', f'.type {NAME},@function', f'{NAME}:']
    al = [I('.p2align 6')] if E('ALIGN', 0) else []
    for c in st + qp + p + al + b + sp + e0 + vs + ej + sl:
        out.append(c.text if c.kind == 'label' else '    ' + c.text)
    out.append('    s_endpgm')
    out += ['.section .rodata,"a"', '.p2align 6', f'.amdhsa_kernel {NAME}',
            '  .amdhsa_next_free_vgpr 512', '  .amdhsa_next_free_sgpr 102', '  .amdhsa_accum_offset 256',
            '  .amdhsa_group_segment_fixed_size 0', '  .amdhsa_kernarg_size 48', '  .amdhsa_user_sgpr_count 2',
            '  .amdhsa_user_sgpr_kernarg_segment_ptr 1', '  .amdhsa_system_sgpr_workgroup_id_x 1', '.end_amdhsa_kernel']
    print('\n'.join(out))


main()
```

```python
import os, sys, struct, math
sys.path.insert(0, os.path.dirname(os.path.abspath(__file__)))
from asmlib import *
import asmlib

E = lambda k, d: int(os.environ.get(k, d))
F = lambda k, d: float(os.environ.get(k, d))
STAMP = E('STAMP', 0)
CAP = F('CAP', 24.5); CAPS = F('CAPS', 9.5); BGCAP = F('BGCAP', 24.5)
DMAC = F('DMAC', 10)
SETTLE = E('SETTLE', 170)
VERB = E('VERB', 0)
FINE = E('FINE', 6)
BARW = E('BARW', 3)
DSP = E('DSP', 8)
LDP = os.environ.get('LDP', ' nt')
STP = os.environ.get('STP', ' nt')
NJ = 64
TIMEH = E('TIMEH', 1)
XP = [(0, 1), (0, 3), (1, 1), (1, 3)]

NAME = 'standalone__mha_softmax__near_ridge_kernel'
KA = 1; VA = 5; KX = 9; PXW = 11; PXR = 12; VOK = 13; VOV = 14; GX = 15
SA = [16, 48]; SB = [32, 64]; SX = 80; OX = 88
LA = [104, 106]; LB = [105, 107]; LX = 108; RX = 110; GO = 111; WA = 112; RA = 114; ST2 = 115
T = 116; U = 124
RAW = 224; QT = 240; QXR = 244; QR = 248; VQ = 252
RING = 224
sQ, sK, sV, sO = 4, 8, 12, 16
sW, sKb, sQb, sWb, sSo, sMask, sC, sLo, sRg, sStg, sOa, sOx, sQo = 20, 21, 22, 23, 24, 25, 26, 28, 29, 30, 31, 32, 33
sOh = 34
sFl = 36
sT = 48
sWS = 64
QXL = 0x20000; PXL = 0x22000; STG = 0x24000
f2u = lambda x: struct.unpack('<I', struct.pack('<f', x))[0]
CSC = f2u(math.log2(math.e) / math.sqrt(128.0))
LOB = f2u(2.0 ** -20); HIB = f2u(2.0 ** 30)
HK = 256 * 262144; HQ = 256 * 73728

v = lambda a, n=1: f'v{a}' if n == 1 else f'v[{a}:{a + n - 1}]'
a_ = lambda a, n=1: f'a{a}' if n == 1 else f'a[{a}:{a + n - 1}]'
s_ = lambda a, n=1: f's{a}' if n == 1 else f's[{a}:{a + n - 1}]'
def QAo(h, k): return v(128 + 4 * k, 4) if h == 0 else a_(128 + 4 * k, 4)
def QBo(h, k): return v(160 + 4 * k, 4) if h == 0 else a_(160 + 4 * k, 4)
def QXo(h, k): return v(192 + 4 * k, 4) if h == 0 else a_(192 + 4 * k, 4)
def OAo(h, d): return a_(16 * d, 16) if h == 0 else v(128 + 16 * d, 16)
def OBo(h, d): return a_(64 + 16 * d, 16) if h == 0 else v(192 + 16 * d, 16)

COST = {'valu': 4.65, 'trans': 8.7, 'salu': 1.5, 'wait': 1.0, 'barrier': 2.0, 'dsw': 6.0, 'vst': 8.0, 'dma': DMAC, 'smem': 2.0}


def J(text, **kw):
    x = I(text)
    if x.kind in COST: x.cost = COST[x.kind]
    if x.kind == 'dsr': x.cost = 4.5 if 'tr_b16' in x.op else 3.0
    if x.kind == 'smem': x.kind = 'salu'
    x.tag = kw.get('tag'); x.earliest = kw.get('earliest')
    x.info = kw
    return x


asmlib.I.__slots__


class I2(I):
    __slots__ = ('info', 'mlen')


def J(text, **kw):
    x = I2(text)
    if x.kind in COST: x.cost = COST[x.kind]
    if x.kind == 'dsr': x.cost = 4.5 if 'tr_b16' in x.op else 3.0
    if x.kind == 'smem': x.kind = 'salu'
    x.tag = kw.get('tag'); x.earliest = kw.get('earliest'); x.info = kw; x.mlen = 0
    if x.kind == 'mfma': x.mlen = 16 if '16x16' in x.op else 32
    if x.op.startswith('v_permlane16_swap'):
        r = set(sum([regs_of(t) for t in text.split(None, 1)[1].split(',')], [])); x.dst = r; x.src = r
    if x.op.startswith('v_writelane'): x.src = x.src | x.dst
    return x


def L(txt, **kw):
    return [J(x.strip(), **kw) for x in txt.strip().split('\n') if x.strip()]


def mfma(d, a, b, c): return J(f'v_mfma_f32_32x32x16_bf16 {d}, {a}, {b}, {c}')
def mfs(d, a, b, c): return J(f'v_mfma_f32_16x16x32_bf16 {d}, {a}, {b}, {c}')


def dma(voff, srd, soff, imm, name):
    o = f' offset:{imm}' if imm else ''
    return J(f'buffer_load_dwordx4 {v(voff)}, {s_(srd, 4)}, {s_(soff)} offen{o}{LDP} lds', name=name)


def blk(kind, idx):
    h, b = idx >> 5, idx & 31
    srd, vo, base = (sK, VOK, 0) if kind == 'K' else (sV, VOV, 0x10000)
    return [J(f's_add_u32 m0, s{sWb}, {base + (idx & 7) * 8192}'), J(f's_add_u32 s{sSo}, s{sKb}, {h * HK + b * 8192}'),
            dma(vo, srd, sSo, 0, (kind, idx)), dma(vo, srd, sSo, 2048, (kind, idx))]


def qxdma(h):
    return [J(f's_add_u32 m0, s{sWb}, {QXL}'), J(f's_add_u32 s{sSo}, s{sQb}, {h * HQ + 0x10000}'),
            dma(VOK, sQ, sSo, 0, ('QX', h)), dma(VOK, sQ, sSo, 2048, ('QX', h))]


def qdma(mreg, mimm, gimm, half, name):
    o = [J(f's_add_u32 s{sSo}, s{sQo}, {gimm}')]
    for i2 in range(2):
        o.append(J(f's_add_u32 m0, s{mreg}, {mimm + i2 * 4096 - half * 128}'))
        if i2: o.append(J('s_nop 0'))
        o += [dma(VQ + i2, sQ, sSo, half * 128, name), dma(VQ + i2, sQ, sSo, half * 128 + 2048, name)]
    o[0], o[1] = o[1], o[0]
    return o


def vwait(*names, lg=False, **kw):
    return J('s_waitcnt vmcnt(0)' + (' lgkmcnt(0)' if lg else ''), need=list(names), **kw)


def softmax(S, l, fresh, n=16):
    e = lambda r: J(f'v_exp_f32 {v(S + r)}, {v(S + r)}')
    def ad(r):
        if fresh and r == 0: return []
        return [J(f'v_add_f32 {v(l)}, {v(S) if (fresh and r == 1) else v(l)}, {v(S + r)}')]
    cv = lambda t: J(f'v_cvt_pk_bf16_f32 {v(S + t)}, {v(S + 2 * t)}, {v(S + 2 * t + 1)}')
    o = [e(0), e(1)] + ad(0)
    for r in range(2, n):
        o.append(e(r)); o += ad(r - 1)
        if n == 16 and r in (3, 5, 7, 9): o.append(cv((r - 3) // 2))
    o += ad(n - 1)
    if n == 4: o += [cv(0), cv(1)]
    return o


def smh(S, l, fresh):
    e = lambda r: J(f'v_exp_f32 {v(S + r)}, {v(S + r)}')
    def ad(r):
        if fresh and r == 0: return []
        return [J(f'v_add_f32 {v(l)}, {v(S) if (fresh and r == 1) else v(l)}, {v(S + r)}')]
    cv = lambda t: J(f'v_cvt_pk_bf16_f32 {v(S + t)}, {v(S + 2 * t)}, {v(S + 2 * t + 1)}')
    o = [e(0), e(1)] + ad(0)
    for r in range(2, 8):
        o.append(e(r)); o += ad(r - 1)
        if r in (3, 5, 7): o.append(cv((r - 3) // 2))
    o += ad(7) + [cv(3)]
    return o


def latecvt(S):
    return [J(f'v_cvt_pk_bf16_f32 {v(S + 8 + t)}, {v(S + 8 + 2 * t)}, {v(S + 8 + 2 * t + 1)}') for t in range(4)]


def scale(src, n, dst=None, pk=False, tmp=None):
    o = []
    if tmp is not None:
        for k in range(n):
            o += L(f'v_lshlrev_b32 v{tmp}, 16, v{src + k}\nv_and_b32 v{src + k}, s{sMask}, v{src + k}\nv_mul_f32 v{tmp}, s{sC}, v{tmp}\nv_mul_f32 v{src + k}, s{sC}, v{src + k}\nv_cvt_pk_bf16_f32 v{src + k}, v{tmp}, v{src + k}')
        return o
    for k0 in range(0, n, 2):
        ks = (k0, k0 + 1)
        for i, k in enumerate(ks): o.append(J(f'v_lshlrev_b32 v{QT + 2 * i}, 16, v{src + k}'))
        for i, k in enumerate(ks): o.append(J(f'v_and_b32 v{QT + 2 * i + 1}, s{sMask}, v{src + k}'))
        if pk:
            for i, k in enumerate(ks): o.append(J(f'v_pk_mul_f32 {v(QT + 2 * i, 2)}, {v(QT + 2 * i, 2)}, {s_(sC, 2)}'))
        else:
            for i in range(4): o.append(J(f'v_mul_f32 v{QT + i}, s{sC}, v{QT + i}'))
        for i, k in enumerate(ks): o.append(J(f'v_cvt_pk_bf16_f32 v{src + k}, v{QT + 2 * i}, v{QT + 2 * i + 1}'))
        if dst is not None:
            for i, k in enumerate(ks): o.append(J(f'v_accvgpr_write_b32 a{dst + k}, v{src + k}'))
    return o


def lfinal(l, fl):
    return L(f'''v_mov_b32 v{T}, v{l}
v_permlane32_swap_b32 v{l}, v{T}
v_add_f32 v{l}, v{l}, v{T}
v_subrev_u32 v{T}, s{sLo}, v{l}
v_cmp_lt_u32 {s_(fl, 2)}, s{sRg}, v{T}
v_rcp_f32 v{l}, v{l}''')


nst = [0]
def stamp_pre():
    return L('s_memtime s[98:99]\ns_memrealtime s[100:101]') if STAMP else []
def stamp_post():
    if not STAMP: return []
    k = nst[0]; nst[0] += 1
    return L(f'v_writelane_b32 v0, s98, {k}\nv_writelane_b32 v{ST2}, s100, {k}')
def stamp():
    return stamp_pre() + L('s_waitcnt lgkmcnt(0)') + stamp_post() if STAMP else []


def startup():
    o = L(f'''
s_cmp_ge_u32 s2, 256
s_cbranch_scc1 L_end
s_load_dwordx4 s[48:51], s[0:1], 0
s_load_dwordx4 s[52:55], s[0:1], 16
''')
    if STAMP: o += L(f's_load_dwordx2 s[56:57], s[0:1], 40\ns_memtime s[94:95]\ns_memrealtime s[96:97]')
    o += L(f'''
v_lshrrev_b32 v16, 6, v0
v_and_b32 v0, 63, v0
v_readfirstlane_b32 s{sW}, v16
v_lshrrev_b32 v17, 3, v0
v_and_b32 v18, 7, v0
v_and_b32 v19, 2, v17
v_lshlrev_b32 v19, 1, v19
v_xor_b32 v18, v18, v19
v_lshrrev_b32 v20, 2, v17
v_xor_b32 v20, v18, v20
v_lshlrev_b32 v17, 8, v17
v_lshl_add_u32 v{VQ}, v20, 4, v17
v_xor_b32 v{VQ + 1}, 32, v{VQ}
v_add_u32 v{VQ + 1}, 0x1000, v{VQ + 1}
s_lshr_b32 s58, s{sW}, 1
s_and_b32 s59, s{sW}, 1
s_lshl_b32 s60, s{sW}, 13
s_mul_i32 s{sQb}, s2, 73728
s_add_u32 s{sQo}, s{sQb}, s60
s_lshl_b32 s{sKb}, s2, 18
s_lshl_b32 s61, s58, 12
s_lshl_b32 s62, s59, 10
s_add_u32 s{sWb}, s61, s62
s_lshl_b32 s63, s59, 7
s_add_u32 s63, s63, s61
s_lshl_b32 s{sStg}, s58, 5
v_xor_b32 v{VOK}, s{sStg}, v{VQ}
v_add_u32 v{VOK}, s63, v{VOK}
v_lshl_add_u32 v{VOV}, v18, 4, v17
v_add_u32 v{VOV}, s63, v{VOV}
s_waitcnt lgkmcnt(0)
''')
    srd = lambda d, b, n: L(f's_mov_b32 s{d}, s{b}\ns_and_b32 s{d + 1}, s{b + 1}, 0xffff\ns_mov_b32 s{d + 2}, {n}\ns_mov_b32 s{d + 3}, 0x20000')
    o += srd(sQ, 48, 37748736)
    for half in range(2): o += qdma(60, 0x8000 + half * 1024, 0, half, ('QA', half))
    o += srd(sK, 50, 134217728) + srd(sV, 52, 134217728) + srd(sO, 54, 37748736)
    if STAMP: o += srd(sWS, 56, 0x100000)
    o += qxdma(0) + blk('K', 0) + blk('K', 1)
    for half in range(2): o += qdma(60, 0x18000 + half * 1024, 0x8000, half, ('QB', half))
    for k, i in (('V', 0), ('K', 2), ('K', 3), ('V', 1), ('V', 2)): o += blk(k, i)
    o += L(f'''
s_mov_b32 s{sMask}, 0xffff0000
s_mov_b32 s{sC}, {hex(CSC)}
s_mov_b32 s{sC + 1}, {hex(CSC)}
s_mov_b32 s{sLo}, {hex(LOB)}
s_mov_b32 s{sRg}, {hex(HIB - LOB)}
s_lshl_b32 s{sStg}, s58, 13
s_add_u32 s{sStg}, s{sStg}, s62
s_lshl_b32 s{sOa}, s58, 7
s_add_u32 s{sOa}, s{sOa}, s{sQo}
s_lshl_b32 s{sOx}, s{sW}, 6
s_add_u32 s{sOx}, s{sOx}, s{sQb}
v_and_b32 v16, 31, v0
v_lshrrev_b32 v17, 5, v0
v_lshrrev_b32 v18, 3, v16
v_lshlrev_b32 v18, 11, v18
v_and_b32 v19, 7, v16
v_lshl_add_u32 v18, v19, 7, v18
v_and_b32 v20, 2, v16
v_lshlrev_b32 v20, 1, v20
v_bfe_u32 v21, v16, 2, 1
v_xor_b32 v20, v20, v21
v_bfe_u32 v21, v16, 4, 1
v_lshl_add_u32 v21, v21, 1, v17
v_xor_b32 v22, v20, v21
v_lshl_add_u32 v{KA}, v22, 4, v18
v_xor_b32 v{KA + 1}, 32, v{KA}
v_xor_b32 v{KA + 2}, 64, v{KA}
v_xor_b32 v{KA + 3}, 0x60, v{KA}
''')
    for m in range(4): o += L(f'v_add_u32 v{QR + m}, s60, v{KA + m}')
    o += L(f'''
v_and_b32 v23, 0xfff, v18
v_lshl_add_u32 v23, v22, 4, v23
v_add_u32 v{QXR}, {QXL}, v23
v_xor_b32 v{QXR + 1}, 64, v{QXR}
v_xor_b32 v{QXR + 2}, 32, v{QXR}
v_xor_b32 v{QXR + 3}, 0x60, v{QXR}
s_lshl_b32 s48, s59, 5
s_lshl_b32 s49, s{sW}, 12
v_xor_b32 v23, s48, v23
v_add_u32 v{KX}, s49, v23
v_xor_b32 v{KX + 1}, 64, v{KX}
v_lshlrev_b32 v{GX}, 8, v16
v_lshl_add_u32 v{GX}, v17, 5, v{GX}
v_lshlrev_b32 v{PXR}, 4, v0
v_add_u32 v{PXR}, {PXL}, v{PXR}
v_and_b32 v23, 15, v0
v_bfe_u32 v24, v0, 4, 1
v_lshl_add_u32 v23, v24, 5, v23
v_lshlrev_b32 v23, 4, v23
v_lshl_add_u32 v23, v17, 3, v23
s_lshl_b32 s48, s{sW}, 10
s_add_u32 s48, s48, {PXL}
v_add_u32 v{PXW}, s48, v23
s_lshl_b32 s48, s59, 2
v_lshl_add_u32 v23, v17, 1, s48
v_xor_b32 v23, v23, v19
v_lshl_add_u32 v23, v23, 4, v18
s_add_u32 s48, s{sStg}, {STG}
v_add_u32 v{WA}, s48, v23
v_xor_b32 v{WA + 1}, 16, v{WA}
v_lshrrev_b32 v23, 3, v0
v_and_b32 v24, 7, v0
v_lshlrev_b32 v{GO}, 8, v23
v_lshl_add_u32 v{GO}, v24, 4, v{GO}
v_xor_b32 v24, v24, v23
v_lshlrev_b32 v23, 7, v23
v_lshl_add_u32 v23, v24, 4, v23
v_add_u32 v{RA}, s48, v23
''')
    o += L(f'''
v_bfe_u32 v16, v0, 2, 2
v_lshl_add_u32 v18, v17, 2, v16
v_lshlrev_b32 v18, 7, v18
v_lshrrev_b32 v16, 1, v16
v_lshl_add_u32 v18, v16, 6, v18
v_and_b32 v16, 1, v0
v_lshl_add_u32 v18, v16, 5, v18
v_bfe_u32 v16, v0, 4, 1
v_lshl_add_u32 v18, v16, 4, v18
v_bfe_u32 v16, v0, 1, 1
v_lshl_add_u32 v18, v16, 3, v18
s_lshl_b32 s48, s59, 6
s_lshl_b32 s49, s58, 10
s_add_u32 s48, s48, s49
s_add_u32 s48, s48, 0x10000
v_xor_b32 v{VA}, s48, v18
v_xor_b32 v{VA + 1}, 64, v{VA}
v_xor_b32 v{VA + 2}, 0x400, v{VA}
v_xor_b32 v{VA + 3}, 0x440, v{VA}
''')
    if STAMP: o += L(f'v_writelane_b32 v0, s94, 0\nv_writelane_b32 v{ST2}, s96, 0'); nst[0] = 1
    for half in range(2):
        o.append(vwait(('QA', half)))
        o += [J(f'ds_read_b128 {v(128 + 16 * half + 4 * m, 4)}, v{QR + m} offset:{0x8000 + half * 1024}') for m in range(4)]
        o += scale(128 + 16 * half, 16, pk=True)
    for m in range(4): o += L(f'v_add_u32 v{QR + m}, 0x10000, v{QR + m}')
    o += stamp()
    return o


class St:
    def __init__(self, name, ins, earliest=0, deadline=10 ** 9, after=None, bg=False):
        self.name = name; self.ins = list(ins); self.earliest = earliest; self.deadline = deadline
        self.pos = 0; self.after = after; self.bg = bg; self.lastg = -10 ** 9
    def done(self): return self.pos >= len(self.ins)


def isv(c): return c.kind in ('valu', 'trans')


def required_pad(prev, c):
    pr = [p for p in prev[-16:] if p.kind != 'label']
    pad = 0
    for i, p in enumerate(pr):
        n = need_states(p, c)
        if not n: continue
        if p.kind == 'mfma' and p.mlen == 16: n = {12: 8, 10: 6, 7: 3}[n]
        t = 0; free = (p.mlen // 4 - 1) if p.kind == 'mfma' else 0
        for q in pr[i + 1:]:
            if q.kind == 'mfma' and TIMEH:
                t = max(t, free - 1); free = t + q.mlen // 4
            t += q.states
        if n > t: pad = max(pad, n - t)
    return pad


def main_stream():
    M = []; frags = []; order = []
    def frag(rd):
        f = len(frags); r = RING + 4 * (f % 8)
        frags.append({'rd': rd(r), 'first': None, 'last': None}); order.append(('f', f))
        return f, a_(r, 4)
    def use(m, *fs):
        for f in fs:
            if frags[f]['first'] is None: frags[f]['first'] = len(M)
            frags[f]['last'] = len(M)
        M.append(m)
    kfr = lambda idx, ks: frag(lambda r: [J(f'ds_read_b128 {a_(r, 4)}, v{KA + (ks & 3)} offset:{(idx & 7) * 8192 + (ks >> 2) * 1024}')])
    kxfr = lambda idx, k4: frag(lambda r: [J(f'ds_read_b128 {a_(r, 4)}, v{KX + (k4 & 1)} offset:{(idx & 7) * 8192 + (k4 >> 1) * 1024}')])
    vfr = lambda idx, s, d: frag(lambda r: [J(f'ds_read_b64_tr_b16 {a_(r + 2 * u, 2)}, v{VA + d} offset:{(idx & 7) * 8192 + (2 * s + u) * 2048}') for u in range(2)])
    pxfr = lambda idx, s: frag(lambda r: [J(f'ds_read_b128 {a_(r, 4)}, v{PXR} offset:{((idx >> 1) & 1) * 4096 + (2 * (idx & 1) + s) * 1024}')])
    bars = {}
    def bar(key, need, lg, dmas=()):
        b = {'key': key, 'need': list(need), 'lg': lg, 'dmas': list(dmas)}; bars[key] = b; order.append(('bar', b))
    pos = {}
    def qx(idx, k4):
        h = idx >> 5
        f, A = kxfr(idx, k4)
        for t in range(2):
            use(mfs(v(SX + 4 * t, 4), A, QXo(h, 4 * t + k4), '0' if k4 == 0 else v(SX + 4 * t, 4)), f)
    bar('P', [('QX', 0), ('K', 0), ('K', 1)], True, [blk('K', 4), blk('K', 5), blk('V', 3)])
    for b in range(2):
        for ks in range(8):
            f, A = kfr(b, ks); use(mfma(v(SA[b], 16), A, QAo(0, ks), '0' if ks == 0 else v(SA[b], 16)), f)
        pos['pa', b] = len(M)
    pos['x0', 0] = len(M)
    for k4 in range(4): qx(0, k4)
    pos['x1', 0] = len(M)
    for ks in range(8):
        pos['pb', ks] = len(M)
        for b in range(2):
            f, A = kfr(b, ks); use(mfma(v(SB[b], 16), A, QBo(0, ks), '0' if ks == 0 else v(SB[b], 16)), f)
    ok = lambda l: [x for x in l if x[1] < NJ]
    for j in range(NJ):
        h = j >> 5; b = j & 1; first = (j & 31) == 0
        if b == 0:
            d = ok([('V', j + 6), ('K', j + 8), ('K', j + 9), ('V', j + 7)])
            if j == 0: d = [('V', 4), ('K', 6), ('K', 7), ('V', 5)] + d
            need = [('V', j)] if j < FINE else ok([('V', j), ('V', j + 1), ('K', j + 2), ('K', j + 3)])
            bar(j, need, True, [blk(*x) for x in d])
        elif j < FINE:
            bar(j, [('V', j)], False)
        pos['s', j] = len(M)
        seq = [(s, d) for s in range(2) for d in range(4)] if j < NJ - 1 else [(0, 0), (0, 1), (1, 0), (1, 1), (0, 2), (0, 3), (1, 2), (1, 3)]
        for s, d in seq:
            if d == 0: fp, P = pxfr(j, s)
            f, A = vfr(j, s, d)
            z = first and s == 0
            if (s, d) == (1, 0): pos['s1', j] = len(M)
            use(mfma(OAo(h, d), A, v(SA[b] + 8 * s, 4), '0' if z else OAo(h, d)), f)
            use(mfma(OBo(h, d), A, v(SB[b] + 8 * s, 4), '0' if z else OBo(h, d)), f)
            if d == 0:
                pos['px', j, s] = len(M)
                use(mfma(v(OX, 16), A, P, '0' if z else v(OX, 16)), f, fp)
            pos['od', j, d] = len(M)
            if b == 0 and j >= FINE and j + 2 < NJ and (s, d) in XP:
                if (s, d) == XP[0]: pos['x0', j + 2] = len(M)
                qx(j + 2, XP.index((s, d)))
                pos['x1', j + 2] = len(M)
        pos['q', j] = len(M)
        if j + 2 < NJ:
            h2 = (j + 2) >> 5
            if b == 0 and j < FINE: bar(j + 0.5, [('K', j + 2), ('K', j + 3)], False)
            for ks in range(8):
                f, A = kfr(j + 2, ks)
                use(mfma(v(SA[b], 16), A, QAo(h2, ks), '0' if ks == 0 else v(SA[b], 16)), f)
                use(mfma(v(SB[b], 16), A, QBo(h2, ks), '0' if ks == 0 else v(SB[b], 16)), f)
                if b == 0 and j < FINE and ks < 4:
                    if ks == 0: pos['x0', j + 2] = len(M)
                    qx(j + 2, ks)
                    pos['x1', j + 2] = len(M)
        pos['e', j] = len(M)
    n = len(M)
    QP = [2 + 6 * i for i in range(4)]
    for i, j in enumerate(QP):
        bars[j]['dmas'].insert(0 if j else 4, qdma(sStg, STG, HQ + (i >> 1) * 0x8000, i & 1, ('QN', i)))
        bars[j + 4]['need'].append(('QN', i))
    bars[4]['dmas'].append(qxdma(1)); bars[10]['need'].append(('QX', 1))
    gaps = [[] for _ in range(n + 1)]
    capg = lambda g: 1000 if g < 0 else (CAP if M[g].mlen == 32 else CAPS)
    items = []
    for kind, x in order:
        if kind == 'f':
            e = frags[x - 8]['last'] if x >= 8 else -1
            for r in frags[x]['rd']: items.append((r, e, 0, None))
        else:
            pre = stamp_pre() if (x['lg'] and isinstance(x['key'], int) and x['key'] % 4 == 0) else []
            e = x.get('earliest', -1)
            for r in pre: items.append((r, -1, BARW if r is pre[0] else 0, None))
            items.append((vwait(*x['need'], lg=x['lg']), -1, BARW if x['lg'] and not pre else 0, x))
            items.append((J('s_barrier'), -1, 0, None))
            if pre:
                for r in stamp_post(): items.append((r, -1, 0, None))
    ri = 0; lastg = -100
    for g in range(-1, n):
        k = 0; used = 0
        while ri < len(items):
            c, e, w, b = items[ri]
            if b is not None and b['key'] == 0: e = pos['pb', 5]
            if not (e <= g and lastg + w <= g and k < (8 if g < 0 else 2) and used + c.cost <= capg(g)): break
            gaps[g + 1].append(c); used += c.cost; c.tgap = g
            if b is not None: b['gap'] = g
            if c.kind == 'dsr': k += 1
            ri += 1; lastg = g
    assert ri == len(items)
    for f in frags:
        assert f['rd'][-1].tgap < f['first'], 'read placed after use'
    std = [b for b in bars.values() if b['lg']]
    for bi, b in enumerate(std):
        g0 = b['gap'] + 1; g1 = std[bi + 1]['gap'] - 1 if bi + 1 < len(std) else n - 1
        flat = []
        for grp in b['dmas']:
            pre = []
            for c in grp:
                if c.kind == 'nop': continue
                if c.kind == 'dma': flat.append((pre, c)); pre = []
                else: pre.append(c)
        if not flat: continue
        sp = min(DSP if b['key'] not in ('P', 0) else 2, (g1 - g0) / len(flat))
        assert sp >= 1.9, (b['key'], g0, g1, len(flat))
        gprev = g0 - 1
        for i, (pre, c) in enumerate(flat):
            g = max(g0 + 1 + int(i * sp), gprev + 2 if pre else gprev + 1)
            best = None
            for gg in range(g, min(g + 3, g1 + 1)):
                if M[gg].mlen != 32: continue
                u = sum(x.cost for x in gaps[gg + 1])
                if best is None or u < best[0] - 0.1: best = (u, gg)
            g = best[1]
            gaps[g][0:0] = pre if g - 1 > b['gap'] else []
            if g - 1 <= b['gap']: gaps[g].extend(pre)
            gaps[g + 1].insert(0, c); gprev = g
    S = []
    G = lambda key: bars[key]['gap']
    def smx(idx):
        fresh = (idx & 31) == 0
        o = softmax(SX, LX, fresh, 4) + softmax(SX + 4, LX + 1, fresh, 4)
        o += [J(f'ds_write_b64 v{PXW}, {v(SX + 4 * t, 2)} offset:{((idx >> 1) & 1) * 4096 + t * 256}') for t in range(2)]
        return o
    def qxread(dst): return [J(f'ds_read_b128 {v(dst + 4 * k, 4)}, v{QXR + 2 * (k >> 2) + (k & 1)} offset:{(k >> 2) * 4096 + ((k >> 1) & 1) * 1024}') for k in range(8)]
    def dly(l, d): l[0].info['delay'] = d; return l
    gaps[0] += qxread(192)
    sqx = St('qx0', scale(192, 32), 0, pos['x0', 0] - 1); S.append(sqx)
    sm = {}
    def addsm(j, e, d0, d1, tiles='AB', after=None):
        h1 = j >> 5; fr = (j & 31) == 0
        for nm, SS, LL in (('A', SA, LA), ('B', SB, LB)):
            if nm not in tiles: continue
            lo = St(f'sm{nm}{j}', smh(SS[j & 1], LL[h1], fr), e, d0, after=after); S.append(lo)
            hi = St(f'sh{nm}{j}', smh(SS[j & 1] + 8, LL[h1], False), e, d1, after=lo); S.append(hi)
            sm[nm, j] = hi
    addsm(0, pos['pa', 0], pos['pb', 0] - 1, pos['pb', 0] - 1, 'A', sqx)
    prev = S[-1]
    for ks in range(8):
        x = scale(160 + 4 * ks, 4)
        if ks & 3 == 0:
            half = ks >> 2
            x = [vwait(('QB', half))] + [J(f'ds_read_b128 {v(160 + 16 * half + 4 * m, 4)}, v{QR + m} offset:{0x8000 + half * 1024}') for m in range(4)] + x
            for c in x[:5]: c.earliest = pos['pb', ks] - 1
        if ks == 7: x += [J(f'v_add_u32 v{QR + m}, s{sT}, v{KA + m}') for m in range(4)]
        prev = St(f'qb{ks}', x, 0, pos['pb', ks] - 1, after=prev); S.append(prev)
    addsm(0, pos['pb', 7], pos['s', 0], pos['s1', 0] - 1, 'B')
    for j in range(NJ):
        b = j & 1
        if j + 1 < NJ: addsm(j + 1, pos['s', j] - 1, pos['e', j] - 2, pos['s1', j + 1] - 2)
        if b == 0:
            x = smx(j)
            if (j & 31) == 30:
                x += L(f'''v_permlane32_swap_b32 v{LX}, v{LX + 1}
v_subrev_u32 v{T + 1}, {PXL}, v{PXR}
v_add_f32 v{LX}, v{LX}, v{LX + 1}
v_and_b32 v{T + 2}, 0xf0, v{T + 1}
v_mov_b32 v{LX + 1}, v{LX}
v_lshrrev_b32 v{T + 3}, 1, v{T + 1}
v_and_b32 v{T + 3}, 0x100, v{T + 3}
v_permlane16_swap_b32 v{LX}, v{LX + 1}
v_add3_u32 v{T + 2}, v{T + 2}, v{T + 3}, s{sT + 1}
v_add_f32 v{LX}, v{LX}, v{LX + 1}
v_and_b32 v{T + 1}, 0x1f0, v{T + 1}
v_add_u32 v{T + 1}, {QXL}, v{T + 1}
ds_write_b32 v{T + 2}, v{LX}''')
            S.append(St(f'smx{j}', x, pos['x1', j], G(j) - 1))
    tail = []
    for h in range(2):
        j = 32 * h + 31
        x = [J(f'ds_read_b128 {v(T + 4, 4)}, v{T + 1}')] + dly(L(f'''v_add_f32 v{T + 4}, v{T + 4}, v{T + 5}
v_add_f32 v{T + 6}, v{T + 6}, v{T + 7}
v_add_f32 v{RX}, v{T + 4}, v{T + 6}
v_subrev_u32 v{T + 4}, s{sLo}, v{RX}
v_cmp_lt_u32 {s_(sFl + 6 * h + 4, 2)}, s{sRg}, v{T + 4}
v_rcp_f32 v{RX}, v{RX}'''), 6)
        srx = St(f'rx{h}', x, G(j - 1) + 1, pos['s', j] + 4); S.append(srx)
        x = [J(f'v_mul_f32 v{OX + k}, v{RX}, v{OX + k}') for k in range(16)]
        XO = T + 4 if h == 0 else OX
        x += [J(f'v_cvt_pk_bf16_f32 v{XO + k}, v{OX + 2 * k}, v{OX + 2 * k + 1}') for k in range(8)]
        x += L(f's_add_u32 s{sT + 2}, s{sOx}, {h * HQ + 0x10000}')
        x += [J(f'buffer_store_dwordx4 {v(XO + 4 * e, 4)}, v{GX}, {s_(sO, 4)}, s{sT + 2} offen offset:{16 * e}{STP}') for e in range(2)]
        sox = St(f'ox{h}', x, pos['px', j, 1] + 1, pos['px', j + 1, 0] - 1 if h == 0 else 10 ** 9, after=srx); S.append(sox)
        slf = St(f'lf{h}', lfinal(LA[h], sFl + 6 * h) + lfinal(LB[h], sFl + 6 * h + 2), pos['s1', j], 10 ** 9 if h == 0 else pos['s1', j] + 4, after=sox if h == 0 else None, bg=(h == 0))
        S.append(slf)
        if h == 0:
            prev = slf
            for p in range(4):
                tile, half = p >> 1, p & 1
                r = (LA, LB)[tile][0]; x = []
                for d in (2 * half, 2 * half + 1):
                    for e in range(2):
                        base = 64 * tile + 16 * d + 8 * e
                        x += [J(f'v_accvgpr_read_b32 v{T + k}, a{base + k}') for k in range(8)]
                        x += [J(f'v_mul_f32 v{T + k}, v{r}, v{T + k}') for k in range(8)]
                        x += [J(f'v_cvt_pk_bf16_f32 v{U + k}, v{T + 2 * k}, v{T + 2 * k + 1}') for k in range(4)]
                        x += [J(f'ds_write_b128 v{WA + e}, {v(U, 4)}')]
                    x += L(f'v_xor_b32 v{WA}, 64, v{WA}\nv_xor_b32 v{WA + 1}, 64, v{WA + 1}')
                rb = 64 * tile + 32 * half
                x += [J(f'ds_read_b128 {a_(rb + 4 * i, 4)}, v{RA} offset:{i * 2048}') for i in range(4)]
                sd = St(f'dr{p}', x, pos['q', j], G(38 + 6 * p), after=prev, bg=True); S.append(sd); prev = sd
                x = L(f's_xor_b32 s{sOh}, s{sOa}, {half * 128}\ns_add_u32 s{sOh}, s{sOh}, {tile * 0x8000}\ns_add_u32 s{sOh + 1}, s{sOh}, 0x1000')
                y = [J(f'buffer_store_dwordx4 {a_(rb + 4 * i, 4)}, v{GO}, {s_(sO, 4)}, s{sOh + (i >> 1)} offen offset:{(i & 1) * 2048}{STP}') for i in range(4)]
                for q in y: q.info['delay'] = 3
                y[0].info['delay'] = 8
                S.append(St(f'st{p}', x + y, 0, 10 ** 9, after=sd, bg=True))
            S[-1].deadline = G(58); slf.deadline = G(34)
            sreb = St('rebase', L(f'v_subrev_u32 v{WA}, {STG}, v{WA}\nv_subrev_u32 v{WA + 1}, {STG}, v{WA + 1}\nv_subrev_u32 v{RA}, {STG}, v{RA}\nv_xor_b32 v{U}, 64, v{WA}\nv_xor_b32 v{U + 1}, 64, v{WA + 1}'), G(58), G(60), after=sd)
            S.append(sreb)
    prev = None
    def qn(i):
        j = QP[i]
        x = [J(f'ds_read_b128 {v(RAW + 4 * m, 4)}, v{QR + m}') for m in range(4)]
        a = St(f'qnr{i}', x, G(j + 4) + 1, G(j + 6) - BARW, after=prev); S.append(a)
        b = St(f'qn{i}', dly(scale(RAW, 16, 128 + 16 * i), 6), 0, pos['q', 30] - 2, after=a, bg=True); S.append(b)
        return b
    for i in range(4):
        prev = qn(i)
        if i < 3: prev.deadline = G(QP[i + 1] + 6) - BARW - 4
    x = L(f'v_add_u32 v{U}, s{sT + 3}, v{PXR}') + [J(f'ds_read_b128 {v(T + 4 * k, 4)}, v{U} offset:{1024 * k}') for k in range(2)]
    x += dly(scale(T, 8, tmp=U + 1), 6) + [J(f'ds_write_b128 v{U}, {v(T + 4 * k, 4)} offset:{1024 * k}') for k in range(2)]
    S.append(St('qxs', x, G(10) + 1, G(16) - 1, bg=True))
    x = [J(c.text.replace('v[', 'a[', 1)) for c in qxread(192)]
    S.append(St('qxr', x, G(16) + 1, G(24) - 1, bg=True))
    j = NJ - 1
    fin = []
    for half in range(2):
        for tile in range(2):
            r = (LA, LB)[tile][1]; x = []; p = 2 * half + tile
            for d in (2 * half, 2 * half + 1):
                base = 128 + 64 * tile + 16 * d
                if half == 0:
                    x += [J(f'v_mul_f32 v{base + k}, v{r}, v{base + k}') for k in range(16)]
                else:
                    x += [J(f'v_pk_mul_f32 {v(base + 2 * k, 2)}, {v(base + 2 * k, 2)}, {v(r & ~1, 2)} op_sel:[0,{r & 1}] op_sel_hi:[1,{r & 1}]') for k in range(8)]
                for e in range(2):
                    x += [J(f'v_cvt_pk_bf16_f32 v{base + 4 * e + k}, v{base + 8 * e + 2 * k}, v{base + 8 * e + 2 * k + 1}') for k in range(4)]
                    x += [J(f'ds_write_b128 v{(WA if d & 1 == 0 else U) + e}, {v(base + 4 * e, 4)} offset:{p * 16384}')]
            rb = 16 * p
            x += [J(f'ds_read_b128 {a_(rb + 4 * i, 4)}, v{RA} offset:{p * 16384 + i * 2048}') for i in range(4)]
            y = L(f's_xor_b32 s{sT + 4 + 2 * p}, s{sOa}, {half * 128}\ns_add_u32 s{sT + 4 + 2 * p}, s{sT + 4 + 2 * p}, {HQ + tile * 0x8000}\ns_add_u32 s{sT + 5 + 2 * p}, s{sT + 4 + 2 * p}, 0x1000')
            z = [J(f'buffer_store_dwordx4 {a_(rb + 4 * i, 4)}, v{GO}, {s_(sO, 4)}, s{sT + 4 + 2 * p + (i >> 1)} offen offset:{(i & 1) * 2048}{STP}') for i in range(4)]
            fin.append((x, y, z))
    S.append(St('fsal', sum([f[1] for f in fin], []), G(60), G(62)))
    seq = list(fin[0][0])
    for p in range(1, 4):
        x = fin[p][0]; k = 12
        seq += x[:k]
        for q in fin[p - 1][2]:
            seq.append(q); seq += x[k:k + 3]; k += 3
        seq += x[k:]
    seq += fin[3][2]
    nhalf0 = len(fin[0][0]) + len(fin[1][0]) + 4
    for c in seq[nhalf0:]: c.earliest = n
    sfin = St('fin', seq, pos['od', j, 1], 10 ** 9, after=sox); S.append(sfin)
    sox.after = slf; sox.deadline = 10 ** 8
    return M, gaps, S, pos, bars


def schedule2(M, gaps, S, prefix, lg):
    n = len(M)
    seq = list(gaps[0])
    for g in range(n): seq.append(M[g]); seq += gaps[g + 1]
    seq1 = lgk(seq, lg.copy())
    res = [0.0] * (n + 1); g = 0
    for c in seq1:
        if c.kind == 'mfma': g += 1
        elif c.tag == 'autowait': res[g] += COST['wait']
    out = []; hist = list(prefix); rep = []
    S = sorted(S, key=lambda s: s.earliest)
    act = []; si = 0
    pend = list(S)
    for g in range(-1, n):
        if g >= 0: out.append(M[g]); hist.append(M[g])
        for c in gaps[g + 1]: out.append(c); hist.append(c)
        used = sum(c.cost for c in gaps[g + 1]) + res[g + 1]
        nds = sum(1 for c in gaps[g + 1] if c.kind in ('dsr', 'dsw', 'dma', 'vst'))
        cap = 0 if g < 0 else (CAP if M[g].mlen == 32 else CAPS)
        bcap = 0 if g < 0 else (BGCAP if M[g].mlen == 32 else CAPS)
        while si < len(pend) and pend[si].earliest <= g: act.append(pend[si]); si += 1
        act = [s for s in act if not s.done()]
        nval = 0
        nxt = M[g + 1] if g + 1 < n else None
        while True:
            cand = []
            for s in act:
                if s.done() or (s.after is not None and not s.after.done()): continue
                c = s.ins[s.pos]
                if c.earliest is not None and c.earliest > g: continue
                force = s.deadline <= g
                ref = s.lastg if s.pos else (s.after.lastg if s.after is not None else -10 ** 9)
                if not force and ref + c.info.get('delay', 0) > g: continue
                if not isv(c) and c.kind != 'salu' and not force:
                    if nval > 0 or nds >= 2: continue
                    pr = -1
                else: pr = 0
                cand.append((pr, s.bg and not force, s.deadline, s, c, force))
            cand.sort(key=lambda x: x[:3])
            pick = None
            for pr, bg, dl, s, c, force in cand:
                if (used + c.cost <= (bcap if bg else cap) or force) and (required_pad(hist, c) == 0):
                    pick = (s, c); break
            if pick is None:
                fl = [x for x in cand if x[5]]
                if fl:
                    s, c = fl[0][3], fl[0][4]
                    p = J(f's_nop {required_pad(hist, c) - 1}'); out.append(p); hist.append(p); used += p.cost
                    continue
                break
            s, c = pick; s.pos += 1; s.lastg = g
            out.append(c); hist.append(c); used += c.cost
            if isv(c): nval += 1
            elif c.kind != 'salu': nds += 1
        for s in act:
            if s.deadline <= g and not s.done():
                raise RuntimeError(f'stream {s.name} missed deadline {s.deadline} at gap {g}, left {len(s.ins) - s.pos}, after {s.after.name if s.after else None}')
        rep.append(used)
        hist = hist[-24:]
    left = [s for s in S if not s.done()]
    if VERB: print('; flushed:', [(s.name, len(s.ins) - s.pos) for s in left], file=sys.stderr)
    left.sort(key=lambda s: s.deadline)
    for s in left:
        assert s.after is None or s.after.done()
        out += s.ins[s.pos:]; s.pos = len(s.ins)
    return out, rep


def lgk(seq, state, insert=True):
    out = []; t = 0; pipe = 0; q = state.q
    for c in seq:
        if c.kind == 'label': out.append(c); continue
        if c.kind == 'wait':
            k = parse_wait(c.text)
            if k is not None: del q[:max(0, len(q) - k)]
        else:
            touch = c.src | c.dst
            k = -1
            for idx, (regs, ti) in enumerate(q):
                if regs & touch and not (c.kind == 'dsr' and not (regs & c.src)): k = idx
            if len(q) >= 15 and c.kind in ('dsr', 'dsw'): k = max(k, 0)
            if k >= 0:
                assert insert, c.text
                while k + 1 < len(q) and t - q[k + 1][1] >= SETTLE: k += 1
                w = J(f's_waitcnt lgkmcnt({len(q) - 1 - k})', tag='autowait'); w.info['age'] = t - q[k][1]
                out.append(w); del q[:k + 1]
        if c.kind == 'mfma':
            t = max(t, pipe); pipe = t + c.mlen
        if c.kind in ('dsr', 'dsw'): q.append((set(c.dst), t))
        t += c.cost
        out.append(c)
    state.t = max(t, pipe)
    return out


def vmfix(seq):
    ops = []
    for c in seq:
        if c.kind in ('dma', 'vst', 'vld'): ops.append(c.info.get('name'))
        elif c.kind == 'wait' and 'need' in c.info:
            k = -1
            for nm in c.info['need']:
                idx = [i for i, x in enumerate(ops) if x == nm]
                assert len(idx) in (2, 4), (nm, idx)
                k = max(k, idx[-1])
            nn = len(ops) - 1 - k
            assert nn <= 63
            c.text = c.text.replace('vmcnt(0)', f'vmcnt({nn})') if k >= 0 else c.text.replace('vmcnt(0) ', '')
            c.info['n'] = nn


def ending():
    o = []
    if STAMP:
        o += L('s_waitcnt vmcnt(0)') + stamp()
        o += L(f'''
v_mov_b32 v16, s96
v_mov_b32 v17, s97
v_mov_b32 v18, s100
v_mov_b32 v19, s101
s_lshl_b32 s48, s2, 6
s_lshl_b32 s49, s{sW}, 4
s_add_u32 s48, s48, s49
v_mov_b32 v20, 0
v_mov_b32 v{ST2 - 1}, v0
v_subrev_u32 v21, {PXL}, v{PXR}
v_lshrrev_b32 v21, 1, v21
s_lshl_b32 s49, s48, 5
s_add_u32 s49, s49, 0x40000
buffer_store_dwordx2 {v(ST2 - 1, 2)}, v21, {s_(sWS, 4)}, s49 offen
s_mov_b64 exec, 1
buffer_store_dwordx4 v[16:19], v20, {s_(sWS, 4)}, s48 offen
s_mov_b64 exec, -1
''')
    o += L(f's_mov_b32 s{sT}, 0')
    for t in range(6):
        o += L(f's_cmp_lg_u64 {s_(sFl + 2 * t, 2)}, 0\ns_cselect_b32 s{sT + 1}, {1 << t}, 0\ns_or_b32 s{sT}, s{sT}, s{sT + 1}')
    o += L('s_cbranch_scc1 L_slow\nL_end:\ns_endpgm')
    return o


def slow():
    sF = sT; sB = sT + 1; sR = sT + 2; sKV = sT + 3; sI = sT + 4; sM = sT + 5; sX = sT + 6; sP = sT + 7
    LN = 1; VO = 2; VAs = 3; VD = 5; m = 6; l = 7; t = 8; Q = 128; O = 160; KF = 16; S = 48; VF = 64
    o = L(f'''
L_slow:
s_waitcnt vmcnt(0) lgkmcnt(0)
s_and_b32 s{sB}, s{sF}, 0x24
s_cbranch_scc0 L_sl1
s_barrier
s_cmp_eq_u32 s{sW}, 0
s_cbranch_scc1 L_sl1
s_and_b32 s{sF}, s{sF}, 0x1b
s_cbranch_scc0 L_end
L_sl1:
v_subrev_u32 v{LN}, {PXL}, v{PXR}
v_lshrrev_b32 v{LN}, 4, v{LN}
v_and_b32 v{VO}, 31, v{LN}
v_lshrrev_b32 v{t}, 5, v{LN}
v_lshlrev_b32 v{VO}, 8, v{VO}
v_lshl_add_u32 v{VO}, v{t}, 4, v{VO}
s_lshl_b32 s{sX}, s{sW}, 6
s_and_b32 s{sX}, s{sX}, 64
s_lshl_b32 s{sM}, s{sW}, 9
s_and_b32 s{sM}, s{sM}, 0x400
s_add_u32 s{sX}, s{sX}, s{sM}
s_add_u32 s{sX}, s{sX}, 0x10000
v_xor_b32 v{VAs}, s{sX}, v{VA}
s_lshl_b32 s{sX}, s{sW}, 7
s_and_b32 s{sX}, s{sX}, 128
s_lshl_b32 s{sM}, s{sW}, 11
s_and_b32 s{sM}, s{sM}, 0x1000
s_add_u32 s{sX}, s{sX}, s{sM}
v_subrev_u32 v{VD}, s{sX}, v{VOV}
s_lshl_b32 s{sP}, s{sW}, 13
s_add_u32 s{sP}, s{sP}, 0x10000
v_add_u32 v{VAs}, s{sP}, v{VAs}
v_xor_b32 v{VAs + 1}, 64, v{VAs}
L_sl2:
s_ff1_i32_b32 s{sB}, s{sF}
s_bitset0_b32 s{sF}, s{sB}
s_cmp_ge_u32 s{sB}, 3
s_cselect_b32 s{sR}, {HQ}, 0
s_cselect_b32 s{sKV}, {HK}, 0
s_cselect_b32 s{sM}, 3, 0
s_sub_u32 s{sB}, s{sB}, s{sM}
s_add_u32 s{sKV}, s{sKV}, s{sKb}
s_cmp_eq_u32 s{sB}, 2
s_cselect_b32 s{sM}, s{sQb}, s{sQo}
s_add_u32 s{sR}, s{sR}, s{sM}
s_lshl_b32 s{sB}, s{sB}, 15
s_add_u32 s{sR}, s{sR}, s{sB}
''')
    o += [J(f'buffer_load_dwordx4 {v(Q + 4 * k, 4)}, v{VO}, {s_(sQ, 4)}, s{sR} offen offset:{32 * k}') for k in range(8)]
    o += [J(f'v_mov_b32 v{O + k}, 0') for k in range(64)]
    o += L(f'v_mov_b32 v{m}, 0xff800000\nv_mov_b32 v{l}, 0\ns_mov_b32 s{sI}, 0\ns_waitcnt vmcnt(0)')
    o += scale(Q, 32)
    o += L('L_sl3:')
    o += [J(f'buffer_load_dwordx4 {v(KF + 4 * k, 4)}, v{VO}, {s_(sK, 4)}, s{sKV} offen offset:{32 * k}') for k in range(8)]
    for w in range(4):
        o += L(f's_add_u32 m0, s{sP}, {(w >> 1) * 4096 + (w & 1) * 1024}\ns_add_u32 s{sM}, s{sKV}, {(w >> 1) * 4096 + (w & 1) * 128}')
        o += [dma(VD, sV, sM, 0, None), dma(VD, sV, sM, 2048, None)]
    o += L('s_waitcnt vmcnt(0)')
    o += [mfma(v(S, 16), v(KF + 4 * k, 4), v(Q + 4 * k, 4), '0' if k == 0 else v(S, 16)) for k in range(8)]
    for s in range(2):
        for d in range(4):
            o += [J(f'ds_read_b64_tr_b16 {v(VF + 16 * s + 4 * d + 2 * u, 2)}, v{VAs + (d & 1)} offset:{(2 * s + u) * 2048 + (d >> 1) * 1024}') for u in range(2)]
        o += L('s_waitcnt lgkmcnt(0)')
    o += L(f'v_max3_f32 v{t}, v{S}, v{S + 1}, v{m}')
    o += [J(f'v_max3_f32 v{t}, v{t}, v{S + 2 * k}, v{S + 2 * k + 1}') for k in range(1, 8)]
    o += L(f'''v_mov_b32 v{t + 1}, v{t}
v_permlane32_swap_b32 v{t}, v{t + 1}
v_max_f32 v{t}, v{t}, v{t + 1}
v_sub_f32 v{t + 1}, v{m}, v{t}
v_mov_b32 v{m}, v{t}
v_exp_f32 v{t + 1}, v{t + 1}''')
    o += [J(f'v_sub_f32 v{S + k}, v{S + k}, v{m}') for k in range(16)]
    o += L(f'v_mul_f32 v{l}, v{l}, v{t + 1}')
    o += [J(f'v_mul_f32 v{O + k}, v{O + k}, v{t + 1}') for k in range(64)]
    o += softmax(S, l, False) + latecvt(S)
    for s in range(2):
        for d in range(4):
            o.append(mfma(v(O + 16 * d, 16), v(VF + 16 * s + 4 * d, 4), v(S + 8 * s, 4), v(O + 16 * d, 16)))
    o += L(f'''s_nop 15
s_add_u32 s{sKV}, s{sKV}, 0x2000
s_add_u32 s{sI}, s{sI}, 1
s_cmp_lt_u32 s{sI}, 32
s_cbranch_scc1 L_sl3
v_mov_b32 v{t}, v{l}
v_permlane32_swap_b32 v{l}, v{t}
v_add_f32 v{l}, v{l}, v{t}
v_rcp_f32 v{l}, v{l}''')
    o += [J(f'v_mul_f32 v{O + k}, v{O + k}, v{l}') for k in range(64)]
    o += [J(f'v_cvt_pk_bf16_f32 v{O + k}, v{O + 2 * k}, v{O + 2 * k + 1}') for k in range(32)]
    o += [J(f'buffer_store_dwordx4 {v(O + 4 * k, 4)}, v{GX}, {s_(sO, 4)}, s{sR} offen offset:{64 * (k >> 1) + 16 * (k & 1)}') for k in range(8)]
    o += L(f's_waitcnt vmcnt(0)\ns_cmp_lg_u32 s{sF}, 0\ns_cbranch_scc1 L_sl2\ns_endpgm')
    return o


def fixh(seq, prefix=()):
    out = list(prefix); n0 = len(out); cnt = 0
    for c in seq:
        if c.kind != 'label':
            pad = required_pad(out[-24:], c)
            if pad: out.append(J(f's_nop {pad - 1}')); cnt += 1
        out.append(c)
    return out[n0:], cnt


def main():
    st = startup()
    st += L(f's_add_u32 s{sT}, s{sStg}, {STG}\ns_lshl_b32 s{sT + 1}, s{sW}, 2\ns_add_u32 s{sT + 1}, s{sT + 1}, {QXL}\ns_lshl_b32 s{sT + 3}, s{sW}, 11\ns_sub_u32 s{sT + 3}, s{sT + 3}, {PXL - QXL}')
    M, gaps, S, pos, bars = main_stream()
    body, rep = schedule2(M, gaps, S, st[-20:], Lgkm())
    lg = Lgkm()
    allc = lgk(st + body + ending(), lg)
    allc, nn = fixh(allc)
    vmfix(allc)
    sl, _ = fixh(slow())
    if VERB:
        for j in range(NJ):
            r = rep[pos['s', j] + 1:pos['e', j] + 1]
            over = sum(max(0, x - (M[pos['s', j] + i].mlen - 8)) for i, x in enumerate(r))
            print(f'; step{j} over {over:.0f} fill', ' '.join('%d' % x for x in r), file=sys.stderr)
        print('; prologue fill', ' '.join('%d' % x for x in rep[:pos['s', 0] + 1]), file=sys.stderr)
        print('; bars', [(k, b['gap']) for k, b in bars.items()], file=sys.stderr)
        print('; vm', [(c.info['need'][:1], c.info['n']) for c in allc if c.kind == 'wait' and 'need' in c.info], file=sys.stderr)
        print(f'; nops {nn} instrs {len(allc)} waits {sum(1 for c in allc if c.kind == "wait")} est cycles {lg.t:.0f}', file=sys.stderr)
        print('; young waits', sorted([int(c.info['age']) for c in allc if c.tag == 'autowait'])[:60], file=sys.stderr)
        print('; stream ends', [(s.name, s.lastg) for s in S if s.bg], file=sys.stderr)
    out = ['; @launch grid=(256,1,1) block=(256,1,1) lds=163840',
           '.amdgcn_target "amdgcn-amd-amdhsa--gfx950"', '.text', f'.globl {NAME}', '.p2align 8', f'.type {NAME},@function', f'{NAME}:']
    for c in allc + sl: out.append(c.text)
    out += ['.section .rodata,"a"', '.p2align 6', f'.amdhsa_kernel {NAME}',
            '  .amdhsa_next_free_vgpr 512', '  .amdhsa_next_free_sgpr 102', '  .amdhsa_accum_offset 256',
            '  .amdhsa_group_segment_fixed_size 0', '  .amdhsa_kernarg_size 48', '  .amdhsa_user_sgpr_count 2',
            '  .amdhsa_user_sgpr_kernarg_segment_ptr 1', '  .amdhsa_system_sgpr_workgroup_id_x 1', '.end_amdhsa_kernel']
    print('\n'.join(out))


main()
```

```python
import os, sys, struct, math
sys.path.insert(0, os.path.dirname(os.path.abspath(__file__)))
from asmlib import *
import asmlib

E = lambda k, d: int(os.environ.get(k, d))
F = lambda k, d: float(os.environ.get(k, d))
STAMP = E('STAMP', 0)
CAP = F('CAP', 24.5); CAPS = F('CAPS', 9.5); BGCAP = F('BGCAP', 24.5)
DMAC = F('DMAC', 10)
SETTLE = E('SETTLE', 170)
VERB = E('VERB', 0)
FINE = E('FINE', 6)
BARW = E('BARW', 3)
DSP = E('DSP', 8)
LDP = os.environ.get('LDP', ' nt')
STP = os.environ.get('STP', ' nt')
NJ = 64
QD = [int(x) for x in os.environ.get('QD', '8,8,8,8,8,8,8,8,8,8,8,8').split(',')]
Q0 = E('Q0', 1); QW = E('QW', 0); QOFF = E('QOFF', 20)
QI = os.environ.get('QI', 'S,P,0,2,4,6').split(',')
RAMP = [int(x) for x in os.environ.get('RAMP', '0').split(',')]
LA0 = E('LA0', 6); LAJ = E('LAJ', 0)
LAF = lambda j: LA0 if j < LAJ else 6
TIMEH = E('TIMEH', 1)
XP = [(0, 1), (0, 3), (1, 1), (1, 3)]

NAME = 'standalone__mha_softmax__near_ridge_kernel'
KA = 1; VA = 5; KX = 9; PXW = 11; PXR = 12; VOK = 13; VOV = 14; GX = 15
SA = [16, 48]; SB = [32, 64]; SX = 80; OX = 88
LA = [104, 106]; LB = [105, 107]; LX = 108; RX = 110; GO = 111; WA = 112; RA = 114; ST2 = 115
T = 116; U = 124
RAW = 224; QT = 240; QXR = 244; QR = 248; VQ = 252; QNA = 254; QNX = 255
RING = 224
sQ, sK, sV, sO = 4, 8, 12, 16
sW, sKb, sQb, sWb, sSo, sMask, sC, sLo, sRg, sStg, sOa, sOx, sQo = 20, 21, 22, 23, 24, 25, 26, 28, 29, 30, 31, 32, 33
sOh = 34
sFl = 36
sT = 48
sWS = 64
QXL = 0x20000; PXL = 0x22000; STG = 0x24000
f2u = lambda x: struct.unpack('<I', struct.pack('<f', x))[0]
CSC = f2u(math.log2(math.e) / math.sqrt(128.0))
LOB = f2u(2.0 ** -20); HIB = f2u(2.0 ** 30)
ADJ = E('ADJ', 0)
HK = 256 * 262144; HQ = 256 * 73728
if ADJ: HK = 262144; HQ = 73728

v = lambda a, n=1: f'v{a}' if n == 1 else f'v[{a}:{a + n - 1}]'
a_ = lambda a, n=1: f'a{a}' if n == 1 else f'a[{a}:{a + n - 1}]'
s_ = lambda a, n=1: f's{a}' if n == 1 else f's[{a}:{a + n - 1}]'
def QAo(h, k): return v(128 + 4 * k, 4) if h == 0 else a_(128 + 4 * k, 4)
def QBo(h, k): return v(160 + 4 * k, 4) if h == 0 else a_(160 + 4 * k, 4)
def QXo(h, k): return v(192 + 4 * k, 4) if h == 0 else a_(192 + 4 * k, 4)
def OAo(h, d): return a_(16 * d, 16) if h == 0 else v(128 + 16 * d, 16)
def OBo(h, d): return a_(64 + 16 * d, 16) if h == 0 else v(192 + 16 * d, 16)

COST = {'valu': 4.65, 'trans': 8.7, 'salu': 1.5, 'wait': 1.0, 'barrier': 2.0, 'dsw': 6.0, 'vst': 8.0, 'dma': DMAC, 'smem': 2.0, 'vld': DMAC}


def J(text, **kw):
    x = I(text)
    if x.kind in COST: x.cost = COST[x.kind]
    if x.kind == 'dsr': x.cost = 4.5 if 'tr_b16' in x.op else 3.0
    if x.kind == 'smem': x.kind = 'salu'
    x.tag = kw.get('tag'); x.earliest = kw.get('earliest')
    x.info = kw
    return x


asmlib.I.__slots__


class I2(I):
    __slots__ = ('info', 'mlen')


def J(text, **kw):
    x = I2(text)
    if x.kind in COST: x.cost = COST[x.kind]
    if x.kind == 'dsr': x.cost = 4.5 if 'tr_b16' in x.op else 3.0
    if x.kind == 'smem': x.kind = 'salu'
    x.tag = kw.get('tag'); x.earliest = kw.get('earliest'); x.info = kw; x.mlen = 0
    if x.kind == 'mfma': x.mlen = 16 if '16x16' in x.op else 32
    if x.op.startswith('v_permlane16_swap'):
        r = set(sum([regs_of(t) for t in text.split(None, 1)[1].split(',')], [])); x.dst = r; x.src = r
    if x.op.startswith('v_writelane'): x.src = x.src | x.dst
    return x


def L(txt, **kw):
    return [J(x.strip(), **kw) for x in txt.strip().split('\n') if x.strip()]


def mfma(d, a, b, c): return J(f'v_mfma_f32_32x32x16_bf16 {d}, {a}, {b}, {c}')
def mfs(d, a, b, c): return J(f'v_mfma_f32_16x16x32_bf16 {d}, {a}, {b}, {c}')


def dma(voff, srd, soff, imm, name):
    o = f' offset:{imm}' if imm else ''
    return J(f'buffer_load_dwordx4 {v(voff)}, {s_(srd, 4)}, {s_(soff)} offen{o}{LDP} lds', name=name)


def blk(kind, idx):
    h, b = idx >> 5, idx & 31
    srd, vo, base = (sK, VOK, 0) if kind == 'K' else (sV, VOV, 0x10000)
    return [J(f's_add_u32 m0, s{sWb}, {base + (idx & 7) * 8192}'), J(f's_add_u32 s{sSo}, s{sKb}, {h * HK + b * 8192}'),
            dma(vo, srd, sSo, 0, (kind, idx)), dma(vo, srd, sSo, 2048, (kind, idx))]


def qxdma(h):
    return [J(f's_add_u32 m0, s{sWb}, {QXL}'), J(f's_add_u32 s{sSo}, s{sQb}, {h * HQ + 0x10000}'),
            dma(VOK, sQ, sSo, 0, ('QX', h)), dma(VOK, sQ, sSo, 2048, ('QX', h))]


def qdma(mreg, mimm, gimm, half, name):
    o = [J(f's_add_u32 s{sSo}, s{sQo}, {gimm}')]
    for i2 in range(2):
        o.append(J(f's_add_u32 m0, s{mreg}, {mimm + i2 * 4096 - half * 128}'))
        if i2: o.append(J('s_nop 0'))
        o += [dma(VQ + i2, sQ, sSo, half * 128, name), dma(VQ + i2, sQ, sSo, half * 128 + 2048, name)]
    o[0], o[1] = o[1], o[0]
    return o


def qnld(c):
    if c < 4:
        o = [J(f's_add_u32 s{sSo}, s{sQo}, {HQ + (c >> 1) * 0x8000 + (c & 1) * 128}')]
        o += [J(f'buffer_load_dwordx4 {a_(128 + 16 * c + 4 * k, 4)}, v{QNA}, {s_(sQ, 4)}, s{sSo} offen offset:{32 * k}{LDP}', name=('QN', c)) for k in range(4)]
    else:
        o = [J(f's_add_u32 s{sSo}, s{sQb}, {HQ + 0x10000 + (c & 1) * 4096}')]
        o += [J(f'buffer_load_dwordx4 {a_(128 + 16 * c + 4 * k, 4)}, v{QNX}, {s_(sQ, 4)}, s{sSo} offen offset:{64 * k}{LDP}', name=('QN', c)) for k in range(4)]
    return o


def ascale(r0, n):
    o = []
    for k0 in range(0, n, 2):
        t = RAW + 6 * ((k0 >> 1) & 1)
        for i in range(2): o.append(J(f'v_accvgpr_read_b32 v{t + 4 + i}, a{r0 + k0 + i}'))
        for i in range(2): o.append(J(f'v_lshlrev_b32 v{t + 2 * i}, 16, v{t + 4 + i}'))
        for i in range(2): o.append(J(f'v_and_b32 v{t + 2 * i + 1}, s{sMask}, v{t + 4 + i}'))
        for i in range(4): o.append(J(f'v_mul_f32 v{t + i}, s{sC}, v{t + i}'))
        for i in range(2): o.append(J(f'v_cvt_pk_bf16_f32 v{t + 4 + i}, v{t + 2 * i}, v{t + 2 * i + 1}'))
        for i in range(2): o.append(J(f'v_accvgpr_write_b32 a{r0 + k0 + i}, v{t + 4 + i}'))
    return o


def vwait(*names, lg=False, **kw):
    return J('s_waitcnt vmcnt(0)' + (' lgkmcnt(0)' if lg else ''), need=list(names), **kw)


def softmax(S, l, fresh, n=16):
    e = lambda r: J(f'v_exp_f32 {v(S + r)}, {v(S + r)}')
    def ad(r):
        if fresh and r == 0: return []
        return [J(f'v_add_f32 {v(l)}, {v(S) if (fresh and r == 1) else v(l)}, {v(S + r)}')]
    cv = lambda t: J(f'v_cvt_pk_bf16_f32 {v(S + t)}, {v(S + 2 * t)}, {v(S + 2 * t + 1)}')
    o = [e(0), e(1)] + ad(0)
    for r in range(2, n):
        o.append(e(r)); o += ad(r - 1)
        if n == 16 and r in (3, 5, 7, 9): o.append(cv((r - 3) // 2))
    o += ad(n - 1)
    if n == 4: o += [cv(0), cv(1)]
    return o


def smh(S, l, fresh):
    e = lambda r: J(f'v_exp_f32 {v(S + r)}, {v(S + r)}')
    def ad(r):
        if fresh and r == 0: return []
        return [J(f'v_add_f32 {v(l)}, {v(S) if (fresh and r == 1) else v(l)}, {v(S + r)}')]
    cv = lambda t: J(f'v_cvt_pk_bf16_f32 {v(S + t)}, {v(S + 2 * t)}, {v(S + 2 * t + 1)}')
    o = [e(0), e(1)] + ad(0)
    for r in range(2, 8):
        o.append(e(r)); o += ad(r - 1)
        if r in (3, 5, 7): o.append(cv((r - 3) // 2))
    o += ad(7) + [cv(3)]
    return o


def latecvt(S):
    return [J(f'v_cvt_pk_bf16_f32 {v(S + 8 + t)}, {v(S + 8 + 2 * t)}, {v(S + 8 + 2 * t + 1)}') for t in range(4)]


def scale(src, n, dst=None, pk=False, tmp=None):
    o = []
    if tmp is not None:
        for k in range(n):
            o += L(f'v_lshlrev_b32 v{tmp}, 16, v{src + k}\nv_and_b32 v{src + k}, s{sMask}, v{src + k}\nv_mul_f32 v{tmp}, s{sC}, v{tmp}\nv_mul_f32 v{src + k}, s{sC}, v{src + k}\nv_cvt_pk_bf16_f32 v{src + k}, v{tmp}, v{src + k}')
        return o
    for k0 in range(0, n, 2):
        ks = (k0, k0 + 1)
        for i, k in enumerate(ks): o.append(J(f'v_lshlrev_b32 v{QT + 2 * i}, 16, v{src + k}'))
        for i, k in enumerate(ks): o.append(J(f'v_and_b32 v{QT + 2 * i + 1}, s{sMask}, v{src + k}'))
        if pk:
            for i, k in enumerate(ks): o.append(J(f'v_pk_mul_f32 {v(QT + 2 * i, 2)}, {v(QT + 2 * i, 2)}, {s_(sC, 2)}'))
        else:
            for i in range(4): o.append(J(f'v_mul_f32 v{QT + i}, s{sC}, v{QT + i}'))
        for i, k in enumerate(ks): o.append(J(f'v_cvt_pk_bf16_f32 v{src + k}, v{QT + 2 * i}, v{QT + 2 * i + 1}'))
        if dst is not None:
            for i, k in enumerate(ks): o.append(J(f'v_accvgpr_write_b32 a{dst + k}, v{src + k}'))
    return o


def lfinal(l, fl):
    return L(f'''v_mov_b32 v{T}, v{l}
v_permlane32_swap_b32 v{l}, v{T}
v_add_f32 v{l}, v{l}, v{T}
v_subrev_u32 v{T}, s{sLo}, v{l}
v_cmp_lt_u32 {s_(fl, 2)}, s{sRg}, v{T}
v_rcp_f32 v{l}, v{l}''')


nst = [0]
def stamp_pre():
    return L('s_memtime s[98:99]\ns_memrealtime s[100:101]') if STAMP else []
def stamp_post():
    if not STAMP: return []
    k = nst[0]; nst[0] += 1
    return L(f'v_writelane_b32 v0, s98, {k}\nv_writelane_b32 v{ST2}, s100, {k}')
def stamp():
    return stamp_pre() + L('s_waitcnt lgkmcnt(0)') + stamp_post() if STAMP else []


def startup():
    o = L(f'''
s_cmp_ge_u32 s2, 256
s_cbranch_scc1 L_end
s_load_dwordx4 s[48:51], s[0:1], 0
s_load_dwordx4 s[52:55], s[0:1], 16
''')
    if STAMP: o += L(f's_load_dwordx2 s[56:57], s[0:1], 40\ns_memtime s[94:95]\ns_memrealtime s[96:97]')
    o += L(f'''
v_lshrrev_b32 v16, 6, v0
v_and_b32 v0, 63, v0
v_readfirstlane_b32 s{sW}, v16
v_lshrrev_b32 v17, 3, v0
v_and_b32 v18, 7, v0
v_and_b32 v19, 2, v17
v_lshlrev_b32 v19, 1, v19
v_xor_b32 v18, v18, v19
v_lshrrev_b32 v20, 2, v17
v_xor_b32 v20, v18, v20
v_lshlrev_b32 v17, 8, v17
v_lshl_add_u32 v{VQ}, v20, 4, v17
v_xor_b32 v{VQ + 1}, 32, v{VQ}
v_add_u32 v{VQ + 1}, 0x1000, v{VQ + 1}
s_lshr_b32 s58, s{sW}, 1
s_and_b32 s59, s{sW}, 1
s_lshl_b32 s60, s{sW}, 13
s_mul_i32 s{sQb}, s2, {73728 << ADJ}
s_add_u32 s{sQo}, s{sQb}, s60
s_lshl_b32 s{sKb}, s2, {18 + ADJ}
s_lshl_b32 s61, s58, 12
s_lshl_b32 s62, s59, 10
s_add_u32 s{sWb}, s61, s62
s_lshl_b32 s63, s59, 7
s_add_u32 s63, s63, s61
s_lshl_b32 s{sStg}, s58, 5
v_xor_b32 v{VOK}, s{sStg}, v{VQ}
v_add_u32 v{VOK}, s63, v{VOK}
v_lshl_add_u32 v{VOV}, v18, 4, v17
v_add_u32 v{VOV}, s63, v{VOV}
s_waitcnt lgkmcnt(0)
''')
    srd = lambda d, b, n: L(f's_mov_b32 s{d}, s{b}\ns_and_b32 s{d + 1}, s{b + 1}, 0xffff\ns_mov_b32 s{d + 2}, {n}\ns_mov_b32 s{d + 3}, 0x20000')
    o += srd(sQ, 48, 37748736)
    for half in range(2): o += qdma(60, 0x8000 + half * 1024, 0, half, ('QA', half))
    o += srd(sK, 50, 134217728) + srd(sV, 52, 134217728) + srd(sO, 54, 37748736)
    if STAMP: o += srd(sWS, 56, 0x100000)
    o += qxdma(0) + blk('K', 0) + blk('K', 1)
    for half in range(2): o += qdma(60, 0x18000 + half * 1024, 0x8000, half, ('QB', half))
    for k, i in (('V', 0), ('K', 2), ('K', 3), ('V', 1), ('V', 2)): o += blk(k, i)
    o += L(f'''
s_mov_b32 s{sMask}, 0xffff0000
s_mov_b32 s{sC}, {hex(CSC)}
s_mov_b32 s{sC + 1}, {hex(CSC)}
s_mov_b32 s{sLo}, {hex(LOB)}
s_mov_b32 s{sRg}, {hex(HIB - LOB)}
s_lshl_b32 s{sStg}, s58, 13
s_add_u32 s{sStg}, s{sStg}, s62
s_lshl_b32 s{sOa}, s58, 7
s_add_u32 s{sOa}, s{sOa}, s{sQo}
s_lshl_b32 s{sOx}, s{sW}, 6
s_add_u32 s{sOx}, s{sOx}, s{sQb}
v_and_b32 v16, 31, v0
v_lshrrev_b32 v17, 5, v0
v_lshrrev_b32 v18, 3, v16
v_lshlrev_b32 v18, 11, v18
v_and_b32 v19, 7, v16
v_lshl_add_u32 v18, v19, 7, v18
v_and_b32 v20, 2, v16
v_lshlrev_b32 v20, 1, v20
v_bfe_u32 v21, v16, 2, 1
v_xor_b32 v20, v20, v21
v_bfe_u32 v21, v16, 4, 1
v_lshl_add_u32 v21, v21, 1, v17
v_xor_b32 v22, v20, v21
v_lshl_add_u32 v{KA}, v22, 4, v18
v_xor_b32 v{KA + 1}, 32, v{KA}
v_xor_b32 v{KA + 2}, 64, v{KA}
v_xor_b32 v{KA + 3}, 0x60, v{KA}
''')
    for m in range(4): o += L(f'v_add_u32 v{QR + m}, s60, v{KA + m}')
    o += L(f'''
v_and_b32 v23, 0xfff, v18
v_lshl_add_u32 v23, v22, 4, v23
v_add_u32 v{QXR}, {QXL}, v23
v_xor_b32 v{QXR + 1}, 64, v{QXR}
v_xor_b32 v{QXR + 2}, 32, v{QXR}
v_xor_b32 v{QXR + 3}, 0x60, v{QXR}
s_lshl_b32 s48, s59, 5
s_lshl_b32 s49, s{sW}, 12
v_xor_b32 v23, s48, v23
v_add_u32 v{KX}, s49, v23
v_xor_b32 v{KX + 1}, 64, v{KX}
v_lshlrev_b32 v{GX}, 8, v16
v_lshl_add_u32 v{QNA}, v17, 4, v{GX}
v_and_b32 v{QNX}, 0xf00, v{GX}
v_lshl_add_u32 v{QNX}, v21, 4, v{QNX}
v_lshl_add_u32 v{GX}, v17, 5, v{GX}
v_lshlrev_b32 v{PXR}, 4, v0
v_add_u32 v{PXR}, {PXL}, v{PXR}
v_and_b32 v23, 15, v0
v_bfe_u32 v24, v0, 4, 1
v_lshl_add_u32 v23, v24, 5, v23
v_lshlrev_b32 v23, 4, v23
v_lshl_add_u32 v23, v17, 3, v23
s_lshl_b32 s48, s{sW}, 10
s_add_u32 s48, s48, {PXL}
v_add_u32 v{PXW}, s48, v23
s_lshl_b32 s48, s59, 2
v_lshl_add_u32 v23, v17, 1, s48
v_xor_b32 v23, v23, v19
v_lshl_add_u32 v23, v23, 4, v18
s_add_u32 s48, s{sStg}, {STG}
v_add_u32 v{WA}, s48, v23
v_xor_b32 v{WA + 1}, 16, v{WA}
v_lshrrev_b32 v23, 3, v0
v_and_b32 v24, 7, v0
v_lshlrev_b32 v{GO}, 8, v23
v_lshl_add_u32 v{GO}, v24, 4, v{GO}
v_xor_b32 v24, v24, v23
v_lshlrev_b32 v23, 7, v23
v_lshl_add_u32 v23, v24, 4, v23
v_add_u32 v{RA}, s48, v23
''')
    o += L(f'''
v_bfe_u32 v16, v0, 2, 2
v_lshl_add_u32 v18, v17, 2, v16
v_lshlrev_b32 v18, 7, v18
v_lshrrev_b32 v16, 1, v16
v_lshl_add_u32 v18, v16, 6, v18
v_and_b32 v16, 1, v0
v_lshl_add_u32 v18, v16, 5, v18
v_bfe_u32 v16, v0, 4, 1
v_lshl_add_u32 v18, v16, 4, v18
v_bfe_u32 v16, v0, 1, 1
v_lshl_add_u32 v18, v16, 3, v18
s_lshl_b32 s48, s59, 6
s_lshl_b32 s49, s58, 10
s_add_u32 s48, s48, s49
s_add_u32 s48, s48, 0x10000
v_xor_b32 v{VA}, s48, v18
v_xor_b32 v{VA + 1}, 64, v{VA}
v_xor_b32 v{VA + 2}, 0x400, v{VA}
v_xor_b32 v{VA + 3}, 0x440, v{VA}
''')
    for c in range(6):
        if QI[c] == 'S': o += qnld(c)
    if STAMP: o += L(f'v_writelane_b32 v0, s94, 0\nv_writelane_b32 v{ST2}, s96, 0'); nst[0] = 1
    for half in range(2):
        o.append(vwait(('QA', half)))
        o += [J(f'ds_read_b128 {v(128 + 16 * half + 4 * m, 4)}, v{QR + m} offset:{0x8000 + half * 1024}') for m in range(4)]
        o += scale(128 + 16 * half, 16, pk=True)
    for m in range(4): o += L(f'v_add_u32 v{QR + m}, 0x10000, v{QR + m}')
    o += stamp()
    return o


class St:
    def __init__(self, name, ins, earliest=0, deadline=10 ** 9, after=None, bg=False):
        self.name = name; self.ins = list(ins); self.earliest = earliest; self.deadline = deadline
        self.pos = 0; self.after = after; self.bg = bg; self.lastg = -10 ** 9
    def done(self): return self.pos >= len(self.ins)


def isv(c): return c.kind in ('valu', 'trans')


def required_pad(prev, c):
    pr = [p for p in prev[-16:] if p.kind != 'label']
    pad = 0
    for i, p in enumerate(pr):
        n = need_states(p, c)
        if not n: continue
        if p.kind == 'mfma' and p.mlen == 16: n = {12: 8, 10: 6, 7: 3}[n]
        t = 0; free = (p.mlen // 4 - 1) if p.kind == 'mfma' else 0
        for q in pr[i + 1:]:
            if q.kind == 'mfma' and TIMEH:
                t = max(t, free - 1); free = t + q.mlen // 4
            t += q.states
        if n > t: pad = max(pad, n - t)
    return pad


def main_stream():
    M = []; frags = []; order = []
    def frag(rd):
        f = len(frags); r = RING + 4 * (f % 8)
        frags.append({'rd': rd(r), 'first': None, 'last': None}); order.append(('f', f))
        return f, a_(r, 4)
    def use(m, *fs):
        for f in fs:
            if frags[f]['first'] is None: frags[f]['first'] = len(M)
            frags[f]['last'] = len(M)
        M.append(m)
    kfr = lambda idx, ks: frag(lambda r: [J(f'ds_read_b128 {a_(r, 4)}, v{KA + (ks & 3)} offset:{(idx & 7) * 8192 + (ks >> 2) * 1024}')])
    kxfr = lambda idx, k4: frag(lambda r: [J(f'ds_read_b128 {a_(r, 4)}, v{KX + (k4 & 1)} offset:{(idx & 7) * 8192 + (k4 >> 1) * 1024}')])
    vfr = lambda idx, s, d: frag(lambda r: [J(f'ds_read_b64_tr_b16 {a_(r + 2 * u, 2)}, v{VA + d} offset:{(idx & 7) * 8192 + (2 * s + u) * 2048}') for u in range(2)])
    pxfr = lambda idx, s: frag(lambda r: [J(f'ds_read_b128 {a_(r, 4)}, v{PXR} offset:{((idx >> 1) & 1) * 4096 + (2 * (idx & 1) + s) * 1024}')])
    bars = {}
    def bar(key, need, lg, dmas=()):
        b = {'key': key, 'need': list(need), 'lg': lg, 'dmas': list(dmas)}; bars[key] = b; order.append(('bar', b))
    pos = {}
    def qx(idx, k4):
        h = idx >> 5
        f, A = kxfr(idx, k4)
        for t in range(2):
            use(mfs(v(SX + 4 * t, 4), A, QXo(h, 4 * t + k4), '0' if k4 == 0 else v(SX + 4 * t, 4)), f)
    bar('P', [('QX', 0), ('K', 0), ('K', 1)], True, [blk('K', 4), blk('K', 5), blk('V', 3)])
    for b in range(2):
        for ks in range(8):
            f, A = kfr(b, ks); use(mfma(v(SA[b], 16), A, QAo(0, ks), '0' if ks == 0 else v(SA[b], 16)), f)
        pos['pa', b] = len(M)
    pos['x0', 0] = len(M)
    for k4 in range(4): qx(0, k4)
    pos['x1', 0] = len(M)
    for ks in range(8):
        pos['pb', ks] = len(M)
        for b in range(2):
            f, A = kfr(b, ks); use(mfma(v(SB[b], 16), A, QBo(0, ks), '0' if ks == 0 else v(SB[b], 16)), f)
    ok = lambda l: [x for x in l if x[1] < NJ]
    for j in range(NJ):
        h = j >> 5; b = j & 1; first = (j & 31) == 0
        if b == 0:
            la = LAF(j); lp = LAF(j - 2) if j else 4
            d = []
            for q in range(j - 2 + lp + 2 if j else 4, j + la + 2, 2): d += ok([('V', q), ('K', q + 2), ('K', q + 3), ('V', q + 1)])
            need = [('V', j)] if j < FINE else ok([('V', j), ('V', j + 1), ('K', j + 2), ('K', j + 3)])
            bar(j, need, True, [blk(*x) for x in d])
        elif j < FINE:
            bar(j, [('V', j)], False)
        pos['s', j] = len(M)
        seq = [(s, d) for s in range(2) for d in range(4)] if j < NJ - 1 else [(0, 0), (0, 1), (1, 0), (1, 1), (0, 2), (0, 3), (1, 2), (1, 3)]
        for s, d in seq:
            if d == 0: fp, P = pxfr(j, s)
            f, A = vfr(j, s, d)
            z = first and s == 0
            if (s, d) == (1, 0): pos['s1', j] = len(M)
            use(mfma(OAo(h, d), A, v(SA[b] + 8 * s, 4), '0' if z else OAo(h, d)), f)
            use(mfma(OBo(h, d), A, v(SB[b] + 8 * s, 4), '0' if z else OBo(h, d)), f)
            if d == 0:
                pos['px', j, s] = len(M)
                use(mfma(v(OX, 16), A, P, '0' if z else v(OX, 16)), f, fp)
            pos['od', j, d] = len(M)
            if b == 0 and j >= FINE and j + 2 < NJ and (s, d) in XP:
                if (s, d) == XP[0]: pos['x0', j + 2] = len(M)
                qx(j + 2, XP.index((s, d)))
                pos['x1', j + 2] = len(M)
        pos['q', j] = len(M)
        if j + 2 < NJ:
            h2 = (j + 2) >> 5
            if b == 0 and j < FINE: bar(j + 0.5, [('K', j + 2), ('K', j + 3)], False)
            for ks in range(8):
                f, A = kfr(j + 2, ks)
                use(mfma(v(SA[b], 16), A, QAo(h2, ks), '0' if ks == 0 else v(SA[b], 16)), f)
                use(mfma(v(SB[b], 16), A, QBo(h2, ks), '0' if ks == 0 else v(SB[b], 16)), f)
                if b == 0 and j < FINE and ks < 4:
                    if ks == 0: pos['x0', j + 2] = len(M)
                    qx(j + 2, ks)
                    pos['x1', j + 2] = len(M)
        pos['e', j] = len(M)
    n = len(M)
    for c in range(6):
        if QI[c] != 'S': bars['P' if QI[c] == 'P' else int(QI[c])]['dmas'].append(qnld(c))
    gaps = [[] for _ in range(n + 1)]
    capg = lambda g: 1000 if g < 0 else (CAP if M[g].mlen == 32 else CAPS)
    items = []
    for kind, x in order:
        if kind == 'f':
            e = frags[x - 8]['last'] if x >= 8 else -1
            for r in frags[x]['rd']: items.append((r, e, 0, None))
        else:
            pre = stamp_pre() if (x['lg'] and isinstance(x['key'], int) and x['key'] % 4 == 0) else []
            e = x.get('earliest', -1)
            for r in pre: items.append((r, -1, BARW if r is pre[0] else 0, None))
            items.append((vwait(*x['need'], lg=x['lg']), -1, BARW if x['lg'] and not pre else 0, x))
            items.append((J('s_barrier'), -1, 0, None))
            if isinstance(x['key'], int) and x['key'] % 2 == 0 and x['key'] // 2 < len(RAMP) and RAMP[x['key'] // 2]:
                items.append((J(f's_sleep {RAMP[x["key"] // 2]}'), -1, 0, None))
            if pre:
                for r in stamp_post(): items.append((r, -1, 0, None))
    ri = 0; lastg = -100
    for g in range(-1, n):
        k = 0; used = 0
        while ri < len(items):
            c, e, w, b = items[ri]
            if b is not None and b['key'] == 0: e = pos['pb', 5]
            if not (e <= g and lastg + w <= g and k < (8 if g < 0 else 2) and used + c.cost <= capg(g)): break
            gaps[g + 1].append(c); used += c.cost; c.tgap = g
            if b is not None: b['gap'] = g
            if c.kind == 'dsr': k += 1
            ri += 1; lastg = g
    assert ri == len(items)
    for f in frags:
        assert f['rd'][-1].tgap < f['first'], 'read placed after use'
    std = [b for b in bars.values() if b['lg']]
    for bi, b in enumerate(std):
        g0 = b['gap'] + 1; g1 = std[bi + 1]['gap'] - 1 if bi + 1 < len(std) else n - 1
        flat = []
        for grp in b['dmas']:
            pre = []
            for c in grp:
                if c.kind == 'nop': continue
                if c.kind in ('dma', 'vld'): flat.append((pre, c)); pre = []
                else: pre.append(c)
        if not flat: continue
        sp = min(DSP if b['key'] not in ('P', 0) else 2, (g1 - g0) / len(flat))
        assert sp >= 1.9, (b['key'], g0, g1, len(flat))
        gprev = g0 - 1
        for i, (pre, c) in enumerate(flat):
            g = max(g0 + 1 + int(i * sp), gprev + 2 if pre else gprev + 1)
            best = None
            while M[g].mlen != 32: g += 1
            for gg in range(g, min(g + 3, g1 + 1)):
                if M[gg].mlen != 32: continue
                u = sum(x.cost for x in gaps[gg + 1])
                if best is None or u < best[0] - 0.1: best = (u, gg)
            g = best[1]
            gaps[g][0:0] = pre if g - 1 > b['gap'] else []
            if g - 1 <= b['gap']: gaps[g].extend(pre)
            gaps[g + 1].insert(0, c); gprev = g
    S = []
    G = lambda key: bars[key]['gap']
    def smx(idx):
        fresh = (idx & 31) == 0
        o = softmax(SX, LX, fresh, 4) + softmax(SX + 4, LX + 1, fresh, 4)
        o += [J(f'ds_write_b64 v{PXW}, {v(SX + 4 * t, 2)} offset:{((idx >> 1) & 1) * 4096 + t * 256}') for t in range(2)]
        return o
    def qxread(dst): return [J(f'ds_read_b128 {v(dst + 4 * k, 4)}, v{QXR + 2 * (k >> 2) + (k & 1)} offset:{(k >> 2) * 4096 + ((k >> 1) & 1) * 1024}') for k in range(8)]
    def dly(l, d): l[0].info['delay'] = d; return l
    gaps[0] += qxread(192)
    sqx = St('qx0', scale(192, 32), 0, pos['x0', 0] - 1); S.append(sqx)
    sm = {}
    def addsm(j, e, d0, d1, tiles='AB', after=None):
        h1 = j >> 5; fr = (j & 31) == 0
        for nm, SS, LL in (('A', SA, LA), ('B', SB, LB)):
            if nm not in tiles: continue
            lo = St(f'sm{nm}{j}', smh(SS[j & 1], LL[h1], fr), e, d0, after=after); S.append(lo)
            hi = St(f'sh{nm}{j}', smh(SS[j & 1] + 8, LL[h1], False), e, d1, after=lo); S.append(hi)
            sm[nm, j] = hi
    addsm(0, pos['pa', 0], pos['pb', 0] - 1, pos['pb', 0] - 1, 'A', sqx)
    prev = S[-1]
    for ks in range(8):
        x = scale(160 + 4 * ks, 4)
        if ks & 3 == 0:
            half = ks >> 2
            x = [vwait(('QB', half))] + [J(f'ds_read_b128 {v(160 + 16 * half + 4 * m, 4)}, v{QR + m} offset:{0x8000 + half * 1024}') for m in range(4)] + x
            for c in x[:5]: c.earliest = pos['pb', ks] - 1
        prev = St(f'qb{ks}', x, 0, pos['pb', ks] - 1, after=prev); S.append(prev)
    addsm(0, pos['pb', 7], pos['s', 0], pos['s1', 0] - 1, 'B')
    for j in range(NJ):
        b = j & 1
        if j + 1 < NJ: addsm(j + 1, pos['s', j] - 1, pos['e', j] - 2, pos['s1', j + 1] - 2)
        if b == 0:
            x = smx(j)
            if (j & 31) == 30:
                x += L(f'''v_permlane32_swap_b32 v{LX}, v{LX + 1}
v_subrev_u32 v{T + 1}, {PXL}, v{PXR}
v_add_f32 v{LX}, v{LX}, v{LX + 1}
v_and_b32 v{T + 2}, 0xf0, v{T + 1}
v_mov_b32 v{LX + 1}, v{LX}
v_lshrrev_b32 v{T + 3}, 1, v{T + 1}
v_and_b32 v{T + 3}, 0x100, v{T + 3}
v_permlane16_swap_b32 v{LX}, v{LX + 1}
v_add3_u32 v{T + 2}, v{T + 2}, v{T + 3}, s{sT + 1}
v_add_f32 v{LX}, v{LX}, v{LX + 1}
v_and_b32 v{T + 1}, 0x1f0, v{T + 1}
v_add_u32 v{T + 1}, {QXL}, v{T + 1}
ds_write_b32 v{T + 2}, v{LX}''')
            S.append(St(f'smx{j}', x, pos['x1', j], G(j) - 1))
    tail = []
    for h in range(2):
        j = 32 * h + 31
        x = [J(f'ds_read_b128 {v(T + 4, 4)}, v{T + 1}')] + dly(L(f'''v_add_f32 v{T + 4}, v{T + 4}, v{T + 5}
v_add_f32 v{T + 6}, v{T + 6}, v{T + 7}
v_add_f32 v{RX}, v{T + 4}, v{T + 6}
v_subrev_u32 v{T + 4}, s{sLo}, v{RX}
v_cmp_lt_u32 {s_(sFl + 6 * h + 4, 2)}, s{sRg}, v{T + 4}
v_rcp_f32 v{RX}, v{RX}'''), 6)
        srx = St(f'rx{h}', x, G(j - 1) + 1, pos['s', j] + 4); S.append(srx)
        x = [J(f'v_mul_f32 v{OX + k}, v{RX}, v{OX + k}') for k in range(16)]
        XO = T + 4 if h == 0 else OX
        x += [J(f'v_cvt_pk_bf16_f32 v{XO + k}, v{OX + 2 * k}, v{OX + 2 * k + 1}') for k in range(8)]
        x += L(f's_add_u32 s{sT + 2}, s{sOx}, {h * HQ + 0x10000}')
        x += [J(f'buffer_store_dwordx4 {v(XO + 4 * e, 4)}, v{GX}, {s_(sO, 4)}, s{sT + 2} offen offset:{16 * e}{STP}') for e in range(2)]
        sox = St(f'ox{h}', x, pos['px', j, 1] + 1, pos['px', j + 1, 0] - 1 if h == 0 else 10 ** 9, after=srx); S.append(sox)
        slf = St(f'lf{h}', lfinal(LA[h], sFl + 6 * h) + lfinal(LB[h], sFl + 6 * h + 2), pos['s1', j], 10 ** 9 if h == 0 else pos['s1', j] + 4, after=sox if h == 0 else None, bg=(h == 0))
        S.append(slf)
        if h == 0:
            prev = slf
            for p in range(4):
                tile, half = p >> 1, p & 1
                r = (LA, LB)[tile][0]; x = []
                for d in (2 * half, 2 * half + 1):
                    for e in range(2):
                        base = 64 * tile + 16 * d + 8 * e
                        x += [J(f'v_accvgpr_read_b32 v{T + k}, a{base + k}') for k in range(8)]
                        x += [J(f'v_mul_f32 v{T + k}, v{r}, v{T + k}') for k in range(8)]
                        x += [J(f'v_cvt_pk_bf16_f32 v{U + k}, v{T + 2 * k}, v{T + 2 * k + 1}') for k in range(4)]
                        x += [J(f'ds_write_b128 v{WA + e}, {v(U, 4)}')]
                    x += L(f'v_xor_b32 v{WA}, 64, v{WA}\nv_xor_b32 v{WA + 1}, 64, v{WA + 1}')
                rb = 64 * tile + 32 * half
                x += [J(f'ds_read_b128 {a_(rb + 4 * i, 4)}, v{RA} offset:{i * 2048}') for i in range(4)]
                sd = St(f'dr{p}', x, pos['q', j], G(38 + 6 * p), after=prev, bg=True); S.append(sd); prev = sd
                x = L(f's_xor_b32 s{sOh}, s{sOa}, {half * 128}\ns_add_u32 s{sOh}, s{sOh}, {tile * 0x8000}\ns_add_u32 s{sOh + 1}, s{sOh}, 0x1000')
                y = [J(f'buffer_store_dwordx4 {a_(rb + 4 * i, 4)}, v{GO}, {s_(sO, 4)}, s{sOh + (i >> 1)} offen offset:{(i & 1) * 2048}{STP}') for i in range(4)]
                for q in y: q.info['delay'] = 3
                y[0].info['delay'] = 8
                S.append(St(f'st{p}', x + y, 0, 10 ** 9, after=sd, bg=True))
            S[-1].deadline = G(58); slf.deadline = G(34)
            sreb = St('rebase', L(f'v_subrev_u32 v{WA}, {STG}, v{WA}\nv_subrev_u32 v{WA + 1}, {STG}, v{WA + 1}\nv_subrev_u32 v{RA}, {STG}, v{RA}\nv_xor_b32 v{U}, 64, v{WA}\nv_xor_b32 v{U + 1}, 64, v{WA + 1}'), G(58), G(60), after=sd)
            S.append(sreb)
    assert sum(QD) == 96
    prev = None; r = 0
    for i, nq in enumerate(QD):
        if not nq: continue
        x = [vwait(('QN', c)) for c in range(6) if r <= 16 * c < r + nq] + ascale(128 + r, nq); r += nq
        g = pos['s', Q0 + i] + QOFF
        prev = St(f'qn{i}', x, g, g + QW, after=prev, bg=True); S.append(prev)
    j = NJ - 1
    fin = []
    for half in range(2):
        for tile in range(2):
            r = (LA, LB)[tile][1]; x = []; p = 2 * half + tile
            for d in (2 * half, 2 * half + 1):
                base = 128 + 64 * tile + 16 * d
                if half == 0:
                    x += [J(f'v_mul_f32 v{base + k}, v{r}, v{base + k}') for k in range(16)]
                else:
                    x += [J(f'v_pk_mul_f32 {v(base + 2 * k, 2)}, {v(base + 2 * k, 2)}, {v(r & ~1, 2)} op_sel:[0,{r & 1}] op_sel_hi:[1,{r & 1}]') for k in range(8)]
                for e in range(2):
                    x += [J(f'v_cvt_pk_bf16_f32 v{base + 4 * e + k}, v{base + 8 * e + 2 * k}, v{base + 8 * e + 2 * k + 1}') for k in range(4)]
                    x += [J(f'ds_write_b128 v{(WA if d & 1 == 0 else U) + e}, {v(base + 4 * e, 4)} offset:{p * 16384}')]
            rb = 16 * p
            x += [J(f'ds_read_b128 {a_(rb + 4 * i, 4)}, v{RA} offset:{p * 16384 + i * 2048}') for i in range(4)]
            y = L(f's_xor_b32 s{sT + 4 + 2 * p}, s{sOa}, {half * 128}\ns_add_u32 s{sT + 4 + 2 * p}, s{sT + 4 + 2 * p}, {HQ + tile * 0x8000}\ns_add_u32 s{sT + 5 + 2 * p}, s{sT + 4 + 2 * p}, 0x1000')
            z = [J(f'buffer_store_dwordx4 {a_(rb + 4 * i, 4)}, v{GO}, {s_(sO, 4)}, s{sT + 4 + 2 * p + (i >> 1)} offen offset:{(i & 1) * 2048}{STP}') for i in range(4)]
            fin.append((x, y, z))
    S.append(St('fsal', sum([f[1] for f in fin], []), G(60), G(62)))
    seq = list(fin[0][0])
    for p in range(1, 4):
        x = fin[p][0]; k = 12
        seq += x[:k]
        for q in fin[p - 1][2]:
            seq.append(q); seq += x[k:k + 3]; k += 3
        seq += x[k:]
    seq += fin[3][2]
    nhalf0 = len(fin[0][0]) + len(fin[1][0]) + 4
    for c in seq[nhalf0:]: c.earliest = n
    sfin = St('fin', seq, pos['od', j, 1], 10 ** 9, after=sox); S.append(sfin)
    sox.after = slf; sox.deadline = 10 ** 8
    return M, gaps, S, pos, bars


def schedule2(M, gaps, S, prefix, lg):
    n = len(M)
    seq = list(gaps[0])
    for g in range(n): seq.append(M[g]); seq += gaps[g + 1]
    seq1 = lgk(seq, lg.copy())
    res = [0.0] * (n + 1); g = 0
    for c in seq1:
        if c.kind == 'mfma': g += 1
        elif c.tag == 'autowait': res[g] += COST['wait']
    out = []; hist = list(prefix); rep = []
    S = sorted(S, key=lambda s: s.earliest)
    act = []; si = 0
    pend = list(S)
    for g in range(-1, n):
        if g >= 0: out.append(M[g]); hist.append(M[g])
        for c in gaps[g + 1]: out.append(c); hist.append(c)
        used = sum(c.cost for c in gaps[g + 1]) + res[g + 1]
        nds = sum(1 for c in gaps[g + 1] if c.kind in ('dsr', 'dsw', 'dma', 'vst', 'vld'))
        cap = 0 if g < 0 else (CAP if M[g].mlen == 32 else CAPS)
        bcap = 0 if g < 0 else (BGCAP if M[g].mlen == 32 else CAPS)
        while si < len(pend) and pend[si].earliest <= g: act.append(pend[si]); si += 1
        act = [s for s in act if not s.done()]
        nval = 0
        nxt = M[g + 1] if g + 1 < n else None
        while True:
            cand = []
            for s in act:
                if s.done() or (s.after is not None and not s.after.done()): continue
                c = s.ins[s.pos]
                if c.earliest is not None and c.earliest > g: continue
                force = s.deadline <= g
                ref = s.lastg if s.pos else (s.after.lastg if s.after is not None else -10 ** 9)
                if not force and ref + c.info.get('delay', 0) > g: continue
                if not isv(c) and c.kind != 'salu' and not force:
                    if nval > 0 or nds >= 2: continue
                    pr = -1
                else: pr = 0
                cand.append((pr, s.bg and not force, s.deadline, s, c, force))
            cand.sort(key=lambda x: x[:3])
            pick = None
            for pr, bg, dl, s, c, force in cand:
                if (used + c.cost <= (bcap if bg else cap) or force) and (required_pad(hist, c) == 0):
                    pick = (s, c); break
            if pick is None:
                fl = [x for x in cand if x[5]]
                if fl:
                    s, c = fl[0][3], fl[0][4]
                    p = J(f's_nop {required_pad(hist, c) - 1}'); out.append(p); hist.append(p); used += p.cost
                    continue
                break
            s, c = pick; s.pos += 1; s.lastg = g
            out.append(c); hist.append(c); used += c.cost
            if isv(c): nval += 1
            elif c.kind != 'salu': nds += 1
        for s in act:
            if s.deadline <= g and not s.done():
                raise RuntimeError(f'stream {s.name} missed deadline {s.deadline} at gap {g}, left {len(s.ins) - s.pos}, after {s.after.name if s.after else None}')
        rep.append(used)
        hist = hist[-24:]
    left = [s for s in S if not s.done()]
    if VERB: print('; flushed:', [(s.name, len(s.ins) - s.pos) for s in left], file=sys.stderr)
    left.sort(key=lambda s: s.deadline)
    for s in left:
        assert s.after is None or s.after.done()
        out += s.ins[s.pos:]; s.pos = len(s.ins)
    return out, rep


def lgk(seq, state, insert=True):
    out = []; t = 0; pipe = 0; q = state.q
    for c in seq:
        if c.kind == 'label': out.append(c); continue
        if c.kind == 'wait':
            k = parse_wait(c.text)
            if k is not None: del q[:max(0, len(q) - k)]
        else:
            touch = c.src | c.dst
            k = -1
            for idx, (regs, ti) in enumerate(q):
                if regs & touch and not (c.kind == 'dsr' and not (regs & c.src)): k = idx
            if len(q) >= 15 and c.kind in ('dsr', 'dsw'): k = max(k, 0)
            if k >= 0:
                assert insert, c.text
                while k + 1 < len(q) and t - q[k + 1][1] >= SETTLE: k += 1
                w = J(f's_waitcnt lgkmcnt({len(q) - 1 - k})', tag='autowait'); w.info['age'] = t - q[k][1]
                out.append(w); del q[:k + 1]
        if c.kind == 'mfma':
            t = max(t, pipe); pipe = t + c.mlen
        if c.kind in ('dsr', 'dsw'): q.append((set(c.dst), t))
        t += c.cost
        out.append(c)
    state.t = max(t, pipe)
    return out


def vmfix(seq):
    ops = []
    for c in seq:
        if c.kind in ('dma', 'vst', 'vld'): ops.append(c.info.get('name'))
        elif c.kind == 'wait' and 'need' in c.info:
            k = -1
            for nm in c.info['need']:
                idx = [i for i, x in enumerate(ops) if x == nm]
                assert len(idx) in (2, 4), (nm, idx)
                k = max(k, idx[-1])
            nn = len(ops) - 1 - k
            assert nn <= 63
            c.text = c.text.replace('vmcnt(0)', f'vmcnt({nn})') if k >= 0 else c.text.replace('vmcnt(0) ', '')
            c.info['n'] = nn


def ending():
    o = []
    if STAMP:
        o += L('s_waitcnt vmcnt(0)') + stamp()
        o += L(f'''
v_mov_b32 v16, s96
v_mov_b32 v17, s97
v_mov_b32 v18, s100
v_mov_b32 v19, s101
s_lshl_b32 s48, s2, 6
s_lshl_b32 s49, s{sW}, 4
s_add_u32 s48, s48, s49
v_mov_b32 v20, 0
v_mov_b32 v{ST2 - 1}, v0
v_subrev_u32 v21, {PXL}, v{PXR}
v_lshrrev_b32 v21, 1, v21
s_lshl_b32 s49, s48, 5
s_add_u32 s49, s49, 0x40000
buffer_store_dwordx2 {v(ST2 - 1, 2)}, v21, {s_(sWS, 4)}, s49 offen
s_mov_b64 exec, 1
buffer_store_dwordx4 v[16:19], v20, {s_(sWS, 4)}, s48 offen
s_mov_b64 exec, -1
''')
    o += L(f's_mov_b32 s{sT}, 0')
    for t in range(6):
        o += L(f's_cmp_lg_u64 {s_(sFl + 2 * t, 2)}, 0\ns_cselect_b32 s{sT + 1}, {1 << t}, 0\ns_or_b32 s{sT}, s{sT}, s{sT + 1}')
    o += L('s_cbranch_scc1 L_slow\nL_end:\ns_endpgm')
    return o


def slow():
    sF = sT; sB = sT + 1; sR = sT + 2; sKV = sT + 3; sI = sT + 4; sM = sT + 5; sX = sT + 6; sP = sT + 7
    LN = 1; VO = 2; VAs = 3; VD = 5; m = 6; l = 7; t = 8; Q = 128; O = 160; KF = 16; S = 48; VF = 64
    o = L(f'''
L_slow:
s_waitcnt vmcnt(0) lgkmcnt(0)
s_and_b32 s{sB}, s{sF}, 0x24
s_cbranch_scc0 L_sl1
s_barrier
s_cmp_eq_u32 s{sW}, 0
s_cbranch_scc1 L_sl1
s_and_b32 s{sF}, s{sF}, 0x1b
s_cbranch_scc0 L_end
L_sl1:
v_subrev_u32 v{LN}, {PXL}, v{PXR}
v_lshrrev_b32 v{LN}, 4, v{LN}
v_and_b32 v{VO}, 31, v{LN}
v_lshrrev_b32 v{t}, 5, v{LN}
v_lshlrev_b32 v{VO}, 8, v{VO}
v_lshl_add_u32 v{VO}, v{t}, 4, v{VO}
s_lshl_b32 s{sX}, s{sW}, 6
s_and_b32 s{sX}, s{sX}, 64
s_lshl_b32 s{sM}, s{sW}, 9
s_and_b32 s{sM}, s{sM}, 0x400
s_add_u32 s{sX}, s{sX}, s{sM}
s_add_u32 s{sX}, s{sX}, 0x10000
v_xor_b32 v{VAs}, s{sX}, v{VA}
s_lshl_b32 s{sX}, s{sW}, 7
s_and_b32 s{sX}, s{sX}, 128
s_lshl_b32 s{sM}, s{sW}, 11
s_and_b32 s{sM}, s{sM}, 0x1000
s_add_u32 s{sX}, s{sX}, s{sM}
v_subrev_u32 v{VD}, s{sX}, v{VOV}
s_lshl_b32 s{sP}, s{sW}, 13
s_add_u32 s{sP}, s{sP}, 0x10000
v_add_u32 v{VAs}, s{sP}, v{VAs}
v_xor_b32 v{VAs + 1}, 64, v{VAs}
L_sl2:
s_ff1_i32_b32 s{sB}, s{sF}
s_bitset0_b32 s{sF}, s{sB}
s_cmp_ge_u32 s{sB}, 3
s_cselect_b32 s{sR}, {HQ}, 0
s_cselect_b32 s{sKV}, {HK}, 0
s_cselect_b32 s{sM}, 3, 0
s_sub_u32 s{sB}, s{sB}, s{sM}
s_add_u32 s{sKV}, s{sKV}, s{sKb}
s_cmp_eq_u32 s{sB}, 2
s_cselect_b32 s{sM}, s{sQb}, s{sQo}
s_add_u32 s{sR}, s{sR}, s{sM}
s_lshl_b32 s{sB}, s{sB}, 15
s_add_u32 s{sR}, s{sR}, s{sB}
''')
    o += [J(f'buffer_load_dwordx4 {v(Q + 4 * k, 4)}, v{VO}, {s_(sQ, 4)}, s{sR} offen offset:{32 * k}') for k in range(8)]
    o += [J(f'v_mov_b32 v{O + k}, 0') for k in range(64)]
    o += L(f'v_mov_b32 v{m}, 0xff800000\nv_mov_b32 v{l}, 0\ns_mov_b32 s{sI}, 0\ns_waitcnt vmcnt(0)')
    o += scale(Q, 32)
    o += L('L_sl3:')
    o += [J(f'buffer_load_dwordx4 {v(KF + 4 * k, 4)}, v{VO}, {s_(sK, 4)}, s{sKV} offen offset:{32 * k}') for k in range(8)]
    for w in range(4):
        o += L(f's_add_u32 m0, s{sP}, {(w >> 1) * 4096 + (w & 1) * 1024}\ns_add_u32 s{sM}, s{sKV}, {(w >> 1) * 4096 + (w & 1) * 128}')
        o += [dma(VD, sV, sM, 0, None), dma(VD, sV, sM, 2048, None)]
    o += L('s_waitcnt vmcnt(0)')
    o += [mfma(v(S, 16), v(KF + 4 * k, 4), v(Q + 4 * k, 4), '0' if k == 0 else v(S, 16)) for k in range(8)]
    for s in range(2):
        for d in range(4):
            o += [J(f'ds_read_b64_tr_b16 {v(VF + 16 * s + 4 * d + 2 * u, 2)}, v{VAs + (d & 1)} offset:{(2 * s + u) * 2048 + (d >> 1) * 1024}') for u in range(2)]
        o += L('s_waitcnt lgkmcnt(0)')
    o += L(f'v_max3_f32 v{t}, v{S}, v{S + 1}, v{m}')
    o += [J(f'v_max3_f32 v{t}, v{t}, v{S + 2 * k}, v{S + 2 * k + 1}') for k in range(1, 8)]
    o += L(f'''v_mov_b32 v{t + 1}, v{t}
v_permlane32_swap_b32 v{t}, v{t + 1}
v_max_f32 v{t}, v{t}, v{t + 1}
v_sub_f32 v{t + 1}, v{m}, v{t}
v_mov_b32 v{m}, v{t}
v_exp_f32 v{t + 1}, v{t + 1}''')
    o += [J(f'v_sub_f32 v{S + k}, v{S + k}, v{m}') for k in range(16)]
    o += L(f'v_mul_f32 v{l}, v{l}, v{t + 1}')
    o += [J(f'v_mul_f32 v{O + k}, v{O + k}, v{t + 1}') for k in range(64)]
    o += softmax(S, l, False) + latecvt(S)
    for s in range(2):
        for d in range(4):
            o.append(mfma(v(O + 16 * d, 16), v(VF + 16 * s + 4 * d, 4), v(S + 8 * s, 4), v(O + 16 * d, 16)))
    o += L(f'''s_nop 15
s_add_u32 s{sKV}, s{sKV}, 0x2000
s_add_u32 s{sI}, s{sI}, 1
s_cmp_lt_u32 s{sI}, 32
s_cbranch_scc1 L_sl3
v_mov_b32 v{t}, v{l}
v_permlane32_swap_b32 v{l}, v{t}
v_add_f32 v{l}, v{l}, v{t}
v_rcp_f32 v{l}, v{l}''')
    o += [J(f'v_mul_f32 v{O + k}, v{O + k}, v{l}') for k in range(64)]
    o += [J(f'v_cvt_pk_bf16_f32 v{O + k}, v{O + 2 * k}, v{O + 2 * k + 1}') for k in range(32)]
    o += [J(f'buffer_store_dwordx4 {v(O + 4 * k, 4)}, v{GX}, {s_(sO, 4)}, s{sR} offen offset:{64 * (k >> 1) + 16 * (k & 1)}') for k in range(8)]
    o += L(f's_waitcnt vmcnt(0)\ns_cmp_lg_u32 s{sF}, 0\ns_cbranch_scc1 L_sl2\ns_endpgm')
    return o


def fixh(seq, prefix=()):
    out = list(prefix); n0 = len(out); cnt = 0
    for c in seq:
        if c.kind != 'label':
            pad = required_pad(out[-24:], c)
            if pad: out.append(J(f's_nop {pad - 1}')); cnt += 1
        out.append(c)
    return out[n0:], cnt


def main():
    st = startup()
    st += L(f's_lshl_b32 s{sT + 1}, s{sW}, 2\ns_add_u32 s{sT + 1}, s{sT + 1}, {QXL}')
    M, gaps, S, pos, bars = main_stream()
    body, rep = schedule2(M, gaps, S, st[-20:], Lgkm())
    lg = Lgkm()
    allc = lgk(st + body + ending(), lg)
    allc, nn = fixh(allc)
    vmfix(allc)
    if E('NODMA', 0):
        k = 0; o = []
        for c in allc:
            if c.kind == 'dma':
                k += 1
                if k > 32: c = J('s_nop 0')
            if c.kind == 'wait' and 'need' in c.info and k > 32: c = J('s_waitcnt vmcnt(0)' + (' lgkmcnt(0)' if 'lgkm' in c.text else '')) if k < 40 else J('s_waitcnt lgkmcnt(0)' if 'lgkm' in c.text else 's_nop 0')
            o.append(c)
        allc = o
    sl, _ = fixh(slow())
    if VERB:
        for j in range(NJ):
            r = rep[pos['s', j] + 1:pos['e', j] + 1]
            over = sum(max(0, x - (M[pos['s', j] + i].mlen - 8)) for i, x in enumerate(r))
            print(f'; step{j} over {over:.0f} fill', ' '.join('%d' % x for x in r), file=sys.stderr)
        print('; prologue fill', ' '.join('%d' % x for x in rep[:pos['s', 0] + 1]), file=sys.stderr)
        print('; bars', [(k, b['gap']) for k, b in bars.items()], file=sys.stderr)
        print('; vm', [(c.info['need'][:1], c.info['n']) for c in allc if c.kind == 'wait' and 'need' in c.info], file=sys.stderr)
        print(f'; nops {nn} instrs {len(allc)} waits {sum(1 for c in allc if c.kind == "wait")} est cycles {lg.t:.0f}', file=sys.stderr)
        print('; young waits', sorted([int(c.info['age']) for c in allc if c.tag == 'autowait'])[:60], file=sys.stderr)
        print('; stream ends', [(s.name, s.lastg) for s in S if s.bg], file=sys.stderr)
    out = ['; @launch grid=(256,1,1) block=(256,1,1) lds=163840',
           '.amdgcn_target "amdgcn-amd-amdhsa--gfx950"', '.text', f'.globl {NAME}', '.p2align 8', f'.type {NAME},@function', f'{NAME}:']
    for c in allc + sl: out.append(c.text)
    out += ['.section .rodata,"a"', '.p2align 6', f'.amdhsa_kernel {NAME}',
            '  .amdhsa_next_free_vgpr 512', '  .amdhsa_next_free_sgpr 102', '  .amdhsa_accum_offset 256',
            '  .amdhsa_group_segment_fixed_size 0', '  .amdhsa_kernarg_size 48', '  .amdhsa_user_sgpr_count 2',
            '  .amdhsa_user_sgpr_kernarg_segment_ptr 1', '  .amdhsa_system_sgpr_workgroup_id_x 1', '.end_amdhsa_kernel']
    print('\n'.join(out))


main()
```

```python
import os, sys, struct, math
sys.path.insert(0, os.path.dirname(os.path.abspath(__file__)))
from asmlib import *

E = lambda k, d: int(os.environ.get(k, d))
F = lambda k, d: float(os.environ.get(k, d))
STAMP = E('STAMP', 0); VERB = E('VERB', 0)
CAP = F('CAP', 9.5); DSC = F('DSC', 4.0)
SETTLE = E('SETTLE', 170)
LEAD = E('LEAD', 12); BARW = E('BARW', 8); URG = E('URG', 4); DSS = E('DSS', 2)
DMG = [int(x) for x in os.environ.get('DMG', '6,22,38,54,70,86,102,118').split(',')]
LDP = os.environ.get('LDP', ' nt'); STP = os.environ.get('STP', ' nt')
NODMA = E('NODMA', 0)
QL = os.environ.get('QL', '0,1,2,3,8').split(',')
QF = [tuple(int(y) for y in x.split(':')) for x in os.environ.get('QF', '2:4,3:4,4:4,5:4').split(',')]
XH = E('XH', 11)
GX_ = os.environ.get('GX', '0,1,2,3').split(',')
NS = E('NS', 2); S0 = E('S0', 17); SD = E('SD', 1)
SH = [(S0 + SD * q, list(range(NS * q, min(18, NS * q + NS)))) for q in range((17 + NS) // NS)]
NAME = 'standalone__mha_softmax__near_ridge_kernel'
KA = 1; KX = 3; VA = 5; PXW = 9; PXR = 10; VOD = 11; QN = 12; GO = 13
SS = [16, 48]; SX = 80; OX = 88; LM = 104; LX = 108; T = 112; O = 128
aQ = 0; aQX = 64; aR = 96; aV = 160; aK = 192; aX = 224; aC = 240
sQ, sK, sV, sO = 4, 8, 12, 16
sW, sN, sQb, sWb, sSo, sMask, sC, sLo, sRg, sM, sI, sHM, sOb, sF, sQo, sXo = 20, 21, 22, 23, 24, 25, 26, 28, 29, 30, 31, 32, 33, 34, 35, 36
sT = 48; sWS = 64
PXL = 0x20000; QXL = 0x22000; LDSZ = 0x24000
f2u = lambda x: struct.unpack('<I', struct.pack('<f', x))[0]
CSC = f2u(math.log2(math.e) / math.sqrt(128.0))
LOB = f2u(2.0 ** -20); HIB = f2u(2.0 ** 30)
HK = 262144; HQ = 73728

v = lambda a, n=1: f'v{a}' if n == 1 else f'v[{a}:{a + n - 1}]'
a_ = lambda a, n=1: f'a{a}' if n == 1 else f'a[{a}:{a + n - 1}]'
s_ = lambda a, n=1: f's{a}' if n == 1 else f's[{a}:{a + n - 1}]'
COST = {'valu': 4.65, 'trans': 8.7, 'salu': 0.3, 'wait': 0.3, 'barrier': 1.0, 'dsw': DSC, 'dsr': DSC, 'vst': 8.0, 'dma': 9.0, 'vld': 9.0, 'smem': 1.0, 'branch': 1.0}


class I2(I):
    __slots__ = ('info', 'mlen')


def J(text, **kw):
    x = I2(text)
    if x.kind in COST: x.cost = COST[x.kind]
    if x.kind == 'smem': x.kind = 'salu'
    x.tag = kw.get('tag'); x.earliest = kw.get('earliest'); x.info = kw; x.mlen = 0
    if x.kind == 'mfma': x.mlen = 16 if '16x16' in x.op else 32
    if x.op.startswith('v_writelane'): x.src = x.src | x.dst
    if x.op.startswith('s_bitcmp'): x.src = x.src | (x.dst - {('scc', 0)}); x.dst = {('scc', 0)}
    return x


def L(txt, **kw): return [J(x.strip(), **kw) for x in txt.strip().split('\n') if x.strip()]
def mfma(d, a, b, c): return J(f'v_mfma_f32_32x32x16_bf16 {d}, {a}, {b}, {c}')
def mfs(d, a, b, c): return J(f'v_mfma_f32_16x16x32_bf16 {d}, {a}, {b}, {c}')
def isv(c): return c.kind in ('valu', 'trans')


def rpad(prev, c):
    dist = 0; pad = 0
    for p in reversed(prev):
        if p.kind == 'label': continue
        n = need_states(p, c)
        if n and p.kind == 'mfma' and p.mlen == 16: n = {12: 8, 10: 6, 7: 3}[n]
        if n > dist: pad = max(pad, n - dist)
        dist += p.states
        if dist >= 13: break
    return pad


def fixh(seq, prefix=()):
    out = list(prefix); n0 = len(out)
    for c in seq:
        if c.kind != 'label':
            pad = rpad(out[-24:], c)
            if pad: out.append(J(f's_nop {pad - 1}'))
        out.append(c)
    return out[n0:]


def edge_pad(prev, nxt):
    for k in range(0, 14):
        seq = list(prev[-24:]) + ([J(f's_nop {k - 1}')] if k else [])
        ok = True
        for c in nxt[:16]:
            if c.kind != 'label' and rpad(seq, c): ok = False; break
            seq.append(c)
        if ok: return k
    raise RuntimeError('edge')


def dma(voff, srd, soff, imm, name):
    o = f' offset:{imm}' if imm else ''
    return J(f'buffer_load_dwordx4 {v(voff)}, {s_(srd, 4)}, {s_(soff)} offen{o}{LDP} lds', name=name)


def blk(kind, lds, name, adv):
    o = [J(f's_xor_b32 m0, s{sM}, {hex(lds + (0x10000 if kind == "V" else 0))}')]
    o.append(J(f's_add_u32 s{sN}, s{sN}, 0x2000') if adv else J('s_nop 0'))
    srd = sK if kind == 'K' else sV
    return o + [dma(VOD, srd, sN, 0, name), dma(VOD, srd, sN, 2048, name)]


def group(c, nm):
    return [blk('V', c, (nm, 0), 0), blk('K', c, (nm, 1), 1), blk('V', c + 0x2000, (nm, 2), 0), blk('K', c + 0x2000, (nm, 3), 1)]


def vwait(*names, lg=False): return J('s_waitcnt vmcnt(0)' + (' lgkmcnt(0)' if lg else ''), need=list(names))


def qld(t, h):
    o = [J(f's_add_u32 s{sSo}, s{sQo}, {h * HQ + t * 4096}')]
    return o + [J(f'buffer_load_dwordx4 {a_(aR + 16 * t + 4 * k, 4)}, v{QN}, {s_(sQ, 4)}, s{sSo} offen offset:{64 * k}{LDP}', name=('Q', t)) for k in range(4)]


def xld(h):
    o = [J(f's_add_u32 s{sSo}, s{sQb}, {h * HQ + 0x10000}')]
    return o + [J(f'buffer_load_dwordx4 {v(T + 4 * k, 4)}, v{VOD}, {s_(sQ, 4)}, s{sSo} offen{" offset:2048" if k else ""}{LDP}', name='X') for k in range(2)]


def scale4(r, t):
    o = [J(f'v_lshlrev_b32 v{t + 2 * i}, 16, v{r + i}') for i in range(4)]
    o += [J(f'v_and_b32 v{t + 2 * i + 1}, s{sMask}, v{r + i}') for i in range(4)]
    o += [J(f'v_pk_mul_f32 {v(t + 2 * i, 2)}, {v(t + 2 * i, 2)}, {s_(sC, 2)}') for i in range(4)]
    o += [J(f'v_cvt_pk_bf16_f32 v{r + i}, v{t + 2 * i}, v{t + 2 * i + 1}') for i in range(4)]
    return o


def xs_block():
    o = [vwait('X')] + scale4(T, T + 8) + scale4(T + 4, T + 8)
    o += L(f'v_add_u32 v{T + 8}, s{sXo}, v{PXR}')
    o += [J(f'ds_write_b128 v{T + 8}, {v(T + 4 * k, 4)} offset:{2048 * k}') for k in range(2)]
    return o


def qfrag(f, dst):
    r = T + 8 + 4 * (f & 1)
    o = [J(f'v_accvgpr_read_b32 v{r + i}, a{aR + 4 * f + i}') for i in range(4)]
    o += scale4(r, T)
    return o + [J(f'v_accvgpr_write_b32 a{dst + 4 * f + i}, v{r + i}') for i in range(4)]


def qxread():
    o = L(f'v_and_b32 v{T}, 0x7fff, v{KA}\nv_add_u32 v{T}, {QXL}, v{T}\nv_xor_b32 v{T + 1}, 64, v{T}')
    o += [J(f'ds_read_b128 {a_(aQX + 16 * u + 4 * k, 4)}, v{T + (k & 1)} offset:{u * 4096 + (k >> 1) * 1024}') for k in range(4) for u in range(2)]
    return o


def stamp(idx=None):
    if not STAMP: return [], []
    pre = L('s_memtime s[98:99]\ns_memrealtime s[100:101]')
    if idx is None:
        post = L(f's_lshr_b32 m0, s{sI}, 1\ns_add_u32 m0, m0, 2\nv_writelane_b32 v0, s98, m0\ns_add_u32 m0, m0, 32\nv_writelane_b32 v0, s100, m0')
    else:
        post = L(f'v_writelane_b32 v0, s98, {idx}\nv_writelane_b32 v0, s100, {idx + 32}')
    return pre, post


def startup():
    o = L(f'''
s_cmp_ge_u32 s2, 256
s_cbranch_scc1 L_end
s_load_dwordx4 s[48:51], s[0:1], 0
s_load_dwordx4 s[52:55], s[0:1], 16
''')
    if STAMP: o += L(f's_load_dwordx2 s[56:57], s[0:1], 40\ns_memtime s[94:95]\ns_memrealtime s[96:97]')
    o += L(f'''
v_lshrrev_b32 v16, 6, v0
v_and_b32 v0, 63, v0
v_readfirstlane_b32 s{sW}, v16
v_and_b32 v16, 15, v0
v_lshrrev_b32 v17, 4, v0
v_lshlrev_b32 v{QN}, 8, v16
v_lshl_add_u32 v{QN}, v17, 4, v{QN}
v_lshrrev_b32 v18, 3, v0
v_and_b32 v19, 6, v18
v_and_b32 v20, 7, v0
v_xor_b32 v19, v19, v20
v_lshlrev_b32 v18, 8, v18
v_lshl_add_u32 v{VOD}, v19, 4, v18
s_lshr_b32 s58, s{sW}, 1
s_and_b32 s59, s{sW}, 1
s_mul_i32 s{sQb}, s2, {2 * HQ}
s_lshl_b32 s60, s{sW}, 14
s_add_u32 s{sQo}, s{sQb}, s60
s_lshl_b32 s{sN}, s2, 19
s_lshl_b32 s61, s58, 12
s_lshl_b32 s62, s59, 10
s_add_u32 s{sM}, s61, s62
s_lshl_b32 s63, s59, 7
s_add_u32 s63, s63, s61
v_add_u32 v{VOD}, s63, v{VOD}
s_add_u32 s{sK + 2}, s{sN}, {2 * HK}
s_mov_b32 s{sV + 2}, s{sK + 2}
s_mov_b32 s{sQ + 2}, 37748736
s_mov_b32 s{sO + 2}, 37748736
s_mov_b32 s{sQ + 3}, 0x20000
s_mov_b32 s{sK + 3}, 0x20000
s_mov_b32 s{sV + 3}, 0x20000
s_mov_b32 s{sO + 3}, 0x20000
s_waitcnt lgkmcnt(0)
''')
    srd = lambda d, b: L(f's_mov_b32 s{d}, s{b}\ns_and_b32 s{d + 1}, s{b + 1}, 0xffff')
    o += srd(sQ, 48) + xld(0)
    for t in range(4): o += qld(t, 0)
    o += srd(sK, 50) + srd(sV, 52) + srd(sO, 54)
    if STAMP: o += srd(sWS, 56) + L(f's_mov_b32 s{sWS + 2}, 0x100000\ns_mov_b32 s{sWS + 3}, 0x20000')
    o += blk('K', 0xC000, 'K0', 0) + blk('V', 0xE000, 'V0', 0) + blk('K', 0xE000, 'K1', 1)
    for b in group(0, 'Ga'): o += b
    o += L(f'''
s_mov_b32 s{sMask}, 0xffff0000
s_mov_b32 s{sC}, {hex(CSC)}
s_mov_b32 s{sC + 1}, {hex(CSC)}
s_mov_b32 s{sLo}, {hex(LOB)}
s_mov_b32 s{sRg}, {hex(HIB - LOB)}
s_mov_b32 s{sI}, -1
s_mov_b32 s{sHM}, HOOKMASK
s_mov_b32 s{sF}, 0
s_add_u32 s{sXo}, s{sM}, {QXL - PXL}
v_lshrrev_b32 v18, 3, v16
v_lshlrev_b32 v18, 11, v18
v_and_b32 v19, 7, v16
v_lshl_add_u32 v18, v19, 7, v18
v_and_b32 v19, 6, v16
v_xor_b32 v19, v19, v17
v_lshl_add_u32 v{KA}, v19, 4, v18
v_xor_b32 v{KA + 1}, 64, v{KA}
s_lshl_b32 s48, s{sW}, 12
v_add_u32 v{KX}, s48, v{KA}
v_add_u32 v{KX + 1}, s48, v{KA + 1}
v_lshlrev_b32 v{PXR}, 4, v0
v_add_u32 v{PXR}, {PXL}, v{PXR}
s_lshl_b32 s48, s58, 11
s_lshl_b32 s49, s59, 3
s_add_u32 s48, s48, s49
v_add_u32 v{PXW}, s48, v{PXR}
v_lshrrev_b32 v18, 5, v0
v_lshlrev_b32 v18, 11, v18
v_bfe_u32 v19, v0, 2, 3
v_lshl_add_u32 v18, v19, 7, v18
v_and_b32 v19, 6, v19
v_and_b32 v20, 1, v0
v_or_b32 v19, v19, v20
v_lshl_add_u32 v18, v19, 4, v18
v_and_b32 v20, 2, v0
v_lshl_add_u32 v18, v20, 2, v18
s_lshl_b32 s48, s{sW}, 5
v_xor_b32 v{GO}, s48, v{QN}
v_xor_b32 v{GO + 1}, 64, v{GO}
v_and_b32 v{GO + 2}, 32, v{QN}
v_mad_u32_u24 v{GO + 2}, v{GO + 2}, 3, v{QN}
v_add_u32 v{GO + 2}, s48, v{GO + 2}
s_add_u32 s48, s48, 0x10000
v_xor_b32 v{VA}, s48, v18
v_xor_b32 v{VA + 1}, 32, v{VA}
v_xor_b32 v{VA + 2}, 64, v{VA}
v_xor_b32 v{VA + 3}, 0x60, v{VA}
v_and_b32 v18, 3, v0
v_mov_b32 v19, 0x3f803f80
''')
    for t in range(4):
        o += L(f'v_cmp_eq_u32 vcc, {t}, v18\nv_cndmask_b32 v20, 0, v19, vcc')
        o += [J(f'v_accvgpr_write_b32 a{aC + 4 * t + k}, v20') for k in range(4)]
    o += [J(f'v_mov_b64 {v(r, 2)}, 0') for r in list(range(OX, T, 2)) + list(range(O, 256, 2))]
    if STAMP: o += L(f'v_writelane_b32 v0, s94, 0\nv_writelane_b32 v0, s96, 32')
    return o


class St:
    def __init__(self, name, ins, earliest=-1, deadline=10 ** 9, after=None):
        self.name = name; self.ins = list(ins); self.earliest = earliest; self.deadline = deadline
        self.pos = 0; self.after = after
    def done(self): return self.pos >= len(self.ins)


class Seg:
    def __init__(self, name):
        self.name = name; self.M = []; self.reads = []; self.S = []; self.last = {}; self.pos = {}; self.dmas = []; self.lastrd = {}
    def frag(self, reg, rd, late=False):
        f = {'reg': reg, 'rd': rd, 'e': self.last.get(reg, -1), 'first': None, 'late': late}
        self.reads.append(f); return f
    def use(self, m, *fs):
        for f in fs:
            if isinstance(f, dict):
                if f['first'] is None: f['first'] = len(self.M)
                self.last[f['reg']] = len(self.M)
            else: self.last[f] = len(self.M)
        self.M.append(m)
    def kfr(self, off, hf, k4):
        r = aK + 4 * (4 * hf + k4)
        return self.frag(r, [J(f'ds_read_b128 {a_(r, 4)}, v{KA + (k4 & 1)} offset:{off + hf * 4096 + (k4 >> 1) * 1024}')])
    def vfr(self, off, i, late=False):
        dt = VORD[i]; r = aV + 4 * i
        return self.frag(r, [J(f'ds_read_b64_tr_b16 {a_(r + 2 * u, 2)}, v{VA + (dt & 3)} offset:{off + (dt >> 2) * 1024 + u * 4096}') for u in range(2)], late)
    def qk(self, off, b):
        for hf in range(2):
            for k4 in range(4):
                f = self.kfr(off, hf, k4)
                for t in range(4):
                    d = v(SS[b] + 8 * t + 4 * hf, 4)
                    self.use(mfs(d, a_(f['reg'], 4), a_(aQ + 16 * t + 4 * k4, 4), '0' if k4 == 0 else d), f)
                    if k4 == 3: self.pos['s', b, t, hf] = len(self.M) - 1
    def xqk(self, off):
        for k4 in range(4):
            r = aX + 4 * ((k4 + 2) & 3)
            f = self.frag(r, [J(f'ds_read_b128 {a_(r, 4)}, v{KX + (k4 & 1)} offset:{off + (k4 >> 1) * 1024}')])
            for u in range(2):
                d = v(SX + 4 * u, 4)
                self.use(mfs(d, a_(r, 4), a_(aQX + 16 * u + 4 * k4, 4), '0' if k4 == 0 else d), f)
        self.pos['x'] = len(self.M) - 1
    def pv(self, b, buf, voff):
        self.pos['pv', b] = len(self.M)
        px = [self.frag(aX + 8 * b + 4 * u, [J(f'ds_read_b128 {a_(aX + 8 * b + 4 * u, 4)}, v{PXR} offset:{buf * 4096 + b * 2048 + u * 1024}')]) for u in range(2)]
        for i in range(8):
            dt = VORD[i]; r = aV + 4 * i
            f = self.vfr(voff, i) if voff is not None else r
            for t in range(4):
                d = v(O + 32 * t + 4 * dt, 4)
                self.use(mfs(d, a_(r, 4), v(SS[b] + 8 * t, 4), d), f)
            if i < 4: self.use(mfs(v(LM, 4), a_(aC + 4 * i, 4), v(SS[b] + 8 * i, 4), v(LM, 4)))
            if dt & 3 == 0:
                for u in range(2):
                    d = v(OX + 8 * u + 4 * (dt >> 2), 4)
                    self.use(mfs(d, a_(r, 4), a_(px[u]['reg'], 4), d), f, px[u])
                u = dt >> 2
                self.use(mfs(v(LX, 4), a_(aC + 4 * u, 4), a_(px[u]['reg'], 4), v(LX, 4)), px[u])
    def sm(self, b, dl):
        for t in range(4):
            prev = None
            for hf in range(2):
                S = SS[b] + 8 * t
                x = [J(f'v_exp_f32 v{S + 4 * hf + r}, v{S + 4 * hf + r}') for r in range(4)]
                x += [J(f'v_cvt_pk_bf16_f32 v{S + 2 * hf + k}, v{S + 4 * hf + 2 * k}, v{S + 4 * hf + 2 * k + 1}') for k in range(2)]
                prev = St(f'sm{b}{t}{hf}', x, self.pos.get(('s', b, t, hf), -1), dl + t - (4 if hf == 0 else 0), after=prev); self.S.append(prev)
    def smx(self, buf, dl):
        for u in range(2):
            S = SX + 4 * u
            x = [J(f'v_exp_f32 v{S + r}, v{S + r}') for r in range(4)]
            x += [J(f'v_cvt_pk_bf16_f32 v{S + k}, v{S + 2 * k}, v{S + 2 * k + 1}') for k in range(2)]
            x += [J(f'ds_write_b64 v{PXW}, {v(S, 2)} offset:{buf * 4096 + u * 1024}')]
            self.S.append(St(f'smx{u}', x, self.pos['x'], dl))

    def build(self, prefix, head=(), dmg=DMG, headds=1, toggle=False):
        M = self.M; n = len(M)
        gaps = [[] for _ in range(n + 1)]; gaps[0] += list(head)
        resv = set()
        flat = []
        for grp in self.dmas:
            pre = []
            for c in grp:
                if c.kind == 'nop': continue
                if c.kind == 'dma': flat.append((pre, c)); pre = []
                else: pre.append(c)
        for (pre, c), g in zip(flat, dmg):
            if pre and gaps[g + 1]: gaps[g + 1] += pre + [J('s_nop 0')] * (pre[-1].text.startswith('s_xor_b32 m0'))
            else: gaps[g] += pre
            gaps[g + 1].append(J('s_nop 0') if NODMA else c); resv.add(g)
        items = []
        for f in self.reads:
            d = (n - 1 - BARW) if f['late'] else f['first'] - LEAD
            for r in f['rd']: items.append([d, len(items), f['e'], r, f])
        lastg = -100
        for g in range(-1, n):
            k = 0
            while k < (headds if g < 0 else 1) and g not in resv:
                c = sorted(x for x in items if x[2] <= g)
                if not c: break
                urgent = any(x[0] - g <= URG + DSS * i for i, x in enumerate(c))
                if not (g - lastg >= DSS or urgent or g < 0): break
                x = c[0]; items.remove(x); gaps[g + 1].append(x[3]); x[3].tgap = g; lastg = g; k += 1
                for r in x[3].src: self.lastrd[r] = g
                if not x[4]['late']: assert g < x[4]['first'], (self.name, x[3].text)
        assert not items
        if toggle:
            for r in [KA, KA + 1, KX, KX + 1, VA, VA + 1, VA + 2, VA + 3]:
                self.S.append(St(f'tg{r}', L(f'v_xor_b32 v{r}, 0x8000, v{r}'), self.lastrd['v', r], n - 1))
            self.S.append(St('tgm', L(f's_xor_b32 s{sM}, s{sM}, 0x8000'), max(dmg) + 1, n - 1))
        out = []; hist = list(prefix); rep = []
        for g in range(-1, n):
            if g >= 0: out.append(M[g]); hist.append(M[g])
            for c in gaps[g + 1]: out.append(c); hist.append(c)
            used = sum(c.cost for c in gaps[g + 1])
            nds = sum(1 for c in gaps[g + 1] if c.kind in ('dsr', 'dsw', 'dma'))
            cap = 0 if g < 0 else CAP
            nval = 0
            while True:
                cand = []
                for s in self.S:
                    if s.done() or s.earliest > g or (s.after is not None and not s.after.done()): continue
                    c = s.ins[s.pos]; force = s.deadline <= g
                    if c.kind == 'dsw' and not force and (nval or nds): continue
                    cand.append((c.kind != 'dsw', s.deadline, s, c, force))
                cand.sort(key=lambda x: x[:2])
                pick = None
                for _, dl, s, c, force in cand:
                    if (used + c.cost <= cap or force) and rpad(hist, c) == 0: pick = (s, c); break
                if pick is None:
                    fl = [x for x in cand if x[4]]
                    if fl:
                        p = J(f's_nop {rpad(hist, fl[0][3]) - 1}'); out.append(p); hist.append(p); used += p.cost
                        continue
                    break
                s, c = pick; s.pos += 1
                out.append(c); hist.append(c); used += c.cost
                if isv(c): nval += 1
                elif c.kind != 'salu': nds += 1
            rep.append(used); hist = hist[-24:]
        assert all(s.done() for s in self.S), [(s.name, s.pos) for s in self.S if not s.done()]
        out = lgk(out)
        out = fixh(out, prefix)
        if VERB:
            print(f'; {self.name}: n={n} instrs={len(out)} nops={sum(1 for c in out if c.kind == "nop")} waits={[(int(c.info["age"])) for c in out if c.tag == "autowait"]}', file=sys.stderr)
            print(';  fill', ' '.join('%d' % x for x in rep), file=sys.stderr)
        return out


VORD = [1, 5, 2, 6, 3, 7, 0, 4]


def lgk(seq):
    out = []; t = 0; pipe = 0; q = []
    for c in seq:
        if c.kind == 'label': out.append(c); continue
        if c.kind == 'wait':
            k = parse_wait(c.text)
            if k is not None: del q[:max(0, len(q) - k)]
        else:
            touch = c.src | c.dst
            k = -1
            for idx, (regs, ti) in enumerate(q):
                if regs & touch and not (c.kind == 'dsr' and not (regs & c.src)): k = idx
            if len(q) >= 15 and c.kind in ('dsr', 'dsw'): k = max(k, 0)
            if k >= 0:
                while k + 1 < len(q) and t - q[k + 1][1] >= SETTLE: k += 1
                w = J(f's_waitcnt lgkmcnt({len(q) - 1 - k})', tag='autowait'); w.info['age'] = t - q[k][1]
                out.append(w); del q[:k + 1]
        if c.kind == 'mfma':
            t = max(t, pipe); pipe = t + c.mlen
        if c.kind in ('dsr', 'dsw'): q.append((set(c.dst), t))
        t += c.cost
        out.append(c)
    return out


def vmfix(seq):
    ops = []
    for c in seq:
        if c.kind in ('dma', 'vst', 'vld'): ops.append(c.info.get('name'))
        elif c.kind == 'wait' and 'need' in c.info:
            k = -1
            for nm in c.info['need']:
                idx = [i for i, x in enumerate(ops) if x == nm]
                assert len(idx) in (2, 4), (nm, idx)
                k = max(k, idx[-1])
            nn = len(ops) - 1 - k
            assert nn <= 63
            c.text = c.text.replace('vmcnt(0)', f'vmcnt({nn})')
            if VERB: print('; vm', c.info['need'], nn, file=sys.stderr)
    return ops


def half(hb):
    s = Seg(f'half{hb}'); off = hb * 0x4000
    s.pv(0, hb, None)
    s.qk(off, 0)
    s.xqk(off)
    s.sm(1, len(s.M) - 2)
    s.pv(1, hb, off)
    for i in range(8): s.vfr(off + 0x2000, i, late=True)
    n_end = len(s.M) + 32
    s.sm(0, n_end - 5)
    s.smx(hb ^ 1, n_end - 1 - BARW)
    s.qk(off + 0x2000, 1)
    s.dmas = group(0xC000 if hb == 0 else 0, 'G')
    return s


def top(hb):
    pre, post = stamp() if hb == 0 else ([], [])
    o = L(f's_add_u32 s{sI}, s{sI}, 1') + pre + L(f's_waitcnt vmcnt({0 if NODMA else 16}) lgkmcnt(0)') + post
    o += L(f's_bitcmp1_b32 s{sHM}, s{sI}\ns_barrier')
    o += L('s_cbranch_scc0 L_bodyA' if hb == 0 else 's_cbranch_scc1 L_hookB')
    return o


def dpre():
    o = L(f'''
v_subrev_u32 v{T}, s{sLo}, v{LM}
v_subrev_u32 v{T + 1}, s{sLo}, v{LM + 1}
v_subrev_u32 v{T + 2}, s{sLo}, v{LM + 2}
v_subrev_u32 v{T + 3}, s{sLo}, v{LM + 3}
v_rcp_f32 v{LM}, v{LM}
v_rcp_f32 v{LM + 1}, v{LM + 1}
v_max_u32 v{T}, v{T}, v{T + 1}
v_max_u32 v{T + 2}, v{T + 2}, v{T + 3}
v_rcp_f32 v{LM + 2}, v{LM + 2}
v_rcp_f32 v{LM + 3}, v{LM + 3}
v_cmp_lt_u32 s[48:49], s{sRg}, v{T}
v_cmp_lt_u32 s[50:51], s{sRg}, v{T + 2}
''')
    x = L(f'''
v_subrev_u32 v{T}, s{sLo}, v{LX}
v_subrev_u32 v{T + 1}, s{sLo}, v{LX + 1}
v_rcp_f32 v{LX}, v{LX}
v_rcp_f32 v{LX + 1}, v{LX + 1}
v_max_u32 v{T}, v{T}, v{T + 1}
v_cmp_lt_u32 s[52:53], s{sRg}, v{T}
s_lshl_b32 s{sF}, s{sF}, 3
''')
    for k in range(3):
        x += L(f's_cmp_lg_u64 s[{48 + 2 * k}:{49 + 2 * k}], 0\ns_cselect_b32 s55, {1 << k}, 0\ns_or_b32 s{sF}, s{sF}, s55')
    return o, x


UNITS = [(O + 32 * t + 16 * hi + 8 * p, LM + t, GO + p, sQo, t * 4096, hi * 128) for t in range(4) for hi in range(2) for p in range(2)]
UNITS += [(OX + 8 * u, LX + u, GO + 2, sQb, 0x10000 + u * 4096, 0) for u in range(2)]


def umul(b, r, pk):
    if pk: return [J(f'v_pk_mul_f32 {v(b + 2 * k, 2)}, {v(b + 2 * k, 2)}, {v(r & ~1, 2)} op_sel:[0,{r & 1}] op_sel_hi:[1,{r & 1}]') for k in range(4)]
    return [J(f'v_mul_f32 v{b + k}, v{r}, v{b + k}') for k in range(8)]
def ucvt(b, d): return [J(f'v_cvt_pk_bf16_f32 v{d + k}, v{b + 2 * k}, v{b + 2 * k + 1}') for k in range(4)]
def uswap(d): return [J(f'v_permlane32_swap_b32 v{d + k}, v{d + 2 + k}') for k in range(2)]
def ustore(data, k, so): return J(f'buffer_store_dwordx4 {data}, v{UNITS[k][2]}, {s_(sO, 4)}, s{so} offen{f" offset:{UNITS[k][5]}" if UNITS[k][5] else ""}{STP}')
def park(k): return a_(aR + 4 * k, 4) if k < 16 else v(T + 8 + 4 * (k - 16), 4)


def drain_mid():
    o, x = dpre(); o += x
    n = len(UNITS)
    dst = lambda k: T + 4 * (k & 1) if k < 16 else T + 8 + 4 * (k - 16)
    for k in range(n + 1):
        if k < n: o += umul(UNITS[k][0], UNITS[k][1], True)
        if k >= 1: o += uswap(dst(k - 1))
        if k < n: o += ucvt(UNITS[k][0], dst(k))
        if 1 <= k <= 16: o += [J(f'v_accvgpr_write_b32 a{aR + 4 * (k - 1) + i}, v{dst(k - 1) + i}') for i in range(4)]
        if k < n: o += [J(f'v_mov_b64 {v(UNITS[k][0] + 2 * i, 2)}, 0') for i in range(4)]
    o += [J(f'v_mov_b64 {v(r, 2)}, 0') for r in range(LM, T, 2)]
    return o


def st_hook(ks):
    o = []; prev = None
    for k in ks:
        if UNITS[k][3:5] != prev: o += L(f's_add_u32 s{sSo}, s{UNITS[k][3]}, {UNITS[k][4]}'); prev = UNITS[k][3:5]
        o.append(ustore(park(k), k, sSo))
    return o


def drain_fin():
    o, x = dpre(); o += x
    n = len(UNITS); prev = None
    for k in range(n + 1):
        if k < n: o += umul(UNITS[k][0], UNITS[k][1], True)
        if k >= 1:
            u = UNITS[k - 1]
            o += uswap(u[0])
            if u[3:5] != prev: o += L(f's_add_u32 s{sSo}, s{u[3]}, {u[4] + HQ}'); prev = u[3:5]
            o.append(ustore(v(u[0], 4), k - 1, sSo))
        if k < n: o += ucvt(UNITS[k][0], UNITS[k][0])
    return o


def tree(tab, lab):
    if len(tab) == 1: return L(f's_branch {tab[0][1]}')
    if len(tab) == 2: return L(f's_cmp_eq_u32 s{sI}, {tab[0][0]}\ns_cbranch_scc1 {tab[0][1]}\ns_branch {tab[1][1]}')
    h = len(tab) // 2
    if h == 1: return L(f's_cmp_eq_u32 s{sI}, {tab[0][0]}\ns_cbranch_scc1 {tab[0][1]}') + tree(tab[1:], lab + 'r')
    return L(f's_cmp_lt_u32 s{sI}, {tab[h][0]}\ns_cbranch_scc1 {lab}l') + tree(tab[h:], lab + 'r') + L(f'{lab}l:') + tree(tab[:h], lab + 'l')


def ending():
    o = L('L_fin:')
    if STAMP:
        pre, post = stamp(18)
        o += L('s_waitcnt vmcnt(0)') + pre + L('s_waitcnt lgkmcnt(0)') + post
        o += L(f'''
v_mov_b32 v16, s96
v_mov_b32 v17, s97
v_mov_b32 v18, s100
v_mov_b32 v19, s101
s_lshl_b32 s48, s2, 6
s_lshl_b32 s49, s{sW}, 4
s_add_u32 s48, s48, s49
v_mov_b32 v20, 0
v_mov_b32 v22, v0
v_mov_b32 v23, v0
v_permlane32_swap_b32 v22, v23
v_subrev_u32 v21, {PXL}, v{PXR}
v_lshrrev_b32 v21, 1, v21
s_lshl_b32 s49, s48, 5
s_add_u32 s49, s49, 0x40000
buffer_store_dwordx2 v[22:23], v21, {s_(sWS, 4)}, s49 offen
s_mov_b64 exec, 1
buffer_store_dwordx4 v[16:19], v20, {s_(sWS, 4)}, s48 offen
s_mov_b64 exec, -1
''')
    o += L(f's_cmp_lg_u32 s{sF}, 0\ns_cbranch_scc1 L_slow\nL_end:\ns_endpgm')
    return o


def slow():
    sB = sT + 1; sR = sT + 2; sKV = sT + 3; sJ = sT + 4; sY = sT + 5; sP = sT + 7
    LN = 1; VO = 2; VAs = 3; VD = 5; m = 6; l = 7; t = 8; GX = 13; Q = 128; OO = 160; KF = 16; S = 48; VF = 64; QT = 240
    o = L(f'''
L_slow:
s_waitcnt vmcnt(0) lgkmcnt(0)
s_and_b32 s{sB}, s{sF}, 0x24
s_cbranch_scc0 L_sl1
s_barrier
s_cmp_eq_u32 s{sW}, 0
s_cbranch_scc1 L_sl1
s_and_b32 s{sF}, s{sF}, 0x1b
s_cbranch_scc0 L_end
L_sl1:
v_subrev_u32 v{LN}, {PXL}, v{PXR}
v_lshrrev_b32 v{LN}, 4, v{LN}
v_and_b32 v{VO}, 31, v{LN}
v_lshrrev_b32 v{t}, 5, v{LN}
v_lshlrev_b32 v{VO}, 8, v{VO}
v_lshl_add_u32 v{GX}, v{t}, 5, v{VO}
v_lshl_add_u32 v{VO}, v{t}, 4, v{VO}
v_lshrrev_b32 v17, 3, v{LN}
v_and_b32 v18, 7, v{LN}
v_and_b32 v19, 2, v17
v_lshlrev_b32 v19, 1, v19
v_xor_b32 v18, v18, v19
v_lshlrev_b32 v17, 8, v17
v_lshl_add_u32 v{VD}, v18, 4, v17
v_bfe_u32 v16, v{LN}, 2, 2
v_lshl_add_u32 v18, v{t}, 2, v16
v_lshlrev_b32 v18, 7, v18
v_lshrrev_b32 v16, 1, v16
v_lshl_add_u32 v18, v16, 6, v18
v_and_b32 v16, 1, v{LN}
v_lshl_add_u32 v18, v16, 5, v18
v_bfe_u32 v16, v{LN}, 4, 1
v_lshl_add_u32 v18, v16, 4, v18
v_bfe_u32 v16, v{LN}, 1, 1
v_lshl_add_u32 v18, v16, 3, v18
s_lshl_b32 s{sP}, s{sW}, 13
v_add_u32 v{VAs}, s{sP}, v18
v_xor_b32 v{VAs + 1}, 64, v{VAs}
L_sl2:
s_ff1_i32_b32 s{sB}, s{sF}
s_bitset0_b32 s{sF}, s{sB}
s_cmp_ge_u32 s{sB}, 3
s_cselect_b32 s{sR}, 0, {HQ}
s_cselect_b32 s{sKV}, 0, {HK}
s_cselect_b32 s{sY}, 3, 0
s_sub_u32 s{sB}, s{sB}, s{sY}
s_lshl_b32 s{sY}, s2, 19
s_add_u32 s{sKV}, s{sKV}, s{sY}
s_lshl_b32 s{sY}, s{sB}, 13
s_add_u32 s{sY}, s{sY}, s{sQo}
s_add_u32 s{sJ}, s{sQb}, 0x10000
s_cmp_eq_u32 s{sB}, 2
s_cselect_b32 s{sY}, s{sJ}, s{sY}
s_add_u32 s{sR}, s{sR}, s{sY}
''')
    o += [J(f'buffer_load_dwordx4 {v(Q + 4 * k, 4)}, v{VO}, {s_(sQ, 4)}, s{sR} offen offset:{32 * k}') for k in range(8)]
    o += [J(f'v_mov_b64 {v(OO + 2 * k, 2)}, 0') for k in range(32)]
    o += L(f'v_mov_b32 v{m}, 0xff800000\nv_mov_b32 v{l}, 0\ns_mov_b32 s{sJ}, 0\ns_waitcnt vmcnt(0)')
    for k in range(8): o += scale4(Q + 4 * k, QT)
    o += L('L_sl3:')
    o += [J(f'buffer_load_dwordx4 {v(KF + 4 * k, 4)}, v{VO}, {s_(sK, 4)}, s{sKV} offen offset:{32 * k}') for k in range(8)]
    for w in range(4):
        o += L(f's_add_u32 m0, s{sP}, {(w >> 1) * 4096 + (w & 1) * 1024}\ns_add_u32 s{sY}, s{sKV}, {(w >> 1) * 4096 + (w & 1) * 128}')
        o += [dma(VD, sV, sY, 0, None), dma(VD, sV, sY, 2048, None)]
    o += L('s_waitcnt vmcnt(0)')
    o += [mfma(v(S, 16), v(KF + 4 * k, 4), v(Q + 4 * k, 4), '0' if k == 0 else v(S, 16)) for k in range(8)]
    for s in range(2):
        for d in range(4):
            o += [J(f'ds_read_b64_tr_b16 {v(VF + 16 * s + 4 * d + 2 * u, 2)}, v{VAs + (d & 1)} offset:{(2 * s + u) * 2048 + (d >> 1) * 1024}') for u in range(2)]
        o += L('s_waitcnt lgkmcnt(0)')
    o += L(f'v_max3_f32 v{t}, v{S}, v{S + 1}, v{m}')
    o += [J(f'v_max3_f32 v{t}, v{t}, v{S + 2 * k}, v{S + 2 * k + 1}') for k in range(1, 8)]
    o += L(f'''v_mov_b32 v{t + 1}, v{t}
v_permlane32_swap_b32 v{t}, v{t + 1}
v_max_f32 v{t}, v{t}, v{t + 1}
v_sub_f32 v{t + 1}, v{m}, v{t}
v_mov_b32 v{m}, v{t}
v_exp_f32 v{t + 1}, v{t + 1}''')
    o += [J(f'v_sub_f32 v{S + k}, v{S + k}, v{m}') for k in range(16)]
    o += L(f'v_mul_f32 v{l}, v{l}, v{t + 1}')
    o += [J(f'v_mul_f32 v{OO + k}, v{OO + k}, v{t + 1}') for k in range(64)]
    o += [J(f'v_exp_f32 v{S + k}, v{S + k}') for k in range(16)]
    o += [J(f'v_add_f32 v{l}, v{l}, v{S + k}') for k in range(16)]
    o += [J(f'v_cvt_pk_bf16_f32 v{S + 8 * s + k}, v{S + 8 * s + 2 * k}, v{S + 8 * s + 2 * k + 1}') for s in range(2) for k in range(4)]
    for s in range(2):
        for d in range(4):
            o.append(mfma(v(OO + 16 * d, 16), v(VF + 16 * s + 4 * d, 4), v(S + 8 * s, 4), v(OO + 16 * d, 16)))
    o += L(f'''s_nop 15
s_add_u32 s{sKV}, s{sKV}, 0x2000
s_add_u32 s{sJ}, s{sJ}, 1
s_cmp_lt_u32 s{sJ}, 32
s_cbranch_scc1 L_sl3
v_mov_b32 v{t}, v{l}
v_permlane32_swap_b32 v{l}, v{t}
v_add_f32 v{l}, v{l}, v{t}
v_rcp_f32 v{l}, v{l}''')
    o += [J(f'v_mul_f32 v{OO + k}, v{OO + k}, v{l}') for k in range(64)]
    o += [J(f'v_cvt_pk_bf16_f32 v{OO + k}, v{OO + 2 * k}, v{OO + 2 * k + 1}') for k in range(32)]
    o += [J(f'buffer_store_dwordx4 {v(OO + 4 * k, 4)}, v{GX}, {s_(sO, 4)}, s{sR} offen offset:{64 * (k >> 1) + 16 * (k & 1)}') for k in range(8)]
    o += L(f's_waitcnt vmcnt(0)\ns_cmp_lg_u32 s{sF}, 0\ns_cbranch_scc1 L_sl2\ns_endpgm')
    return fixh(o)


def main():
    ret = lambda i: 'L_bodyB' if i & 1 else 'L_bodyA'
    hA, hB = half(0), half(1)
    tA, tB = top(0), top(1)
    bodyA = hA.build(hB.M[-12:] + tA)
    bodyB = hB.build(bodyA[-24:] + tB, toggle=True)
    assert edge_pad(bodyB + tA, bodyA) == 0
    body = {'L_bodyA': bodyA, 'L_bodyB': bodyB}
    pre = lambda i: (bodyA + tB) if i & 1 else (bodyB + tA)
    def leave(x, lab, op='s_branch'):
        b = L(f'{op} {lab}'); k = edge_pad(x + b, body[lab])
        return ([J(f's_nop {k - 1}')] if k else []) + b
    st = startup() + xs_block()
    gb, gc = group(0x4000, 'Gb'), group(0x8000, 'Gc')
    hg = [gb[0:2], gb[2:4], gc[0:2], gc[2:4]]
    def ren(x, nm):
        for c in x:
            if 'name' in c.info: c.info['name'] = nm
        return x
    for t in range(4):
        st.append(vwait(('Q', t)))
        for k in range(4): st += qfrag(4 * t + k, aQ)
        for q in range(4):
            if QL[q] == f'S{t}': assert q <= t; st += ren(qld(q, 1), ('N', q))
        for q in range(4):
            if GX_[q] == str(t): st += hg[q][0] + hg[q][1]
    p1, p2 = stamp(1)
    ph = p1 + [vwait('K0', 'V0', 'K1', lg=True)] + p2 + L('s_barrier')
    s = Seg('pro')
    s.qk(0xC000, 0); s.xqk(0xC000)
    for i in range(8): s.vfr(0xE000, i, late=True)
    n_end = len(s.M) + 32
    s.sm(0, n_end - 5); s.smx(0, n_end - 1 - BARW); s.qk(0xE000, 1)
    qx = qxread()
    s.S.append(St('qx', qx[3:], 0, 16))
    for c in qx[3:]: c.kind = 'dsw'
    for q in range(4):
        if GX_[q] == 'P': s.dmas += hg[q]
    start = fixh(lgk(st + qx[:3] + ph))
    pro = s.build(start[-24:], headds=4, dmg=list(range(20, 70, 3)))
    t0 = top(0)
    for k, c in enumerate(t0):
        if c.kind == 'wait': t0[k] = vwait(('Ga', 3), lg=True)
    pro += t0 + L('s_branch L_hookA')
    assert edge_pad(pro[:-1], bodyA) == 0
    ops = vmfix(start + pro)
    act = {}
    def add(i, x): act.setdefault(i, []).extend(x)
    order = [x for x in ops]
    f = 0; ready = {}
    for i in range(0, 15):
        done = order[:-16] if i else order[:max(k for k, x in enumerate(order) if x == ('Ga', 3)) + 1]
        need = ['Ga', 'Gb', 'Gc'][i] if i < 3 else ('G', i - 3)
        assert sum(1 for x in done if (x[0] == need if i < 3 else x == need)) == 8, i
        for q in range(5):
            if QL[q] == str(i): add(i, qld(q, 1) if q < 4 else xld(1)); order += [('N', q)] * (4 if q < 4 else 2)
        for ii, nf in QF:
            if ii == i:
                for _ in range(nf):
                    if done.count(('N', f >> 2)) != 4:
                        k = len(order) - 1 - max(k for k, x in enumerate(order) if x == ('N', f >> 2))
                        add(i, L(f's_waitcnt vmcnt({k})')); done = order[:len(order) - k]
                        if VERB: print('; extra vm wait', i, f, k, file=sys.stderr)
                    add(i, qfrag(f, aR)); f += 1
        if i == XH:
            assert done.count(('N', 4)) == 2 and int(QL[4]) > max(x[0] for x in QF)
            add(i, xs_block()[1:])
        order += [('G', i)] * 8
    assert f == 16
    add(15, qxread() + [J(f'v_accvgpr_mov_b32 a{aQ + k}, a{aR + k}') for k in range(64)] + L('s_waitcnt lgkmcnt(0)'))
    add(16, drain_mid())
    for i, ks in SH: add(i, st_hook(ks))
    table = sorted([(31, 'L_tail')] + [(i, f'L_h{i}') for i in act])
    hk = L('L_hookA:') + tree([x for x in table if x[0] & 1 == 0], 'L_ta') + L('L_hookB:') + tree([x for x in table if x[0] & 1], 'L_tb')
    for i in sorted(act):
        x = L(f'L_h{i}:') + fixh(act[i], pre(i)); hk += x + leave(x, ret(i))
    for c in start: c.text = c.text.replace('HOOKMASK', hex(sum(1 << i for i, _ in table)))
    s = Seg('tail')
    s.pv(0, 1, None); s.sm(1, len(s.M) - 2); s.pv(1, 1, 0x4000)
    tail = L('L_tail:') + s.build(pre(31), head=L('s_waitcnt vmcnt(0)\ns_barrier'))
    tail += fixh(drain_fin(), tail[-24:])
    prog = start + pro + L('L_bodyA:') + bodyA + tB + L('L_bodyB:') + bodyB + L('L_topA:') + tA + hk + tail + fixh(ending()) + slow()
    out = [f'; @launch grid=(256,1,1) block=(256,1,1) lds={LDSZ}',
           '.amdgcn_target "amdgcn-amd-amdhsa--gfx950"', '.text', f'.globl {NAME}', '.p2align 8', f'.type {NAME},@function', f'{NAME}:']
    for c in prog: out.append(c.text)
    out += ['.section .rodata,"a"', '.p2align 6', f'.amdhsa_kernel {NAME}',
            '  .amdhsa_next_free_vgpr 512', '  .amdhsa_next_free_sgpr 102', '  .amdhsa_accum_offset 256',
            '  .amdhsa_group_segment_fixed_size 0', '  .amdhsa_kernarg_size 48', '  .amdhsa_user_sgpr_count 2',
            '  .amdhsa_user_sgpr_kernarg_segment_ptr 1', '  .amdhsa_system_sgpr_workgroup_id_x 1', '.end_amdhsa_kernel']
    print('\n'.join(out))


main()
```

```python
import os, sys, struct, math
sys.path.insert(0, os.path.dirname(os.path.abspath(__file__)))
from asmlib import *

E = lambda k, d: int(os.environ.get(k, d))
F = lambda k, d: float(os.environ.get(k, d))
EL = lambda k, d: [int(x) for x in os.environ.get(k, d).split(',') if x]
ED = lambda k, d: dict(tuple(int(y) for y in x.split(':')) for x in os.environ.get(k, d).split(',') if x)
STAMP = E('STAMP', 0); VERB = E('VERB', 0); FINE = E('FINE', 0)
CAP = F('CAP', 9.5); DSC = F('DSC', 4.0); CAPD = F('CAPD', 19); CAPT = F('CAPT', 33); CAPP = F('CAPP', 14)
SETTLE = E('SETTLE', 170)
LEAD = E('LEAD', 12); BARW = E('BARW', 8); URG = E('URG', 4); DSS = E('DSS', 2)
DMG = EL('DMG', '6,22,38,54,70,86,102,118')
XG = EL('XG', '14,46,78,110,30,62,94,126'); XD = E('XD', 1)
LDP = os.environ.get('LDP', ' nt'); STP = os.environ.get('STP', ' nt'); STX = os.environ.get('STX', '')
SO = os.environ.get('SO', 'q0,q1,x,q2,q3,b,U,s0,b,b,s1,X,b,b,s2,b,b,s3')
NB = ED('NB', '-1:4,2:6,3:6')
QL = ED('QL', '4:1,5:1,6:1,7:1,8:1,9:1,10:1,11:1'); XL = E('XL', 1)
QLAG = E('QLAG', 3)
DN = ED('DN', '')
ST = ED('ST', '18:1,20:1,22:1,24:1,26:1,28:1,29:2,30:1')
DS = EL('DS', '')
PK = E('PK', 1)
NAME = 'standalone__mha_softmax__near_ridge_kernel'
KA = 1; KX = 3; VA = 5; PXW = 9; PXR = 10; VOD = 11; QN = 12; GO = 13
SS = [16, 48]; SX = 80; OX = 88; LM = 104; LX = 108; T = 112; O = 128
aQ = 0; aQX = 64; aR = 96; aV = 160; aK = 192; aX = 224; aC = 240
sQ, sK, sV, sO = 4, 8, 12, 16
sW, sN, sQb, sMask, sC, sLo, sRg, sM, sF, sQo, sXo, sNv = 20, 21, 22, 25, 26, 28, 29, 30, 34, 35, 36, 37
sOf = 68
sT = 48; sWS = 64; sP = 40; PFN = 4
PXL = 0x20000; QXL = 0x22000; LDSZ = 0x24000
f2u = lambda x: struct.unpack('<I', struct.pack('<f', x))[0]
CSC = f2u(math.log2(math.e) / math.sqrt(128.0))
LOB = f2u(2.0 ** -20); HIB = f2u(2.0 ** 30)
HK = 262144; HQ = 73728

v = lambda a, n=1: f'v{a}' if n == 1 else f'v[{a}:{a + n - 1}]'
a_ = lambda a, n=1: f'a{a}' if n == 1 else f'a[{a}:{a + n - 1}]'
s_ = lambda a, n=1: f's{a}' if n == 1 else f's[{a}:{a + n - 1}]'
COST = {'valu': 4.65, 'trans': 8.7, 'salu': 0.3, 'wait': 0.3, 'barrier': 1.0, 'dsw': DSC, 'dsr': DSC, 'vst': 8.0, 'dma': 9.0, 'vld': 9.0, 'smem': 1.0, 'branch': 1.0}


class I2(I):
    __slots__ = ('info', 'mlen')


def J(text, **kw):
    x = I2(text)
    if x.kind in COST: x.cost = COST[x.kind]
    if x.kind == 'smem': x.kind = 'salu'
    x.tag = kw.get('tag'); x.earliest = kw.get('earliest'); x.info = kw; x.mlen = 0
    if x.kind == 'mfma': x.mlen = 16 if '16x16' in x.op else 32
    if x.op.startswith('v_writelane'): x.src = x.src | x.dst
    if x.op.startswith('s_bitcmp'): x.src = x.src | (x.dst - {('scc', 0)}); x.dst = {('scc', 0)}
    return x


def L(txt, **kw): return [J(x.strip(), **kw) for x in txt.strip().split('\n') if x.strip()]
def mfma(d, a, b, c): return J(f'v_mfma_f32_32x32x16_bf16 {d}, {a}, {b}, {c}')
def mfs(d, a, b, c): return J(f'v_mfma_f32_16x16x32_bf16 {d}, {a}, {b}, {c}')
def isv(c): return c.kind in ('valu', 'trans')


def rpad(prev, c):
    dist = 0; pad = 0
    for p in reversed(prev):
        if p.kind == 'label': continue
        n = need_states(p, c)
        if n and p.kind == 'mfma' and p.mlen == 16: n = {12: 8, 10: 6, 7: 3}[n]
        if n > dist: pad = max(pad, n - dist)
        dist += p.states
        if dist >= 13: break
    return pad


def fixh(seq, prefix=()):
    out = list(prefix); n0 = len(out)
    for c in seq:
        if c.kind != 'label':
            pad = rpad(out[-24:], c)
            if pad: out.append(J(f's_nop {pad - 1}'))
        out.append(c)
    return out[n0:]


def edge_pad(prev, nxt):
    for k in range(0, 14):
        seq = list(prev[-24:]) + ([J(f's_nop {k - 1}')] if k else [])
        ok = True
        for c in nxt[:16]:
            if c.kind != 'label' and rpad(seq, c): ok = False; break
            seq.append(c)
        if ok: return k
    raise RuntimeError('edge')


def dma(voff, srd, soff, imm, name):
    o = f' offset:{imm}' if imm else ''
    return J(f'buffer_load_dwordx4 {v(voff)}, {s_(srd, 4)}, {s_(soff)} offen{o}{LDP} lds', name=name)


slotK = lambda b: ((b - 2) & 7) * 0x2000
slotV = lambda b: ((b - 1) & 7) * 0x2000
grp = lambda kind, b: ((b - 2) if kind == 'K' else (b - 1)) >> 1
BORD = os.environ.get('BORD', 'VKVK')
BLKS = [('K', 0), ('K', 1), ('V', 0)]
for j in range(32):
    nx = {'V': 2 * j + 1, 'K': 2 * j + 2}
    for c in BORD:
        if nx[c] < 64: BLKS.append((c, nx[c]))
        nx[c] += 1


def blk(kind, b):
    sn = sN if kind == 'K' else sNv
    pre = [J(f's_add_u32 m0, s{sM}, {hex(slotK(b) if kind == "K" else slotV(b) + 0x10000)}')]
    pre.append(J(f's_add_u32 s{sn}, s{sn}, 0x2000') if b else J('s_nop 0'))
    srd = sK if kind == 'K' else sV
    return pre, [dma(VOD, srd, sn, 0, (kind, b)), dma(VOD, srd, sn, 2048, (kind, b))]


def vwait(*names, lg=False): return J('s_waitcnt vmcnt(0)' + (' lgkmcnt(0)' if lg else ''), need=list(names), lg=lg)
def qld(f, h, dst): return J(f'buffer_load_dwordx4 {dst}, v{QN}, {s_(sQ, 4)}, s{sOf + 6 * h + (f >> 2)} offen offset:{64 * (f & 3)}{LDP}', name=('Q', h, f))
def xld(h): return [J(f'buffer_load_dwordx4 {v(T + 8 + 4 * k, 4)}, v{VOD}, {s_(sQ, 4)}, s{sOf + 6 * h + 4} offen{" offset:2048" if k else ""}{LDP}', name=('X', h)) for k in range(2)]


def scale4(r, t):
    o = [J(f'v_lshlrev_b32 v{t + 2 * i}, 16, v{r + i}') for i in range(4)]
    o += [J(f'v_and_b32 v{t + 2 * i + 1}, s{sMask}, v{r + i}') for i in range(4)]
    o += [J(f'v_pk_mul_f32 {v(t + 2 * i, 2)}, {v(t + 2 * i, 2)}, {s_(sC, 2)}') for i in range(4)]
    o += [J(f'v_cvt_pk_bf16_f32 v{r + i}, v{t + 2 * i}, v{t + 2 * i + 1}') for i in range(4)]
    return o


def xs_block(h):
    o = [vwait(('X', h))] + scale4(T + 8, T) + scale4(T + 12, T)
    o += L(f'v_add_u32 v{T}, s{sXo}, v{PXR}')
    return o + [J(f'ds_write_b128 v{T}, {v(T + 8 + 4 * k, 4)} offset:{2048 * k}') for k in range(2)]


def qfrag(f, t, pk=1):
    o = [vwait(('Q', 1, f))] + [J(f'v_accvgpr_read_b32 v{t + 2 * i + 1}, a{aR + 4 * f + i}') for i in range(4)]
    o += [J(f'v_lshlrev_b32 v{t + 2 * i}, 16, v{t + 2 * i + 1}') for i in range(4)]
    o += [J(f'v_and_b32 v{t + 2 * i + 1}, s{sMask}, v{t + 2 * i + 1}') for i in range(4)]
    if pk: o += [J(f'v_pk_mul_f32 {v(t + 2 * i, 2)}, {v(t + 2 * i, 2)}, {s_(sC, 2)}') for i in range(4)]
    else: o += [J(f'v_mul_f32 v{t + i}, s{sC}, v{t + i}') for i in range(8)]
    o += [J(f'v_cvt_pk_bf16_f32 v{t + 2 * i}, v{t + 2 * i}, v{t + 2 * i + 1}') for i in range(4)]
    return o + [J(f'v_accvgpr_write_b32 a{aR + 4 * f + i}, v{t + 2 * i}') for i in range(4)]


def stamp(idx):
    if not STAMP: return [], []
    return L('s_memtime s[98:99]\ns_memrealtime s[100:101]'), L(f'v_writelane_b32 v0, s98, {idx}\nv_writelane_b32 v0, s100, {idx + 32}')


def setup():
    o = L(f"""
s_mov_b32 s{sMask}, 0xffff0000
s_mov_b32 s{sC}, {hex(CSC)}
s_mov_b32 s{sC + 1}, {hex(CSC)}
s_mov_b32 s{sLo}, {hex(LOB)}
s_mov_b32 s{sRg}, {hex(HIB - LOB)}
s_mov_b32 s{sF}, 0
s_add_u32 s{sXo}, s{sM}, {QXL - PXL}
v_lshrrev_b32 v18, 3, v16
v_lshlrev_b32 v18, 11, v18
v_and_b32 v19, 7, v16
v_lshl_add_u32 v18, v19, 7, v18
v_and_b32 v19, 6, v16
v_xor_b32 v19, v19, v17
v_lshl_add_u32 v{KA}, v19, 4, v18
v_xor_b32 v{KA + 1}, 64, v{KA}
s_lshl_b32 s48, s{sW}, 12
v_add_u32 v{KX}, s48, v{KA}
v_add_u32 v{KX + 1}, s48, v{KA + 1}
v_lshlrev_b32 v{PXR}, 4, v0
v_add_u32 v{PXR}, {PXL}, v{PXR}
s_lshl_b32 s48, s58, 11
s_lshl_b32 s49, s59, 3
s_add_u32 s48, s48, s49
v_add_u32 v{PXW}, s48, v{PXR}
v_lshrrev_b32 v18, 5, v0
v_lshlrev_b32 v18, 11, v18
v_bfe_u32 v19, v0, 2, 3
v_lshl_add_u32 v18, v19, 7, v18
v_and_b32 v19, 6, v19
v_and_b32 v20, 1, v0
v_or_b32 v19, v19, v20
v_lshl_add_u32 v18, v19, 4, v18
v_and_b32 v20, 2, v0
v_lshl_add_u32 v18, v20, 2, v18
s_lshl_b32 s48, s{sW}, 5
v_xor_b32 v{GO}, s48, v{QN}
v_xor_b32 v{GO + 1}, 64, v{GO}
v_and_b32 v{GO + 2}, 32, v{QN}
v_mad_u32_u24 v{GO + 2}, v{GO + 2}, 3, v{QN}
v_add_u32 v{GO + 2}, s48, v{GO + 2}
s_add_u32 s48, s48, 0x10000
v_xor_b32 v{VA}, s48, v18
v_xor_b32 v{VA + 1}, 32, v{VA}
v_xor_b32 v{VA + 2}, 64, v{VA}
v_xor_b32 v{VA + 3}, 0x60, v{VA}
v_and_b32 v18, 3, v0
v_mov_b32 v19, 0x3f803f80
v_add_u32 v{LM}, {QXL}, v{KA}
v_add_u32 v{LM + 1}, {QXL}, v{KA + 1}
""")
    o += L(f's_add_u32 s{sOf + 5}, s{sOf + 4}, 4096')
    o += [J(f's_add_u32 s{sOf + 6 + k}, s{sOf + k}, {HQ}') for k in range(6)]
    for t in range(4):
        o += L(f'v_cmp_eq_u32 vcc, {t}, v18\nv_cndmask_b32 v20, 0, v19, vcc')
        o += [J(f'v_accvgpr_write_b32 a{aC + 4 * t + k}, v20') for k in range(4)]
    if STAMP: o += L(f'v_writelane_b32 v0, s94, 0\nv_writelane_b32 v0, s96, 32')
    return o


def startup(blks):
    o = L(f"""
s_cmp_ge_u32 s2, 256
s_cbranch_scc1 L_end
s_load_dwordx4 s[48:51], s[0:1], 0
s_load_dwordx4 s[52:55], s[0:1], 16
""")
    if E('PF', 1):
        o += L(f'''
s_getpc_b64 s[{sP}:{sP + 1}]
L_pc:
s_mov_b32 s{sP + 2}, L_end-L_pc
s_mov_b32 s{sP + 3}, 0x20000
s_and_b32 s{sP + 1}, s{sP + 1}, 0xffff
s_bfe_u32 s62, s2, {hex(0x20003 if PFN == 4 else 0x10003)}
s_lshl_b32 s62, s62, 15
v_lshlrev_b32 v21, 7, v0
''') + [J(f'buffer_load_dword v40, v21, {s_(sP, 4)}, s62 offen', name='pf')]
    if STAMP: o += L(f's_load_dwordx2 s[56:57], s[0:1], {32 if STAMP == 2 else 40}\ns_memtime s[94:95]\ns_memrealtime s[96:97]')
    o += L(f"""
v_lshrrev_b32 v16, 6, v0
v_and_b32 v0, 63, v0
v_readfirstlane_b32 s{sW}, v16
v_and_b32 v16, 15, v0
v_lshrrev_b32 v17, 4, v0
v_lshlrev_b32 v{QN}, 8, v16
v_lshl_add_u32 v{QN}, v17, 4, v{QN}
v_lshrrev_b32 v18, 3, v0
v_and_b32 v19, 6, v18
v_and_b32 v20, 7, v0
v_xor_b32 v19, v19, v20
v_lshlrev_b32 v18, 8, v18
v_lshl_add_u32 v{VOD}, v19, 4, v18
s_lshr_b32 s58, s{sW}, 1
s_and_b32 s59, s{sW}, 1
s_mul_i32 s{sQb}, s2, {2 * HQ}
s_lshl_b32 s60, s{sW}, 14
s_add_u32 s{sQo}, s{sQb}, s60
s_lshl_b32 s{sN}, s2, 19
s_mov_b32 s{sNv}, s{sN}
s_lshl_b32 s61, s58, 12
s_lshl_b32 s62, s59, 10
s_add_u32 s{sM}, s61, s62
s_lshl_b32 s63, s59, 7
s_add_u32 s63, s63, s61
v_add_u32 v{VOD}, s63, v{VOD}
s_mov_b32 s{sOf}, s{sQo}
s_add_u32 s{sOf + 1}, s{sQo}, 4096
s_add_u32 s{sOf + 2}, s{sQo}, 8192
s_add_u32 s{sOf + 3}, s{sQo}, 12288
s_add_u32 s{sOf + 4}, s{sQb}, 0x10000
s_mov_b32 s{sK + 2}, 134217728
s_mov_b32 s{sV + 2}, 134217728
s_mov_b32 s{sQ + 2}, 37748736
s_mov_b32 s{sO + 2}, 37748736
s_mov_b32 s{sQ + 3}, 0x20000
s_mov_b32 s{sK + 3}, 0x20000
s_mov_b32 s{sV + 3}, 0x20000
s_mov_b32 s{sO + 3}, 0x20000
s_waitcnt lgkmcnt(0)
""")
    srd = lambda d, b: L(f's_mov_b32 s{d}, s{b}\ns_and_b32 s{d + 1}, s{b + 1}, 0xffff')
    o += srd(sQ, 48) + srd(sK, 50) + srd(sV, 52) + srd(sO, 54)
    if STAMP: o += srd(sWS, 56) + L(f's_mov_b32 s{sWS + 2}, {256 if STAMP == 2 else 0x100000}\ns_mov_b32 s{sWS + 3}, 0x20000')
    nf = 0
    for x in SO.split(','):
        if x[0] == 'q': o += [qld(4 * int(x[1]) + k, 0, v(O + 16 * int(x[1]) + 4 * k, 4)) for k in range(4)]
        elif x[0] == 'n': o += [qld(2 * int(x[1]) + k, 1, a_(aR + 8 * int(x[1]) + 4 * k, 4)) for k in range(2)]
        elif x == 'x': o += xld(0)
        elif x == 'b': p, d = blk(*blks.pop(0)); o += p + d
        elif x == 'U': o += setup()
        elif x == 'X': o += xs_block(0)
        elif x[0] == 's':
            for f in range(4 * int(x[1]), 4 * int(x[1]) + 4):
                o += [vwait(('Q', 0, f))] + scale4(O + 4 * f, SS[0] + 8 * (f & 1)) + [J(f'v_accvgpr_write_b32 a{aQ + 4 * f + i}, v{O + 4 * f + i}') for i in range(4)]
        if FINE and STAMP == 1 and (x[0] in 'sXU') == (FINE == 1) and nf < 12:
            o += L(f's_memrealtime s[100:101]\ns_waitcnt lgkmcnt(0)\ns_mov_b32 s{82 + nf}, s100'); nf += 1
    o += [J(f'v_writelane_b32 v0, s{82 + k}, {51 + k}') for k in range(nf)]
    return o


class St:
    def __init__(self, name, ins, earliest=-1, deadline=10 ** 9, after=None, prio=0):
        self.name = name; self.ins = list(ins); self.earliest = earliest; self.pos = 0; self.after = after; self.prio = prio
        self.dl = [deadline] * (len(self.ins) + 1)
        for k in range(len(self.ins) - 1, -1, -1): self.dl[k] = min(self.dl[k + 1], self.ins[k].info.get('d', 10 ** 9))
    def done(self): return self.pos >= len(self.ins)


VORD = [1, 5, 2, 6, 3, 7, 0, 4]
UNITS = [(O + 32 * t + 16 * hi + 8 * p, T + 2 * (t & 1), GO + p, t, hi * 128) for t in range(4) for hi in range(2) for p in range(2)]
UNITS += [(OX + 8 * u, T + 2 * u, GO + 2, 4 + u, 0) for u in range(2)]
def ustore(data, k, h): return J(f'buffer_store_dwordx4 {data}, v{UNITS[k][2]}, {s_(sO, 4)}, s{sOf + 6 * h + UNITS[k][3]} offen{f" offset:{UNITS[k][4]}" if UNITS[k][4] else ""}{STP if k < 16 else STX}', name='st')
def park(k): return a_(aQ + 4 * k, 4) if k < 16 else v(T + 8 + 4 * (k - 16), 4)


class G:
    def __init__(self):
        self.M = []; self.reads = []; self.S = []; self.last = {}; self.pos = {}; self.fix = {}; self.resv = set(); self.it = -1
        self.bar = {}; self.caps = []
    def at(self, g, xs): self.fix.setdefault(g, []).extend(xs)
    def top(self, i, ins):
        self.it = i; self.bar[i] = len(self.M) - 1; self.at(len(self.M) - 1, ins)
    def frag(self, reg, rd, it=None, e=None):
        f = {'reg': reg, 'rd': rd, 'e': max(self.last.get(reg, -1), self.bar[self.it] if e is None else e), 'first': None, 'it': self.it if it is None else it}
        self.reads.append(f); return f
    def use(self, m, *fs):
        for f in fs:
            if f['first'] is None: f['first'] = len(self.M)
            self.last[f['reg']] = len(self.M)
        for r in m.dst: self.pos['w', r] = len(self.M)
        self.M.append(m)
    def vread(self, b):
        self.vf = {}
        for i in range(8):
            dt = VORD[i]; r = aV + 4 * i
            self.vf[dt] = self.frag(r, [J(f'ds_read_b64_tr_b16 {a_(r + 2 * u, 2)}, v{VA + (dt & 3)} offset:{slotV(b) + (dt >> 2) * 1024 + u * 4096}') for u in range(2)])
    def qxread(self, adr, e):
        self.qx = {(u, k): self.frag(aQX + 16 * u + 4 * k, [J(f'ds_read_b128 {a_(aQX + 16 * u + 4 * k, 4)}, v{adr + (k & 1)} offset:{u * 4096 + (k >> 1) * 1024}')], it=99, e=e) for k in range(4) for u in range(2)}
    def qk(self, kb):
        b = kb & 1; q = aQ if kb < 32 else aR
        self.pos['qk', kb] = len(self.M)
        for hf in range(2):
            for k4 in range(4):
                r = aK + 4 * (4 * hf + k4)
                f = self.frag(r, [J(f'ds_read_b128 {a_(r, 4)}, v{KA + (k4 & 1)} offset:{slotK(kb) + hf * 4096 + (k4 >> 1) * 1024}')])
                for t in range(4):
                    d = v(SS[b] + 8 * t + 4 * hf, 4)
                    self.use(mfs(d, a_(r, 4), a_(q + 16 * t + 4 * k4, 4), '0' if k4 == 0 else d), f)
                    if k4 == 3: self.pos['s', kb, t, hf] = len(self.M) - 1
    def xqk(self, kb):
        for k4 in range(4):
            r = aX + 4 * ((k4 + 2) & 3)
            f = self.frag(r, [J(f'ds_read_b128 {a_(r, 4)}, v{KX + (k4 & 1)} offset:{slotK(kb) + (k4 >> 1) * 1024}')])
            for u in range(2):
                d = v(SX + 4 * u, 4)
                self.use(mfs(d, a_(r, 4), a_(aQX + 16 * u + 4 * k4, 4), '0' if k4 == 0 else d), f, self.qx[u, k4])
        self.pos['x', kb] = len(self.M) - 1
    def pv(self, kb):
        b = kb & 1; buf = (kb >> 1) & 1; z = kb % 32 == 0
        self.pos['pv', kb] = len(self.M)
        px = [self.frag(aX + 8 * b + 4 * u, [J(f'ds_read_b128 {a_(aX + 8 * b + 4 * u, 4)}, v{PXR} offset:{buf * 4096 + b * 2048 + u * 1024}')]) for u in range(2)]
        def o(t, dt):
            d = v(O + 32 * t + 4 * dt, 4); f = self.vf[dt]; self.pos.setdefault(('p', kb, t), len(self.M))
            self.use(mfs(d, a_(f['reg'], 4), v(SS[b] + 8 * t, 4), '0' if z else d), f)
        def lm(t):
            self.pos.setdefault(('p', kb, t), len(self.M)); self.pos['lm', kb, t] = len(self.M)
            self.use(mfs(v(LM, 4), a_(aC + 4 * t, 4), v(SS[b] + 8 * t, 4), '0' if z and t == 0 else v(LM, 4)))
        def x(h):
            f = self.vf[4 * h]
            for u in range(2):
                d = v(OX + 8 * u + 4 * h, 4)
                self.use(mfs(d, a_(f['reg'], 4), a_(px[u]['reg'], 4), '0' if z else d), f, px[u])
            self.pos['lx', kb, h] = len(self.M)
            self.use(mfs(v(LX, 4), a_(aC + 4 * h, 4), a_(px[h]['reg'], 4), '0' if z and h == 0 else v(LX, 4)), px[h])
        if kb % 32 == 31:
            for t in range(4):
                lm(t)
                for dt in range(8): o(t, dt)
            x(0); x(1)
        elif kb == 32:
            for t in range(4):
                for dt in range(8):
                    o(t, dt)
                    if t == 3 and dt & 1: lm(dt >> 1)
            x(0); x(1)
        else:
            for i in range(8):
                for t in range(4): o(t, VORD[i])
                if i < 4: lm(i)
                if VORD[i] & 3 == 0: x(VORD[i] >> 2)
        self.pos['pve', kb] = len(self.M) - 1
    def sm(self, kb):
        for t in range(4):
            prev = None; S = SS[kb & 1] + 8 * t; dl = self.pos['p', kb, t] - 2
            for hf in range(2):
                x = [J(f'v_exp_f32 v{S + 4 * hf + r}, v{S + 4 * hf + r}') for r in range(4)]
                x += [J(f'v_cvt_pk_bf16_f32 v{S + 2 * hf + k}, v{S + 4 * hf + 2 * k}, v{S + 4 * hf + 2 * k + 1}') for k in range(2)]
                prev = St(f'sm{kb}.{t}{hf}', x, self.pos['s', kb, t, hf], dl - (4 if hf == 0 else 0), after=prev); self.S.append(prev)
    def smx(self, kb):
        for u in range(2):
            S = SX + 4 * u
            x = [J(f'v_exp_f32 v{S + r}, v{S + r}') for r in range(4)]
            x += [J(f'v_cvt_pk_bf16_f32 v{S + k}, v{S + 2 * k}, v{S + 2 * k + 1}') for k in range(2)]
            x += [J(f'ds_write_b64 v{PXW}, {v(S, 2)} offset:{((kb >> 1) & 1) * 4096 + u * 1024}')]
            self.S.append(St(f'smx{kb}.{u}', x, self.pos['x', kb], self.bar[kb >> 1] - BARW))
    def vm(self, g, pre, c):
        while g in self.resv: g += 1
        self.resv.add(g); self.at(g - 1, pre); self.at(g, [c]); return g

    def drain(self, h, wE, wD):
        kb = 32 * h + 31; big = len(self.M) - 1
        def tag(xs, e=None, d=None):
            for c in xs:
                if e is not None: c.info['e'] = e
                if d is not None: c.info['d'] = d
            return xs
        n = len(UNITS); o = []
        direct = lambda k: h == 1 or (k >> 1) in DS
        dst = lambda k: UNITS[k][0] if k < 16 or direct(k) else T + 8 + 4 * (k - 16)
        dd = lambda k: min(wD.get(('v', UNITS[k][0]), big + 2), wD.get(('v', UNITS[k][0] + 4), big + 2)) - 2
        for k in range(n + 1):
            if k < n:
                b, r = UNITS[k][:2]
                if k < 16 and k & 3 == 0: o += tag(L(f'v_rcp_f32 v{r}, v{LM + (k >> 2)}\nv_rcp_f32 v{r + 1}, v{LM + (k >> 2)}'), self.pos['lm', kb, k >> 2], wD.get(('v', LM), big + 2) - 2)
                if k >= 16: o += tag(L(f'v_rcp_f32 v{r}, v{LX + k - 16}\nv_rcp_f32 v{r + 1}, v{LX + k - 16}'), self.pos['lx', kb, k - 16], wD.get(('v', LX), big + 2) - 2)
                for q in range(2):
                    e = wE['v', b + 4 * q]
                    o += tag([J(f'v_pk_mul_f32 {v(b + 4 * q + 2 * i, 2)}, {v(b + 4 * q + 2 * i, 2)}, {v(r, 2)}') for i in range(2)], e)
            if k >= 1: d = dst(k - 1); o += [J(f'v_permlane32_swap_b32 v{d + i}, v{d + 2 + i}') for i in range(2)]
            if k < n: o += tag([J(f'v_cvt_pk_bf16_f32 v{dst(k) + i}, v{b + 2 * i}, v{b + 2 * i + 1}') for i in range(4)], d=dd(k))
            if k >= 1:
                if direct(k - 1): o += tag([ustore(v(d, 4), k - 1, h)], d=dd(k - 1))
                elif k <= 16: o += tag([J(f'v_accvgpr_write_b32 a{aQ + 4 * (k - 1) + i}, v{d + i}') for i in range(4)], d=dd(k - 1))
        dr = St(f'drain{h}', o, self.pos['pv', kb], big if h else self.pos['pve', kb + 1] + 8); self.S.append(dr)
        c = tag(L(f"""
v_subrev_u32 v{T + 6}, s{sLo}, v{LM}
v_subrev_u32 v{T + 7}, s{sLo}, v{LM + 1}
v_max_u32 v{T + 6}, v{T + 6}, v{T + 7}
v_subrev_u32 v{T + 7}, s{sLo}, v{LM + 2}
v_cmp_lt_u32 s[48:49], s{sRg}, v{T + 6}
v_subrev_u32 v{T + 6}, s{sLo}, v{LM + 3}
v_max_u32 v{T + 6}, v{T + 6}, v{T + 7}
v_subrev_u32 v{T + 7}, s{sLo}, v{LX}
v_cmp_lt_u32 s[50:51], s{sRg}, v{T + 6}
v_subrev_u32 v{T + 6}, s{sLo}, v{LX + 1}
"""), d=wD.get(('v', LM), big + 2) - 2) + L(f"""
v_max_u32 v{T + 6}, v{T + 6}, v{T + 7}
s_lshl_b32 s{sF}, s{sF}, 3
v_cmp_lt_u32 s[52:53], s{sRg}, v{T + 6}
""")
        for k in range(3): c += [J(f's_cmp_lg_u64 s[{48 + 2 * k}:{49 + 2 * k}], 0\ns_cselect_b32 s55, {1 << k}, 0\ns_or_b32 s{sF}, s{sF}, s55')]
        self.S.append(St(f'chk{h}', c, self.pos['pve', kb], big if h else self.pos['pve', kb + 1] + 8))
        return dr

    def build(self, prefix):
        M = self.M; n = len(M); fix = self.fix
        items = []
        for f in self.reads:
            d = min(f['first'] - LEAD, self.bar.get(f['it'] + 1, 10 ** 9) - BARW)
            for r in f['rd']: items.append((f['e'], d, len(items), r, f))
        items.sort(key=lambda x: x[0]); ip = 0; act = []; lastg = -100
        for g in range(-1, n):
            while ip < len(items) and items[ip][0] <= g: act.append(items[ip][1:]); ip += 1
            k = 0
            while k < (4 if g < 0 else 1) and g not in self.resv and act:
                act.sort(key=lambda x: x[:2])
                urgent = any(x[0] - g <= URG + DSS * i for i, x in enumerate(act))
                if not (g - lastg >= DSS or urgent or g < 0): break
                x = act.pop(0); self.at(g, [x[2]]); lastg = g; k += 1
                assert g < x[3]['first'] and g < self.bar.get(x[3]['it'] + 1, 10 ** 9), (g, x[2].text)
        assert not act and ip == len(items)
        S = sorted(self.S, key=lambda s: s.earliest); sp = 0; act = []
        out = []; hist = list(prefix); rep = []; forced = {}
        for g in range(-1, n):
            while sp < len(S) and S[sp].earliest <= g: act.append(S[sp]); sp += 1
            if g >= 0: out.append(M[g]); hist.append(M[g])
            fx = fix.get(g, [])
            for c in fx: out.append(c); hist.append(c)
            used = sum(c.cost for c in fx)
            nds = sum(1 for c in fx if c.kind in ('dsr', 'dsw', 'dma', 'vld', 'vst'))
            cap = 0 if g < 0 else CAP
            for lo, hi, cp in self.caps:
                if lo <= g <= hi: cap = cp
            nval = 0
            while True:
                cand = []
                for s in act:
                    if s.done() or (s.after is not None and not s.after.done()): continue
                    c = s.ins[s.pos]; force = s.dl[s.pos] <= g
                    if c.info.get('e', -1) > g:
                        assert not force, (s.name, c.text); continue
                    if c.kind == 'dsw' and not force and (nval or nds): continue
                    cand.append((c.kind != 'dsw', s.prio, s.dl[s.pos], s, c, force))
                cand.sort(key=lambda x: x[:3])
                pick = None
                for _, _, _, s, c, force in cand:
                    if (used + c.cost <= cap or force) and rpad(hist, c) == 0:
                        pick = (s, c)
                        if used + c.cost > cap: forced[s.name] = forced.get(s.name, 0) + 1
                        break
                if pick is None:
                    fl = [x for x in cand if x[5]]
                    if fl:
                        p = J(f's_nop {rpad(hist, fl[0][4]) - 1}'); out.append(p); hist.append(p); used += p.cost
                        continue
                    break
                s, c = pick; s.pos += 1; s.lastg = g
                out.append(c); hist.append(c); used += c.cost
                if isv(c): nval += 1
                elif c.kind not in ('salu', 'wait'): nds += 1
            rep.append(used); hist = hist[-24:]; act = [s for s in act if not s.done()]
        assert not act and sp == len(S), [(s.name, s.pos) for s in act]
        if VERB:
            bs = sorted(self.bar.items()) + [(99, n - 1)]
            for (i, a), (_, b) in zip(bs, bs[1:]):
                r = rep[a + 1:b + 1]
                print(f'; it {i}: n={b - a} est={sum(max(16, x + 6.5) for x in r):.0f} free={sum(1 for x in r if x < 4.8)}', ' '.join('%d' % x for x in r) if VERB > 1 else '', file=sys.stderr)
            print('; forced', forced, file=sys.stderr)
        return out


def lgk(seq):
    out = []; t = 0; pipe = 0; q = []
    for c in seq:
        if c.kind == 'label': out.append(c); continue
        if c.kind == 'wait':
            k = parse_wait(c.text)
            if k is not None: del q[:max(0, len(q) - k)]
        else:
            touch = c.src | c.dst
            k = -1
            for idx, (regs, ti) in enumerate(q):
                if regs & touch and not (c.kind == 'dsr' and not (regs & c.src)): k = idx
            if len(q) >= 15 and c.kind in ('dsr', 'dsw'): k = max(k, 0)
            if k >= 0:
                while k + 1 < len(q) and t - q[k + 1][1] >= SETTLE: k += 1
                w = J(f's_waitcnt lgkmcnt({len(q) - 1 - k})', tag='autowait'); w.info['age'] = t - q[k][1]
                out.append(w); del q[:k + 1]
        if c.kind == 'mfma':
            t = max(t, pipe); pipe = t + c.mlen
        if c.kind in ('dsr', 'dsw'): q.append((set(c.dst), t))
        t += c.cost
        out.append(c)
    return out


def vmfix(seq):
    ops = []; done = -1; out = []
    for c in seq:
        if c.kind in ('dma', 'vst', 'vld'): ops.append(c.info.get('name'))
        elif c.kind == 'wait' and 'need' in c.info:
            k = -1
            for nm in c.info['need']:
                idx = [i for i, x in enumerate(ops) if x == nm]
                assert len(idx) == (1 if nm[0] == 'Q' else 2), (nm, idx)
                k = max(k, idx[-1])
            if k <= done:
                if not c.info['lg']: continue
                c.text = 's_waitcnt lgkmcnt(0)'
            else:
                done = k; nn = len(ops) - 1 - k
                assert nn <= 63
                c.text = c.text.replace('vmcnt(0)', f'vmcnt({nn})')
                if VERB: print('; vm', c.info['need'][-1], nn, end=' ', file=sys.stderr)
        out.append(c)
    if VERB: print(file=sys.stderr)
    return out


def ending():
    o = L('L_fin:')
    if STAMP:
        pre, post = stamp(18)
        o += L('s_waitcnt vmcnt(0)') + pre + L('s_waitcnt lgkmcnt(0)') + post
    if STAMP == 2:
        sel = [32 + x for x in (1, 2, 4, 6, 8, 10, 11, 13, 15, 17, 18)] + [2, 10, 18]
        o += L('v_mov_b32 v23, s96\ns_mov_b32 exec_hi, 0\nv_mov_b32 v23, s94\ns_mov_b64 exec, -1\nv_sub_u32 v22, v0, v23\nv_mov_b32 v21, 0')
        o += [J(f'v_writelane_b32 v21, {8 + 4 * k}, {x}') for k, x in enumerate(sel)]
        m = sum(1 << x for x in sel)
        o += L(f's_mov_b32 exec_lo, {hex(m & 0xffffffff)}\ns_mov_b32 exec_hi, {hex(m >> 32)}\ns_nop 4\nbuffer_atomic_add v22, v21, {s_(sWS, 4)}, 0 offen sc1')
        o += L(f's_mov_b64 exec, 1\ns_not_b32 s48, s96\nv_mov_b32 v16, s48\nv_mov_b32 v17, s100\nbuffer_atomic_umax v16, off, {s_(sWS, 4)}, 0 sc1\nbuffer_atomic_umax v17, off, {s_(sWS, 4)}, 0 offset:4 sc1\ns_mov_b64 exec, -1')
    elif STAMP:
        o += L(f'''
v_mov_b32 v16, s96
v_mov_b32 v17, s97
v_mov_b32 v18, s100
v_mov_b32 v19, s101
s_lshl_b32 s48, s2, 6
s_lshl_b32 s49, s{sW}, 4
s_add_u32 s48, s48, s49
v_mov_b32 v20, 0
v_mov_b32 v22, v0
v_mov_b32 v23, v0
v_permlane32_swap_b32 v22, v23
v_subrev_u32 v21, {PXL}, v{PXR}
v_lshrrev_b32 v21, 1, v21
s_lshl_b32 s49, s48, 5
s_add_u32 s49, s49, 0x40000
buffer_store_dwordx2 v[22:23], v21, {s_(sWS, 4)}, s49 offen
s_mov_b64 exec, 1
buffer_store_dwordx4 v[16:19], v20, {s_(sWS, 4)}, s48 offen
s_mov_b64 exec, -1
''')
    o += L(f's_cmp_lg_u32 s{sF}, 0\ns_cbranch_scc1 L_slow\nL_end:\ns_endpgm')
    return o


def slow():
    sB = sT + 1; sR = sT + 2; sKV = sT + 3; sJ = sT + 4; sY = sT + 5; sP = sT + 7
    LN = 1; VO = 2; VAs = 3; VD = 5; m = 6; l = 7; t = 8; GX = 13; Q = 128; OO = 160; KF = 16; S = 48; VF = 64; QT = 240
    o = L(f'''
L_slow:
s_waitcnt vmcnt(0) lgkmcnt(0)
s_and_b32 s{sB}, s{sF}, 0x24
s_cbranch_scc0 L_sl1
s_barrier
s_cmp_eq_u32 s{sW}, 0
s_cbranch_scc1 L_sl1
s_and_b32 s{sF}, s{sF}, 0x1b
s_cbranch_scc0 L_end
L_sl1:
v_subrev_u32 v{LN}, {PXL}, v{PXR}
v_lshrrev_b32 v{LN}, 4, v{LN}
v_and_b32 v{VO}, 31, v{LN}
v_lshrrev_b32 v{t}, 5, v{LN}
v_lshlrev_b32 v{VO}, 8, v{VO}
v_lshl_add_u32 v{GX}, v{t}, 5, v{VO}
v_lshl_add_u32 v{VO}, v{t}, 4, v{VO}
v_lshrrev_b32 v17, 3, v{LN}
v_and_b32 v18, 7, v{LN}
v_and_b32 v19, 2, v17
v_lshlrev_b32 v19, 1, v19
v_xor_b32 v18, v18, v19
v_lshlrev_b32 v17, 8, v17
v_lshl_add_u32 v{VD}, v18, 4, v17
v_bfe_u32 v16, v{LN}, 2, 2
v_lshl_add_u32 v18, v{t}, 2, v16
v_lshlrev_b32 v18, 7, v18
v_lshrrev_b32 v16, 1, v16
v_lshl_add_u32 v18, v16, 6, v18
v_and_b32 v16, 1, v{LN}
v_lshl_add_u32 v18, v16, 5, v18
v_bfe_u32 v16, v{LN}, 4, 1
v_lshl_add_u32 v18, v16, 4, v18
v_bfe_u32 v16, v{LN}, 1, 1
v_lshl_add_u32 v18, v16, 3, v18
s_lshl_b32 s{sP}, s{sW}, 13
v_add_u32 v{VAs}, s{sP}, v18
v_xor_b32 v{VAs + 1}, 64, v{VAs}
L_sl2:
s_ff1_i32_b32 s{sB}, s{sF}
s_bitset0_b32 s{sF}, s{sB}
s_cmp_ge_u32 s{sB}, 3
s_cselect_b32 s{sR}, 0, {HQ}
s_cselect_b32 s{sKV}, 0, {HK}
s_cselect_b32 s{sY}, 3, 0
s_sub_u32 s{sB}, s{sB}, s{sY}
s_lshl_b32 s{sY}, s2, 19
s_add_u32 s{sKV}, s{sKV}, s{sY}
s_lshl_b32 s{sY}, s{sB}, 13
s_add_u32 s{sY}, s{sY}, s{sQo}
s_add_u32 s{sJ}, s{sQb}, 0x10000
s_cmp_eq_u32 s{sB}, 2
s_cselect_b32 s{sY}, s{sJ}, s{sY}
s_add_u32 s{sR}, s{sR}, s{sY}
''')
    o += [J(f'buffer_load_dwordx4 {v(Q + 4 * k, 4)}, v{VO}, {s_(sQ, 4)}, s{sR} offen offset:{32 * k}') for k in range(8)]
    o += [J(f'v_mov_b64 {v(OO + 2 * k, 2)}, 0') for k in range(32)]
    o += L(f'v_mov_b32 v{m}, 0xff800000\nv_mov_b32 v{l}, 0\ns_mov_b32 s{sJ}, 0\ns_waitcnt vmcnt(0)')
    for k in range(8): o += scale4(Q + 4 * k, QT)
    o += L('L_sl3:')
    o += [J(f'buffer_load_dwordx4 {v(KF + 4 * k, 4)}, v{VO}, {s_(sK, 4)}, s{sKV} offen offset:{32 * k}') for k in range(8)]
    for w in range(4):
        o += L(f's_add_u32 m0, s{sP}, {(w >> 1) * 4096 + (w & 1) * 1024}\ns_add_u32 s{sY}, s{sKV}, {(w >> 1) * 4096 + (w & 1) * 128}')
        o += [dma(VD, sV, sY, 0, None), dma(VD, sV, sY, 2048, None)]
    o += L('s_waitcnt vmcnt(0)')
    o += [mfma(v(S, 16), v(KF + 4 * k, 4), v(Q + 4 * k, 4), '0' if k == 0 else v(S, 16)) for k in range(8)]
    for s in range(2):
        for d in range(4):
            o += [J(f'ds_read_b64_tr_b16 {v(VF + 16 * s + 4 * d + 2 * u, 2)}, v{VAs + (d & 1)} offset:{(2 * s + u) * 2048 + (d >> 1) * 1024}') for u in range(2)]
        o += L('s_waitcnt lgkmcnt(0)')
    o += L(f'v_max3_f32 v{t}, v{S}, v{S + 1}, v{m}')
    o += [J(f'v_max3_f32 v{t}, v{t}, v{S + 2 * k}, v{S + 2 * k + 1}') for k in range(1, 8)]
    o += L(f'''v_mov_b32 v{t + 1}, v{t}
v_permlane32_swap_b32 v{t}, v{t + 1}
v_max_f32 v{t}, v{t}, v{t + 1}
v_sub_f32 v{t + 1}, v{m}, v{t}
v_mov_b32 v{m}, v{t}
v_exp_f32 v{t + 1}, v{t + 1}''')
    o += [J(f'v_sub_f32 v{S + k}, v{S + k}, v{m}') for k in range(16)]
    o += L(f'v_mul_f32 v{l}, v{l}, v{t + 1}')
    o += [J(f'v_mul_f32 v{OO + k}, v{OO + k}, v{t + 1}') for k in range(64)]
    o += [J(f'v_exp_f32 v{S + k}, v{S + k}') for k in range(16)]
    o += [J(f'v_add_f32 v{l}, v{l}, v{S + k}') for k in range(16)]
    o += [J(f'v_cvt_pk_bf16_f32 v{S + 8 * s + k}, v{S + 8 * s + 2 * k}, v{S + 8 * s + 2 * k + 1}') for s in range(2) for k in range(4)]
    for s in range(2):
        for d in range(4):
            o.append(mfma(v(OO + 16 * d, 16), v(VF + 16 * s + 4 * d, 4), v(S + 8 * s, 4), v(OO + 16 * d, 16)))
    o += L(f'''s_nop 15
s_add_u32 s{sKV}, s{sKV}, 0x2000
s_add_u32 s{sJ}, s{sJ}, 1
s_cmp_lt_u32 s{sJ}, 32
s_cbranch_scc1 L_sl3
v_mov_b32 v{t}, v{l}
v_permlane32_swap_b32 v{l}, v{t}
v_add_f32 v{l}, v{l}, v{t}
v_rcp_f32 v{l}, v{l}''')
    o += [J(f'v_mul_f32 v{OO + k}, v{OO + k}, v{l}') for k in range(64)]
    o += [J(f'v_cvt_pk_bf16_f32 v{OO + k}, v{OO + 2 * k}, v{OO + 2 * k + 1}') for k in range(32)]
    o += [J(f'buffer_store_dwordx4 {v(OO + 4 * k, 4)}, v{GX}, {s_(sO, 4)}, s{sR} offen offset:{64 * (k >> 1) + 16 * (k & 1)}') for k in range(8)]
    o += L(f's_waitcnt vmcnt(0)\ns_cmp_lg_u32 s{sF}, 0\ns_cbranch_scc1 L_sl2\ns_endpgm')
    return fixh(o)


def main():
    blks = list(BLKS)
    st = startup(blks)
    g = G()
    def top(i):
        k = 1 if i < 0 else (2 + i // 2 if i % 2 == 0 else None)
        pre, post = stamp(k) if k else ([], [])
        g.top(i, pre + [vwait(*[x for x in BLKS if grp(*x) == i], lg=True)] + post + L('s_barrier'))
    top(-1)
    g.qxread(LM, -1)
    g.qk(0); g.xqk(0); g.vread(0); g.qk(1)
    for i in range(31):
        top(i)
        if i == 16: wE = {k[1]: p for k, p in g.pos.items() if k[0] == 'w'}
        g.pv(2 * i)
        if i == 16: wD = {}; [wD.setdefault(r, p) for p in range(g.pos['pv', 32], len(g.M)) for r in g.M[p].dst]
        g.vread(2 * i + 1)
        g.qk(2 * i + 2); g.xqk(2 * i + 2)
        if i == 14:
            g.at(g.bar[14] + 1, L(f'v_add_u32 v{T + 14}, {QXL}, v{KA}')); g.at(g.bar[14] + 2, L(f'v_add_u32 v{T + 15}, {QXL}, v{KA + 1}'))
            g.qxread(T + 14, g.bar[14] + 4)
        g.pv(2 * i + 1); g.vread(2 * i + 2); g.qk(2 * i + 3)
    top(31); g.pv(62); g.vread(63); g.pv(63)
    for kb in range(64): g.sm(kb)
    for kb in range(0, 64, 2): g.smx(kb)
    g.drain(0, wE, wD)
    g.drain(1, {k[1]: p for k, p in g.pos.items() if k[0] == 'w'}, {})
    g.caps = [(g.pos['pv', 31] + 4, g.pos['pve', 32], CAPD), (g.pos['pv', 63] + 4, len(g.M), CAPT), (0, g.bar[0], CAPP), (g.bar[31], g.pos['pv', 63] + 3, CAPP)]
    nq = sum(1 for x in SO.split(',') if x[0] == 'n'); ldit = {p: -1 for p in range(nq)}
    stp = [p for p in range(9) if p not in DS]
    for i in range(-1, 31):
        b0 = g.bar[i] + 1; nb = min(NB.get(i, 4), len(blks))
        while nb and grp(*blks[nb - 1]) > i + 3: nb -= 1
        if i < 0: pos = list(range(18, 70, 3)); xg = [4, 8, 12]
        else:
            pos = DMG if nb <= 4 else [6 + (134 * k) // (2 * nb - 1) for k in range(2 * nb)]
            xg = DMG[2 * nb::2] + XG if nb < 4 else XG
        for k in range(nb):
            p, d = blk(*blks.pop(0))
            g.vm(b0 + pos[2 * k], [c for c in p if c.kind != 'nop'], d[0]); g.vm(b0 + pos[2 * k + 1], [], d[1])
        prs = []
        if XL == i: prs.append(xld(1))
        for _ in range(QL.get(i, 0)): prs.append([qld(2 * nq + k, 1, a_(aR + 8 * nq + 4 * k, 4)) for k in range(2)]); ldit[nq] = i; nq += 1
        for _ in range(ST.get(i, 0)):
            if stp: p = stp.pop(0); prs.append([ustore(park(2 * p + k), 2 * p + k, 0) for k in range(2)])
        for pr, x in zip(prs, xg):
            x = g.vm(b0 + x, [], pr[0]); g.vm(x + XD, [], pr[1])
        assert len(prs) <= len(xg)
    assert not blks and nq == 8 and not stp, (blks, nq, stp)
    xs = St('xs', xs_block(1), g.bar[XL + QLAG], g.bar[14] - BARW, prio=1); g.S.append(xs)
    dn = [i for i in sorted(DN) for _ in range(DN[i])]
    prev = None; seq = []
    for f in range(16):
        if f < len(dn): e = g.bar[dn[f]] + 40; seq.append((e, St(f'q{f}', qfrag(f, T), e, e, prio=1)))
        else: e = g.bar[min(14, ldit[f >> 1] + QLAG)]; seq.append((e, St(f'q{f}', qfrag(f, T, PK), e, g.pos['qk', 32] - 3, prio=1)))
    seq.append((xs.earliest, xs)); seq.sort(key=lambda x: x[0])
    for _, s in seq:
        s.after = prev; prev = s
        if s is not xs: g.S.append(s)
    start = fixh(lgk(st))
    main_ = g.build(start[-24:])
    if VERB: print('; last gaps:', [(s.name, [i for i in g.bar if g.bar[i] <= s.lastg][-1]) for _, s in seq], file=sys.stderr)
    prog = vmfix(start + main_)
    prog = fixh(lgk(prog))
    if VERB: print('; nops', sum(1 for c in prog if c.kind == 'nop'), 'young waits', [int(c.info['age']) for c in prog if c.tag == 'autowait' and c.info['age'] < 150], file=sys.stderr)
    prog += fixh(ending(), prog[-24:]) + slow()
    out = [f'; @launch grid=(256,1,1) block=(256,1,1) lds={LDSZ}',
           '.amdgcn_target "amdgcn-amd-amdhsa--gfx950"', '.text', f'.globl {NAME}', '.p2align 8', f'.type {NAME},@function', f'{NAME}:']
    for c in prog: out.append(c.text)
    out += ['.section .rodata,"a"', '.p2align 6', f'.amdhsa_kernel {NAME}',
            '  .amdhsa_next_free_vgpr 512', '  .amdhsa_next_free_sgpr 102', '  .amdhsa_accum_offset 256',
            '  .amdhsa_group_segment_fixed_size 0', '  .amdhsa_kernarg_size 48', '  .amdhsa_user_sgpr_count 2',
            '  .amdhsa_user_sgpr_kernarg_segment_ptr 1', '  .amdhsa_system_sgpr_workgroup_id_x 1', '.end_amdhsa_kernel']
    print('\n'.join(out))


main()
```

```python
import os, sys, struct, math
sys.path.insert(0, os.path.dirname(os.path.abspath(__file__)))
from asmlib import *

E = lambda k, d: int(os.environ.get(k, d))
F = lambda k, d: float(os.environ.get(k, d))
EL = lambda k, d: [int(x) for x in os.environ.get(k, d).split(',') if x]
ED = lambda k, d: dict(tuple(int(y) for y in x.split(':')) for x in os.environ.get(k, d).split(',') if x)
STAMP = E('STAMP', 0); VERB = E('VERB', 0); FINE = E('FINE', 0)
CAP = F('CAP', 9.5); DSC = F('DSC', 4.0); CAPD = F('CAPD', 9.5); CAPT = F('CAPT', 9.5); CAPP = F('CAPP', 14)
SETTLE = E('SETTLE', 170)
LEAD = E('LEAD', 12); BARW = E('BARW', 8); URG = E('URG', 4); DSS = E('DSS', 2)
DMG = EL('DMG', '6,22,38,54,70,86,102,118')
XG = EL('XG', '14,46,78,110,30,62,94,126'); XD = E('XD', 1)
LDP = os.environ.get('LDP', ' nt'); STP = os.environ.get('STP', ' nt'); STX = os.environ.get('STX', '')
SO = os.environ.get('SO', 'q0,q1,x,q2,q3,b,U,s0,b,b,s1,X,b,b,s2,b,b,s3')
NB = ED('NB', '-1:4,8:5,9:5,10:5,11:5')
QL = ED('QL', '-1:2,0:2,1:2,2:2'); XL = E('XL', 8)
QLAG = E('QLAG', 3)
DN = ED('DN', '2:4,3:4,4:4,5:4')
ST = ED('ST', '18:1,20:1,22:1,24:1,26:1,28:1,29:2,30:1')
DS = EL('DS', '')
NOD = EL('NOD', ''); PK = E('PK', 0); SWM = E('SWM', 1); D0 = E('D0', 8); DSTEP = F('DSTEP', 5.3); DLAG = E('DLAG', 3)
NAME = 'standalone__mha_softmax__near_ridge_kernel'
KA = 1; KX = 3; VA = 5; PXW = 9; PXR = 10; VOD = 11; QN = 12; GO = 13
SS = [16, 48]; SX = 80; OX = 88; LM = 104; LX = 108; T = 112; O = 128
aQ = 0; aQX = 64; aR = 96; aV = 160; aK = 192; aX = 224; aC = 240
sQ, sK, sV, sO = 4, 8, 12, 16
sW, sN, sQb, sMask, sC, sLo, sRg, sM, sF, sQo, sXo, sNv = 20, 21, 22, 25, 26, 28, 29, 30, 34, 35, 36, 37
sOf = 68
sT = 48; sWS = 64; sP = 40; PFN = 4
PXL = 0x20000; QXL = 0x22000; LDSZ = 0x24000
f2u = lambda x: struct.unpack('<I', struct.pack('<f', x))[0]
CSC = f2u(math.log2(math.e) / math.sqrt(128.0))
LOB = f2u(2.0 ** -20); HIB = f2u(2.0 ** 30)
HK = 262144; HQ = 73728

v = lambda a, n=1: f'v{a}' if n == 1 else f'v[{a}:{a + n - 1}]'
a_ = lambda a, n=1: f'a{a}' if n == 1 else f'a[{a}:{a + n - 1}]'
s_ = lambda a, n=1: f's{a}' if n == 1 else f's[{a}:{a + n - 1}]'
COST = {'valu': 4.65, 'trans': 8.7, 'salu': 0.3, 'wait': 0.3, 'barrier': 1.0, 'dsw': DSC, 'dsr': DSC, 'vst': 8.0, 'dma': 9.0, 'vld': 9.0, 'smem': 1.0, 'branch': 1.0}


class I2(I):
    __slots__ = ('info', 'mlen')


def J(text, **kw):
    x = I2(text)
    if x.kind in COST: x.cost = COST[x.kind]
    if x.kind == 'smem': x.kind = 'salu'
    if x.op.startswith('v_permlane'): x.cost = 8.7
    x.tag = kw.get('tag'); x.earliest = kw.get('earliest'); x.info = kw; x.mlen = 0
    if x.kind == 'mfma': x.mlen = 16 if '16x16' in x.op else 32
    if x.op.startswith('v_writelane'): x.src = x.src | x.dst
    if x.op.startswith('s_bitcmp'): x.src = x.src | (x.dst - {('scc', 0)}); x.dst = {('scc', 0)}
    return x


def L(txt, **kw): return [J(x.strip(), **kw) for x in txt.strip().split('\n') if x.strip()]
def mfma(d, a, b, c): return J(f'v_mfma_f32_32x32x16_bf16 {d}, {a}, {b}, {c}')
def mfs(d, a, b, c): return J(f'v_mfma_f32_16x16x32_bf16 {d}, {a}, {b}, {c}')
def isv(c): return c.kind in ('valu', 'trans')


def rpad(prev, c):
    dist = 0; pad = 0
    for p in reversed(prev):
        if p.kind == 'label': continue
        n = need_states(p, c)
        if n and p.kind == 'mfma' and p.mlen == 16: n = {12: 8, 10: 6, 7: 3}[n]
        if n > dist: pad = max(pad, n - dist)
        dist += p.states
        if dist >= 13: break
    return pad


def fixh(seq, prefix=()):
    out = list(prefix); n0 = len(out)
    for c in seq:
        if c.kind != 'label':
            pad = rpad(out[-24:], c)
            if pad: out.append(J(f's_nop {pad - 1}'))
        out.append(c)
    return out[n0:]


def edge_pad(prev, nxt):
    for k in range(0, 14):
        seq = list(prev[-24:]) + ([J(f's_nop {k - 1}')] if k else [])
        ok = True
        for c in nxt[:16]:
            if c.kind != 'label' and rpad(seq, c): ok = False; break
            seq.append(c)
        if ok: return k
    raise RuntimeError('edge')


def dma(voff, srd, soff, imm, name):
    o = f' offset:{imm}' if imm else ''
    return J(f'buffer_load_dwordx4 {v(voff)}, {s_(srd, 4)}, {s_(soff)} offen{o}{LDP} lds', name=name)


slotK = lambda b: ((b - 2) & 7) * 0x2000
slotV = lambda b: ((b - 1) & 7) * 0x2000
grp = lambda kind, b: ((b - 2) if kind == 'K' else (b - 1)) >> 1
BORD = os.environ.get('BORD', 'VKVK')
BLKS = [('K', 0), ('K', 1), ('V', 0)]
for j in range(32):
    nx = {'V': 2 * j + 1, 'K': 2 * j + 2}
    for c in BORD:
        if nx[c] < 64: BLKS.append((c, nx[c]))
        nx[c] += 1


def blk(kind, b):
    sn = sN if kind == 'K' else sNv
    pre = [J(f's_add_u32 m0, s{sM}, {hex(slotK(b) if kind == "K" else slotV(b) + 0x10000)}')]
    pre.append(J(f's_add_u32 s{sn}, s{sn}, 0x2000') if b else J('s_nop 0'))
    srd = sK if kind == 'K' else sV
    return pre, [dma(VOD, srd, sn, 0, (kind, b)), dma(VOD, srd, sn, 2048, (kind, b))]


def vwait(*names, lg=False): return J('s_waitcnt vmcnt(0)' + (' lgkmcnt(0)' if lg else ''), need=list(names), lg=lg)
def qld(f, h, dst): return J(f'buffer_load_dwordx4 {dst}, v{QN}, {s_(sQ, 4)}, s{sOf + 6 * h + (f >> 2)} offen offset:{(1024 if E("DIAG", 0) & 16 else 64) * (f & 3)}{LDP}'.replace(f'v{QN},', 'v80,' if E('DIAG', 0) & 16 and h == 0 else f'v{QN},'), name=('Q', h, f))
def xld(h): return [J(f'buffer_load_dwordx4 {v(T + 8 + 4 * k, 4)}, v{VOD}, {s_(sQ, 4)}, s{sOf + 6 * h + 4} offen{" offset:2048" if k else ""}{LDP}', name=('X', h)) for k in range(2)]


def scale4(r, t, pk=1):
    o = [J(f'v_lshlrev_b32 v{t + 2 * i}, 16, v{r + i}') for i in range(4)]
    o += [J(f'v_and_b32 v{t + 2 * i + 1}, s{sMask}, v{r + i}') for i in range(4)]
    if pk: o += [J(f'v_pk_mul_f32 {v(t + 2 * i, 2)}, {v(t + 2 * i, 2)}, {s_(sC, 2)}') for i in range(4)]
    else: o += [J(f'v_mul_f32 v{t + i}, s{sC}, v{t + i}') for i in range(8)]
    o += [J(f'v_cvt_pk_bf16_f32 v{r + i}, v{t + 2 * i}, v{t + 2 * i + 1}') for i in range(4)]
    return o


def xs_block(h):
    o = [vwait(('X', h))] + scale4(T + 8, T, 1 - h) + scale4(T + 12, T, 1 - h)
    o += L(f'v_add_u32 v{T}, s{sXo}, v{PXR}')
    return o + [J(f'ds_write_b128 v{T}, {v(T + 8 + 4 * k, 4)} offset:{2048 * k}') for k in range(2)]


def qfrag(f, t, pk=1):
    o = [vwait(('Q', 1, f))] + [J(f'v_accvgpr_read_b32 v{t + 2 * i + 1}, a{aR + 4 * f + i}') for i in range(4)]
    o += [J(f'v_lshlrev_b32 v{t + 2 * i}, 16, v{t + 2 * i + 1}') for i in range(4)]
    o += [J(f'v_and_b32 v{t + 2 * i + 1}, s{sMask}, v{t + 2 * i + 1}') for i in range(4)]
    if pk: o += [J(f'v_pk_mul_f32 {v(t + 2 * i, 2)}, {v(t + 2 * i, 2)}, {s_(sC, 2)}') for i in range(4)]
    else: o += [J(f'v_mul_f32 v{t + i}, s{sC}, v{t + i}') for i in range(8)]
    o += [J(f'v_cvt_pk_bf16_f32 v{t + 2 * i}, v{t + 2 * i}, v{t + 2 * i + 1}') for i in range(4)]
    return o + [J(f'v_accvgpr_write_b32 a{aR + 4 * f + i}, v{t + 2 * i}') for i in range(4)]


def stamp(idx):
    if not STAMP: return [], []
    return L('s_memtime s[98:99]\ns_memrealtime s[100:101]'), L(f'v_writelane_b32 v0, s98, {idx}\nv_writelane_b32 v0, s100, {idx + 32}')


def setup():
    o = L(f"""
s_mov_b32 s{sMask}, 0xffff0000
s_mov_b32 s{sC}, {hex(CSC)}
s_mov_b32 s{sC + 1}, {hex(CSC)}
s_mov_b32 s{sLo}, {hex(LOB)}
s_mov_b32 s{sRg}, {hex(HIB - LOB)}
s_mov_b32 s{sF}, 0
s_add_u32 s{sXo}, s{sM}, {QXL - PXL}
v_lshrrev_b32 v18, 3, v16
v_lshlrev_b32 v18, 11, v18
v_and_b32 v19, 7, v16
v_lshl_add_u32 v18, v19, 7, v18
v_and_b32 v19, 6, v16
v_xor_b32 v19, v19, v17
v_lshl_add_u32 v{KA}, v19, 4, v18
v_xor_b32 v{KA + 1}, 64, v{KA}
s_lshl_b32 s48, s{sW}, 12
v_add_u32 v{KX}, s48, v{KA}
v_add_u32 v{KX + 1}, s48, v{KA + 1}
v_lshlrev_b32 v{PXR}, 4, v0
v_add_u32 v{PXR}, {PXL}, v{PXR}
s_lshl_b32 s48, s58, 11
s_lshl_b32 s49, s59, 3
s_add_u32 s48, s48, s49
v_add_u32 v{PXW}, s48, v{PXR}
v_lshrrev_b32 v18, 5, v0
v_lshlrev_b32 v18, 11, v18
v_bfe_u32 v19, v0, 2, 3
v_lshl_add_u32 v18, v19, 7, v18
v_and_b32 v19, 6, v19
v_and_b32 v20, 1, v0
v_or_b32 v19, v19, v20
v_lshl_add_u32 v18, v19, 4, v18
v_and_b32 v20, 2, v0
v_lshl_add_u32 v18, v20, 2, v18
s_lshl_b32 s48, s{sW}, 5
v_xor_b32 v{GO}, s48, v{QN}
v_xor_b32 v{GO + 1}, 64, v{GO}
v_and_b32 v{GO + 2}, 32, v{QN}
v_mad_u32_u24 v{GO + 2}, v{GO + 2}, 3, v{QN}
v_add_u32 v{GO + 2}, s48, v{GO + 2}
s_add_u32 s48, s48, 0x10000
v_xor_b32 v{VA}, s48, v18
v_xor_b32 v{VA + 1}, 32, v{VA}
v_xor_b32 v{VA + 2}, 64, v{VA}
v_xor_b32 v{VA + 3}, 0x60, v{VA}
v_and_b32 v18, 3, v0
v_mov_b32 v19, 0x3f803f80
v_add_u32 v{LM}, {QXL}, v{KA}
v_add_u32 v{LM + 1}, {QXL}, v{KA + 1}
""")
    if E('DIAG', 0) & 8: o += L(f'v_lshrrev_b32 v20, 3, v0\nv_lshlrev_b32 v20, 8, v20\nv_and_b32 v{GO}, 7, v0\nv_lshl_add_u32 v{GO}, v{GO}, 4, v20\nv_add_u32 v{GO + 1}, 2048, v{GO}\ns_lshl_b32 s48, s{sW}, 10\nv_lshlrev_b32 v20, 4, v0\nv_add_u32 v{GO + 2}, s48, v20')
    o += L(f's_add_u32 s{sOf + 5}, s{sOf + 4}, 4096')
    o += [J(f's_add_u32 s{sOf + 6 + k}, s{sOf + k}, {HQ}') for k in range(6)]
    for t in range(4):
        o += L(f'v_cmp_eq_u32 vcc, {t}, v18\nv_cndmask_b32 v20, 0, v19, vcc')
        o += [J(f'v_accvgpr_write_b32 a{aC + 4 * t + k}, v20') for k in range(4)]
    if STAMP: o += L(f'v_writelane_b32 v0, s94, 0\nv_writelane_b32 v0, s96, 32')
    return o


def startup(blks):
    o = L(f"""
s_cmp_ge_u32 s2, 256
s_cbranch_scc1 L_end
s_load_dwordx4 s[48:51], s[0:1], 0
s_load_dwordx4 s[52:55], s[0:1], 16
""")
    if E('PF', 1):
        o += L(f'''
s_getpc_b64 s[{sP}:{sP + 1}]
L_pc:
s_mov_b32 s{sP + 2}, L_end-L_pc
s_mov_b32 s{sP + 3}, 0x20000
s_and_b32 s{sP + 1}, s{sP + 1}, 0xffff
s_bfe_u32 s62, s2, {hex(0x20003 if PFN == 4 else 0x10003)}
s_lshl_b32 s62, s62, 15
v_lshlrev_b32 v21, 7, v0
''') + [J(f'buffer_load_dword v40, v21, {s_(sP, 4)}, s62 offen', name='pf')]
    if STAMP: o += L(f's_load_dwordx2 s[56:57], s[0:1], {32 if STAMP == 2 else 40}\ns_memtime s[94:95]\ns_memrealtime s[96:97]')
    o += L(f"""
v_lshrrev_b32 v16, 6, v0
v_and_b32 v0, 63, v0
v_readfirstlane_b32 s{sW}, v16
v_and_b32 v16, 15, v0
v_lshlrev_b32 v80, 4, v0
v_lshrrev_b32 v17, 4, v0
v_lshlrev_b32 v{QN}, 8, v16
v_lshl_add_u32 v{QN}, v17, 4, v{QN}
v_lshrrev_b32 v18, 3, v0
v_and_b32 v19, 6, v18
v_and_b32 v20, 7, v0
v_xor_b32 v19, v19, v20
v_lshlrev_b32 v18, 8, v18
v_lshl_add_u32 v{VOD}, v19, 4, v18
s_lshr_b32 s58, s{sW}, 1
s_and_b32 s59, s{sW}, 1
s_mul_i32 s{sQb}, s2, {2 * HQ}
s_lshl_b32 s60, s{sW}, 14
s_add_u32 s{sQo}, s{sQb}, s60
s_lshl_b32 s{sN}, s2, 19
s_mov_b32 s{sNv}, s{sN}
s_lshl_b32 s61, s58, 12
s_lshl_b32 s62, s59, 10
s_add_u32 s{sM}, s61, s62
s_lshl_b32 s63, s59, 7
s_add_u32 s63, s63, s61
v_add_u32 v{VOD}, s63, v{VOD}
s_mov_b32 s{sOf}, s{sQo}
s_add_u32 s{sOf + 1}, s{sQo}, 4096
s_add_u32 s{sOf + 2}, s{sQo}, 8192
s_add_u32 s{sOf + 3}, s{sQo}, 12288
s_add_u32 s{sOf + 4}, s{sQb}, 0x10000
s_mov_b32 s{sK + 2}, 134217728
s_mov_b32 s{sV + 2}, 134217728
s_mov_b32 s{sQ + 2}, 37748736
s_mov_b32 s{sO + 2}, 37748736
s_mov_b32 s{sQ + 3}, 0x20000
s_mov_b32 s{sK + 3}, 0x20000
s_mov_b32 s{sV + 3}, 0x20000
s_mov_b32 s{sO + 3}, 0x20000
s_waitcnt lgkmcnt(0)
""")
    srd = lambda d, b: L(f's_mov_b32 s{d}, s{b}\ns_and_b32 s{d + 1}, s{b + 1}, 0xffff')
    o += srd(sQ, 48) + srd(sK, 50) + srd(sV, 52) + srd(sO, 54)
    if STAMP: o += srd(sWS, 56) + L(f's_mov_b32 s{sWS + 2}, {256 if STAMP == 2 else 0x100000}\ns_mov_b32 s{sWS + 3}, 0x20000')
    nf = 0
    for x in SO.split(','):
        if x[0] == 'q': o += [qld(4 * int(x[1]) + k, 0, v(O + 16 * int(x[1]) + 4 * k, 4)) for k in range(4)]
        elif x[0] == 'n': o += [qld(2 * int(x[1]) + k, 1, a_(aR + 8 * int(x[1]) + 4 * k, 4)) for k in range(2)]
        elif x == 'x': o += xld(0)
        elif x == 'b': p, d = blk(*blks.pop(0)); o += p + d
        elif x == 'U': o += setup()
        elif x == 'I':
            o += L('v_mul_u32_u24 v200, 0x9e3779, v0\nv_and_b32 v200, 0xbfffbfff, v200\nv_or_b32 v200, 0x3e003e00, v200')
            for k in range(1, 16): o += L(f'v_mul_lo_u32 v{200 + k}, v{199 + k}, v{199 + k}\nv_and_b32 v{200 + k}, 0xbfffbfff, v{200 + k}\nv_or_b32 v{200 + k}, 0x3e013e01, v{200 + k}')
        elif x[0] == 'm': o += [mfs(v(216 + 4 * (k % 8), 4), v(200 + 4 * (k & 3), 4), v(200 + 4 * ((k >> 2) & 3), 4), '0' if k < 8 else v(216 + 4 * (k % 8), 4)) for k in range(int(x[1:]))]
        elif x == 'X': o += xs_block(0)
        elif x[0] == 's':
            for f in range(4 * int(x[1]), 4 * int(x[1]) + 4):
                o += [vwait(('Q', 0, f))] + scale4(O + 4 * f, SS[0] + 8 * (f & 1)) + [J(f'v_accvgpr_write_b32 a{aQ + 4 * f + i}, v{O + 4 * f + i}') for i in range(4)]
        if FINE and STAMP == 1 and (x[0] in 'sXU') == (FINE == 1) and nf < 12:
            o += L(f's_memrealtime s[100:101]\ns_waitcnt lgkmcnt(0)\ns_mov_b32 s{82 + nf}, s100'); nf += 1
    o += [J(f'v_writelane_b32 v0, s{82 + k}, {51 + k}') for k in range(nf)]
    return o


class St:
    def __init__(self, name, ins, earliest=-1, deadline=10 ** 9, after=None, prio=0):
        self.name = name; self.ins = list(ins); self.earliest = earliest; self.pos = 0; self.after = after; self.prio = prio
        self.dl = [deadline] * (len(self.ins) + 1)
        for k in range(len(self.ins) - 1, -1, -1): self.dl[k] = min(self.dl[k + 1], self.ins[k].info.get('d', 10 ** 9))
    def done(self): return self.pos >= len(self.ins)


VORD = [1, 5, 2, 6, 3, 7, 0, 4]
UNITS = [(O + 32 * t + 16 * hi + 8 * p, T + 2 * (t & 1), GO + p, t, hi * 128) for t in range(4) for hi in range(2) for p in range(2)]
UNITS += [(OX + 8 * u, T + 2 * u, GO + 2, 4 + u, 0) for u in range(2)]
def ustore(data, k, h): return J(f'buffer_store_dwordx4 {data}, v{UNITS[k][2]}, {s_(sO, 4)}, s{sOf + 6 * h + UNITS[k][3]} offen{f" offset:{UNITS[k][4]}" if UNITS[k][4] else ""}{STP if k < 16 else STX}', name='st')
def park(k): return a_(aQ + 4 * k, 4) if k < 16 else v(T + 8 + 4 * (k - 16), 4)


class G:
    def __init__(self):
        self.M = []; self.reads = []; self.S = []; self.last = {}; self.pos = {}; self.fix = {}; self.resv = set(); self.it = -1
        self.bar = {}; self.caps = []; self.post = {}; self.nods = set()
    def at(self, g, xs): self.fix.setdefault(g, []).extend(xs)
    def top(self, i, ins):
        self.it = i; self.bar[i] = len(self.M) - 1; self.at(len(self.M) - 1, ins)
    def frag(self, reg, rd, it=None, e=None):
        f = {'reg': reg, 'rd': rd, 'e': max(self.last.get(reg, -1), self.bar[self.it] if e is None else e), 'first': None, 'it': self.it if it is None else it}
        self.reads.append(f); return f
    def use(self, m, *fs):
        for f in fs:
            if f['first'] is None: f['first'] = len(self.M)
            self.last[f['reg']] = len(self.M)
        for r in m.dst: self.pos['w', r] = len(self.M)
        self.M.append(m)
    def vread(self, b):
        self.vf = {}
        for i in range(8):
            dt = VORD[i]; r = aV + 4 * i
            self.vf[dt] = self.frag(r, [J(f'ds_read_b64_tr_b16 {a_(r + 2 * u, 2)}, v{VA + (dt & 3)} offset:{slotV(b) + (dt >> 2) * 1024 + u * 4096}') for u in range(2)])
    def qxread(self, adr, e):
        self.qx = {(u, k): self.frag(aQX + 16 * u + 4 * k, [J(f'ds_read_b128 {a_(aQX + 16 * u + 4 * k, 4)}, v{adr + (k & 1)} offset:{u * 4096 + (k >> 1) * 1024}')], it=99, e=e) for k in range(4) for u in range(2)}
    def qk(self, kb):
        b = kb & 1; q = aQ if kb < 32 else aR
        self.pos['qk', kb] = len(self.M)
        for hf in range(2):
            for k4 in range(4):
                r = aK + 4 * (4 * hf + k4)
                f = self.frag(r, [J(f'ds_read_b128 {a_(r, 4)}, v{KA + (k4 & 1)} offset:{slotK(kb) + hf * 4096 + (k4 >> 1) * 1024}')])
                for t in range(4):
                    d = v(SS[b] + 8 * t + 4 * hf, 4)
                    self.use(mfs(d, a_(r, 4), a_(q + 16 * t + 4 * k4, 4), '0' if k4 == 0 else d), f)
                    if k4 == 3: self.pos['s', kb, t, hf] = len(self.M) - 1
    def xqk(self, kb):
        for k4 in range(4):
            r = aX + 4 * ((k4 + 2) & 3)
            f = self.frag(r, [J(f'ds_read_b128 {a_(r, 4)}, v{KX + (k4 & 1)} offset:{slotK(kb) + (k4 >> 1) * 1024}')])
            for u in range(2):
                d = v(SX + 4 * u, 4)
                self.use(mfs(d, a_(r, 4), a_(aQX + 16 * u + 4 * k4, 4), '0' if k4 == 0 else d), f, self.qx[u, k4])
        self.pos['x', kb] = len(self.M) - 1
    def pv(self, kb):
        b = kb & 1; buf = (kb >> 1) & 1; z = kb % 32 == 0
        self.pos['pv', kb] = len(self.M)
        px = [self.frag(aX + 8 * b + 4 * u, [J(f'ds_read_b128 {a_(aX + 8 * b + 4 * u, 4)}, v{PXR} offset:{buf * 4096 + b * 2048 + u * 1024}')]) for u in range(2)]
        def o(t, dt):
            d = v(O + 32 * t + 4 * dt, 4); f = self.vf[dt]; self.pos.setdefault(('p', kb, t), len(self.M))
            self.use(mfs(d, a_(f['reg'], 4), v(SS[b] + 8 * t, 4), '0' if z else d), f)
        def lm(t):
            self.pos.setdefault(('p', kb, t), len(self.M)); self.pos['lm', kb, t] = len(self.M)
            self.use(mfs(v(LM, 4), a_(aC + 4 * t, 4), v(SS[b] + 8 * t, 4), '0' if z and t == 0 else v(LM, 4)))
        def x(h):
            f = self.vf[4 * h]
            for u in range(2):
                d = v(OX + 8 * u + 4 * h, 4)
                self.use(mfs(d, a_(f['reg'], 4), a_(px[u]['reg'], 4), '0' if z else d), f, px[u])
            self.pos['lx', kb, h] = len(self.M)
            self.use(mfs(v(LX, 4), a_(aC + 4 * h, 4), a_(px[h]['reg'], 4), '0' if z and h == 0 else v(LX, 4)), px[h])
        if kb % 32 == 31:
            for t in range(4):
                lm(t)
                for dt in range(8): o(t, dt)
            x(0); x(1)
        elif kb == 32:
            for t in range(4):
                for dt in range(8):
                    o(t, dt)
                    if t == 3 and dt & 1: lm(dt >> 1)
            x(0); x(1)
        else:
            for i in range(8):
                for t in range(4): o(t, VORD[i])
                if i < 4: lm(i)
                if VORD[i] & 3 == 0: x(VORD[i] >> 2)
        self.pos['pve', kb] = len(self.M) - 1
    def sm(self, kb):
        for t in range(4):
            prev = None; S = SS[kb & 1] + 8 * t; dl = self.pos['p', kb, t] - 2
            for hf in range(2):
                x = [J(f'v_exp_f32 v{S + 4 * hf + r}, v{S + 4 * hf + r}') for r in range(4)]
                x += [J(f'v_cvt_pk_bf16_f32 v{S + 2 * hf + k}, v{S + 4 * hf + 2 * k}, v{S + 4 * hf + 2 * k + 1}') for k in range(2)]
                prev = St(f'sm{kb}.{t}{hf}', x, self.pos['s', kb, t, hf], dl - (4 if hf == 0 else 0), after=prev); self.S.append(prev)
    def smx(self, kb):
        for u in range(2):
            S = SX + 4 * u
            x = [J(f'v_exp_f32 v{S + r}, v{S + r}') for r in range(4)]
            x += [J(f'v_cvt_pk_bf16_f32 v{S + k}, v{S + 2 * k}, v{S + 2 * k + 1}') for k in range(2)]
            x += [J(f'ds_write_b64 v{PXW}, {v(S, 2)} offset:{((kb >> 1) & 1) * 4096 + u * 1024}')]
            self.S.append(St(f'smx{kb}.{u}', x, self.pos['x', kb], self.bar[kb >> 1] - BARW))
    def vm(self, g, pre, c):
        while g in self.resv: g += 1
        self.resv.add(g); self.at(g - 1, pre); self.at(g, [c])
        for k in NOD: self.nods.add(g + k)
        return g

    def drain(self, h, wE, wD):
        kb = 32 * h + 31; big = len(self.M) - 1
        def tag(xs, e=None, d=None):
            for c in xs:
                if e is not None: c.info['e'] = e
                if d is not None: c.info['d'] = d
            return xs
        n = len(UNITS)
        direct = lambda k: h == 1 or (k >> 1) in DS
        dst = lambda k: UNITS[k][0] if k < 16 or direct(k) else T + 8 + 4 * (k - 16)
        dd = lambda k: min(wD['v', UNITS[k][0]], wD['v', UNITS[k][0] + 4]) - 2
        Gk = []
        for k in range(n + 2):
            x = self.pos['pv', kb] + (D0 + int(DSTEP * k) if h == 0 else 0)
            if k < n: x = max(x, wE['v', UNITS[k][0] + 4] + DLAG)
            if k: x = max(x, Gk[-1] + 1)
            while x in self.resv or x in self.bar.values(): x += 1
            Gk.append(min(x, big))
        prev = None
        for k in range(n + 1):
            o = []
            if k >= 1:
                b = UNITS[k - 1][0]; d = dst(k - 1)
                o += [J(f'v_cvt_pk_bf16_f32 v{d + i}, v{b + 2 * i}, v{b + 2 * i + 1}') for i in range(4)]
                x = [J(f'v_permlane32_swap_b32 v{d + i}, v{d + 2 + i}') for i in range(2)]
                if direct(k - 1): x += [ustore(v(d, 4), k - 1, h)]
                elif k <= 16: x += [J(f'v_accvgpr_write_b32 a{aQ + 4 * (k - 1) + i}, v{d + i}') for i in range(4)]
                if h == 0: assert Gk[k] < dd(k - 1), k
                late = []
                if h == 0 and SWM: late = x[:2]; x = x[2:]
                if Gk[k] == big: late = x
                elif h == 0 and direct(k - 1): late += x
                elif x: prev = St(f'dr{h}.{k - 1}', x, Gk[k] + 1, Gk[k + 1] if h else dd(k - 1), after=prev); self.S.append(prev)
            if k < n:
                b, r = UNITS[k][:2]
                if k >= 16 or k & 3 == 0:
                    l = LX + k - 16 if k >= 16 else LM + (k >> 2)
                    e = self.pos['lx', kb, k - 16] if k >= 16 else self.pos['lm', kb, k >> 2]
                    e = max(e, Gk[{0: 0, 4: 0, 8: 3, 12: 7, 16: 11, 17: 15}[k]] + 1) if k > 4 else e
                    self.S.append(St(f'rcp{h}.{k}', L(f'v_rcp_f32 v{r}, v{l}\nv_rcp_f32 v{r + 1}, v{l}'), e, Gk[k]))
                o += [J(f'v_pk_mul_f32 {v(b + 2 * i, 2)}, {v(b + 2 * i, 2)}, {v(r, 2)}') for i in range(4)]
            self.post.setdefault(Gk[k], []).extend(o + (late if k else []))
        c = tag(L(f"""
v_subrev_u32 v{T + 6}, s{sLo}, v{LM}
v_subrev_u32 v{T + 7}, s{sLo}, v{LM + 1}
v_max_u32 v{T + 6}, v{T + 6}, v{T + 7}
v_subrev_u32 v{T + 7}, s{sLo}, v{LM + 2}
v_cmp_lt_u32 s[48:49], s{sRg}, v{T + 6}
v_subrev_u32 v{T + 6}, s{sLo}, v{LM + 3}
v_max_u32 v{T + 6}, v{T + 6}, v{T + 7}
v_subrev_u32 v{T + 7}, s{sLo}, v{LX}
v_cmp_lt_u32 s[50:51], s{sRg}, v{T + 6}
v_subrev_u32 v{T + 6}, s{sLo}, v{LX + 1}
"""), d=wD.get(('v', LM), big + 2) - 2) + L(f"""
v_max_u32 v{T + 6}, v{T + 6}, v{T + 7}
s_lshl_b32 s{sF}, s{sF}, 3
v_cmp_lt_u32 s[52:53], s{sRg}, v{T + 6}
""")
        for k in range(3): c += [J(f's_cmp_lg_u64 s[{48 + 2 * k}:{49 + 2 * k}], 0\ns_cselect_b32 s55, {1 << k}, 0\ns_or_b32 s{sF}, s{sF}, s55')]
        if h: self.post[big].extend(c)
        else: self.S.append(St(f'chk{h}', c, self.pos['pve', kb], self.pos['pve', kb + 1] + 8))

    def build(self, prefix):
        M = self.M; n = len(M); fix = self.fix
        items = []
        for f in self.reads:
            d = min(f['first'] - LEAD, self.bar.get(f['it'] + 1, 10 ** 9) - BARW)
            for r in f['rd']: items.append((f['e'], d, len(items), r, f))
        items.sort(key=lambda x: x[0]); ip = 0; act = []; lastg = -100
        for g in range(-1, n):
            while ip < len(items) and items[ip][0] <= g: act.append(items[ip][1:]); ip += 1
            k = 0
            while k < (4 if g < 0 else 1) and g not in self.resv and g not in self.nods and act:
                act.sort(key=lambda x: x[:2])
                urgent = any(x[0] - g <= URG + DSS * i for i, x in enumerate(act))
                if not (g - lastg >= DSS or urgent or g < 0): break
                x = act.pop(0); self.at(g, [x[2]]); lastg = g; k += 1
                assert g < x[3]['first'] and g < self.bar.get(x[3]['it'] + 1, 10 ** 9), (g, x[2].text)
        assert not act and ip == len(items)
        S = sorted(self.S, key=lambda s: s.earliest); sp = 0; act = []
        out = []; hist = list(prefix); rep = []; forced = {}
        for g in range(-1, n):
            while sp < len(S) and S[sp].earliest <= g: act.append(S[sp]); sp += 1
            if g >= 0: out.append(M[g]); hist.append(M[g])
            fx = fix.get(g, [])
            for c in fx: out.append(c); hist.append(c)
            used = sum(c.cost for c in fx)
            nds = sum(1 for c in fx if c.kind in ('dsr', 'dsw', 'dma', 'vld', 'vst'))
            cap = 0 if g < 0 else CAP
            for lo, hi, cp in self.caps:
                if lo <= g <= hi: cap = cp
            nval = 0
            while True:
                cand = []
                for s in act:
                    if s.done() or (s.after is not None and not s.after.done()): continue
                    c = s.ins[s.pos]; force = s.dl[s.pos] <= g
                    if c.info.get('e', -1) > g:
                        assert not force, (s.name, c.text); continue
                    if c.kind == 'dsw' and not force and (nval or nds): continue
                    cand.append((c.kind != 'dsw', s.prio, s.dl[s.pos], s, c, force))
                cand.sort(key=lambda x: x[:3])
                pick = None
                for _, _, _, s, c, force in cand:
                    if (used + c.cost <= cap or force) and rpad(hist, c) == 0:
                        pick = (s, c)
                        if used + c.cost > cap: forced[s.name] = forced.get(s.name, 0) + 1
                        break
                if pick is None:
                    fl = [x for x in cand if x[5]]
                    if fl:
                        p = J(f's_nop {rpad(hist, fl[0][4]) - 1}'); out.append(p); hist.append(p); used += p.cost
                        continue
                    break
                s, c = pick; s.pos += 1; s.lastg = g
                out.append(c); hist.append(c); used += c.cost
                if isv(c): nval += 1
                elif c.kind not in ('salu', 'wait'): nds += 1
            for c in self.post.get(g, []): out.append(c); hist.append(c); used += c.cost
            rep.append(used); hist = hist[-24:]; act = [s for s in act if not s.done()]
        assert not act and sp == len(S), [(s.name, s.pos) for s in act]
        if VERB:
            bs = sorted(self.bar.items()) + [(99, n - 1)]
            for (i, a), (_, b) in zip(bs, bs[1:]):
                r = rep[a + 1:b + 1]
                print(f'; it {i}: n={b - a} est={sum(max(16, x + 6.5) for x in r):.0f} free={sum(1 for x in r if x < 4.8)}', ' '.join('%d' % x for x in r) if VERB > 1 else '', file=sys.stderr)
            print('; forced', forced, file=sys.stderr)
        return out


def lgk(seq):
    out = []; t = 0; pipe = 0; q = []
    for c in seq:
        if c.kind == 'label': out.append(c); continue
        if c.kind == 'wait':
            k = parse_wait(c.text)
            if k is not None: del q[:max(0, len(q) - k)]
        else:
            touch = c.src | c.dst
            k = -1
            for idx, (regs, ti) in enumerate(q):
                if regs & touch and not (c.kind == 'dsr' and not (regs & c.src)): k = idx
            if len(q) >= 15 and c.kind in ('dsr', 'dsw'): k = max(k, 0)
            if k >= 0:
                while k + 1 < len(q) and t - q[k + 1][1] >= SETTLE: k += 1
                w = J(f's_waitcnt lgkmcnt({len(q) - 1 - k})', tag='autowait'); w.info['age'] = t - q[k][1]
                out.append(w); del q[:k + 1]
        if c.kind == 'mfma':
            t = max(t, pipe); pipe = t + c.mlen
        if c.kind in ('dsr', 'dsw'): q.append((set(c.dst), t))
        t += c.cost
        out.append(c)
    return out


def vmfix(seq):
    ops = []; done = -1; out = []
    for c in seq:
        if c.kind in ('dma', 'vst', 'vld'): ops.append(c.info.get('name'))
        elif c.kind == 'wait' and 'need' in c.info:
            k = -1
            for nm in c.info['need']:
                idx = [i for i, x in enumerate(ops) if x == nm]
                assert len(idx) == (1 if nm[0] == 'Q' else 2), (nm, idx)
                k = max(k, idx[-1])
            if k <= done:
                if not c.info['lg']: continue
                c.text = 's_waitcnt lgkmcnt(0)'
            else:
                done = k; nn = len(ops) - 1 - k
                assert nn <= 63
                c.text = c.text.replace('vmcnt(0)', f'vmcnt({nn})')
                if VERB: print('; vm', c.info['need'][-1], nn, end=' ', file=sys.stderr)
        out.append(c)
    if VERB: print(file=sys.stderr)
    return out


def ending():
    o = L('L_fin:')
    if STAMP:
        pre, post = stamp(18)
        o += L('s_waitcnt vmcnt(0)') + pre + L('s_waitcnt lgkmcnt(0)') + post
    if STAMP == 2:
        sel = [32 + x for x in (1, 2, 4, 6, 8, 10, 11, 13, 15, 17, 18)] + [2, 10, 18]
        o += L('v_mov_b32 v23, s96\ns_mov_b32 exec_hi, 0\nv_mov_b32 v23, s94\ns_mov_b64 exec, -1\nv_sub_u32 v22, v0, v23\nv_mov_b32 v21, 0')
        o += [J(f'v_writelane_b32 v21, {8 + 4 * k}, {x}') for k, x in enumerate(sel)]
        m = sum(1 << x for x in sel)
        o += L(f's_mov_b32 exec_lo, {hex(m & 0xffffffff)}\ns_mov_b32 exec_hi, {hex(m >> 32)}\ns_nop 4\nbuffer_atomic_add v22, v21, {s_(sWS, 4)}, 0 offen sc1')
        o += L(f's_mov_b64 exec, 1\ns_not_b32 s48, s96\nv_mov_b32 v16, s48\nv_mov_b32 v17, s100\nbuffer_atomic_umax v16, off, {s_(sWS, 4)}, 0 sc1\nbuffer_atomic_umax v17, off, {s_(sWS, 4)}, 0 offset:4 sc1\ns_mov_b64 exec, -1')
    elif STAMP:
        o += L(f'''
v_mov_b32 v16, s96
v_mov_b32 v17, s97
v_mov_b32 v18, s100
v_mov_b32 v19, s101
s_lshl_b32 s48, s2, 6
s_lshl_b32 s49, s{sW}, 4
s_add_u32 s48, s48, s49
v_mov_b32 v20, 0
v_mov_b32 v22, v0
v_mov_b32 v23, v0
v_permlane32_swap_b32 v22, v23
v_subrev_u32 v21, {PXL}, v{PXR}
v_lshrrev_b32 v21, 1, v21
s_lshl_b32 s49, s48, 5
s_add_u32 s49, s49, 0x40000
buffer_store_dwordx2 v[22:23], v21, {s_(sWS, 4)}, s49 offen
s_mov_b64 exec, 1
buffer_store_dwordx4 v[16:19], v20, {s_(sWS, 4)}, s48 offen
s_mov_b64 exec, -1
''')
    o += L(f's_cmp_lg_u32 s{sF}, 0\ns_cbranch_scc1 L_slow\nL_end:\ns_endpgm')
    return o


def slow():
    sB = sT + 1; sR = sT + 2; sKV = sT + 3; sJ = sT + 4; sY = sT + 5; sP = sT + 7
    LN = 1; VO = 2; VAs = 3; VD = 5; m = 6; l = 7; t = 8; GX = 13; Q = 128; OO = 160; KF = 16; S = 48; VF = 64; QT = 240
    o = L(f'''
L_slow:
s_waitcnt vmcnt(0) lgkmcnt(0)
s_and_b32 s{sB}, s{sF}, 0x24
s_cbranch_scc0 L_sl1
s_barrier
s_cmp_eq_u32 s{sW}, 0
s_cbranch_scc1 L_sl1
s_and_b32 s{sF}, s{sF}, 0x1b
s_cbranch_scc0 L_end
L_sl1:
v_subrev_u32 v{LN}, {PXL}, v{PXR}
v_lshrrev_b32 v{LN}, 4, v{LN}
v_and_b32 v{VO}, 31, v{LN}
v_lshrrev_b32 v{t}, 5, v{LN}
v_lshlrev_b32 v{VO}, 8, v{VO}
v_lshl_add_u32 v{GX}, v{t}, 5, v{VO}
v_lshl_add_u32 v{VO}, v{t}, 4, v{VO}
v_lshrrev_b32 v17, 3, v{LN}
v_and_b32 v18, 7, v{LN}
v_and_b32 v19, 2, v17
v_lshlrev_b32 v19, 1, v19
v_xor_b32 v18, v18, v19
v_lshlrev_b32 v17, 8, v17
v_lshl_add_u32 v{VD}, v18, 4, v17
v_bfe_u32 v16, v{LN}, 2, 2
v_lshl_add_u32 v18, v{t}, 2, v16
v_lshlrev_b32 v18, 7, v18
v_lshrrev_b32 v16, 1, v16
v_lshl_add_u32 v18, v16, 6, v18
v_and_b32 v16, 1, v{LN}
v_lshl_add_u32 v18, v16, 5, v18
v_bfe_u32 v16, v{LN}, 4, 1
v_lshl_add_u32 v18, v16, 4, v18
v_bfe_u32 v16, v{LN}, 1, 1
v_lshl_add_u32 v18, v16, 3, v18
s_lshl_b32 s{sP}, s{sW}, 13
v_add_u32 v{VAs}, s{sP}, v18
v_xor_b32 v{VAs + 1}, 64, v{VAs}
L_sl2:
s_ff1_i32_b32 s{sB}, s{sF}
s_bitset0_b32 s{sF}, s{sB}
s_cmp_ge_u32 s{sB}, 3
s_cselect_b32 s{sR}, 0, {HQ}
s_cselect_b32 s{sKV}, 0, {HK}
s_cselect_b32 s{sY}, 3, 0
s_sub_u32 s{sB}, s{sB}, s{sY}
s_lshl_b32 s{sY}, s2, 19
s_add_u32 s{sKV}, s{sKV}, s{sY}
s_lshl_b32 s{sY}, s{sB}, 13
s_add_u32 s{sY}, s{sY}, s{sQo}
s_add_u32 s{sJ}, s{sQb}, 0x10000
s_cmp_eq_u32 s{sB}, 2
s_cselect_b32 s{sY}, s{sJ}, s{sY}
s_add_u32 s{sR}, s{sR}, s{sY}
''')
    o += [J(f'buffer_load_dwordx4 {v(Q + 4 * k, 4)}, v{VO}, {s_(sQ, 4)}, s{sR} offen offset:{32 * k}') for k in range(8)]
    o += [J(f'v_mov_b64 {v(OO + 2 * k, 2)}, 0') for k in range(32)]
    o += L(f'v_mov_b32 v{m}, 0xff800000\nv_mov_b32 v{l}, 0\ns_mov_b32 s{sJ}, 0\ns_waitcnt vmcnt(0)')
    for k in range(8): o += scale4(Q + 4 * k, QT)
    o += L('L_sl3:')
    o += [J(f'buffer_load_dwordx4 {v(KF + 4 * k, 4)}, v{VO}, {s_(sK, 4)}, s{sKV} offen offset:{32 * k}') for k in range(8)]
    for w in range(4):
        o += L(f's_add_u32 m0, s{sP}, {(w >> 1) * 4096 + (w & 1) * 1024}\ns_add_u32 s{sY}, s{sKV}, {(w >> 1) * 4096 + (w & 1) * 128}')
        o += [dma(VD, sV, sY, 0, None), dma(VD, sV, sY, 2048, None)]
    o += L('s_waitcnt vmcnt(0)')
    o += [mfma(v(S, 16), v(KF + 4 * k, 4), v(Q + 4 * k, 4), '0' if k == 0 else v(S, 16)) for k in range(8)]
    for s in range(2):
        for d in range(4):
            o += [J(f'ds_read_b64_tr_b16 {v(VF + 16 * s + 4 * d + 2 * u, 2)}, v{VAs + (d & 1)} offset:{(2 * s + u) * 2048 + (d >> 1) * 1024}') for u in range(2)]
        o += L('s_waitcnt lgkmcnt(0)')
    o += L(f'v_max3_f32 v{t}, v{S}, v{S + 1}, v{m}')
    o += [J(f'v_max3_f32 v{t}, v{t}, v{S + 2 * k}, v{S + 2 * k + 1}') for k in range(1, 8)]
    o += L(f'''v_mov_b32 v{t + 1}, v{t}
v_permlane32_swap_b32 v{t}, v{t + 1}
v_max_f32 v{t}, v{t}, v{t + 1}
v_sub_f32 v{t + 1}, v{m}, v{t}
v_mov_b32 v{m}, v{t}
v_exp_f32 v{t + 1}, v{t + 1}''')
    o += [J(f'v_sub_f32 v{S + k}, v{S + k}, v{m}') for k in range(16)]
    o += L(f'v_mul_f32 v{l}, v{l}, v{t + 1}')
    o += [J(f'v_mul_f32 v{OO + k}, v{OO + k}, v{t + 1}') for k in range(64)]
    o += [J(f'v_exp_f32 v{S + k}, v{S + k}') for k in range(16)]
    o += [J(f'v_add_f32 v{l}, v{l}, v{S + k}') for k in range(16)]
    o += [J(f'v_cvt_pk_bf16_f32 v{S + 8 * s + k}, v{S + 8 * s + 2 * k}, v{S + 8 * s + 2 * k + 1}') for s in range(2) for k in range(4)]
    for s in range(2):
        for d in range(4):
            o.append(mfma(v(OO + 16 * d, 16), v(VF + 16 * s + 4 * d, 4), v(S + 8 * s, 4), v(OO + 16 * d, 16)))
    o += L(f'''s_nop 15
s_add_u32 s{sKV}, s{sKV}, 0x2000
s_add_u32 s{sJ}, s{sJ}, 1
s_cmp_lt_u32 s{sJ}, 32
s_cbranch_scc1 L_sl3
v_mov_b32 v{t}, v{l}
v_permlane32_swap_b32 v{l}, v{t}
v_add_f32 v{l}, v{l}, v{t}
v_rcp_f32 v{l}, v{l}''')
    o += [J(f'v_mul_f32 v{OO + k}, v{OO + k}, v{l}') for k in range(64)]
    o += [J(f'v_cvt_pk_bf16_f32 v{OO + k}, v{OO + 2 * k}, v{OO + 2 * k + 1}') for k in range(32)]
    o += [J(f'buffer_store_dwordx4 {v(OO + 4 * k, 4)}, v{GX}, {s_(sO, 4)}, s{sR} offen offset:{64 * (k >> 1) + 16 * (k & 1)}') for k in range(8)]
    o += L(f's_waitcnt vmcnt(0)\ns_cmp_lg_u32 s{sF}, 0\ns_cbranch_scc1 L_sl2\ns_endpgm')
    return fixh(o)


def main():
    blks = list(BLKS)
    st = startup(blks)
    g = G()
    def top(i):
        k = 1 if i < 0 else (2 + i // 2 if i % 2 == 0 else None)
        pre, post = stamp(k) if k else ([], [])
        g.top(i, pre + [vwait(*[x for x in BLKS if grp(*x) == i], lg=True)] + post + L('s_barrier'))
    top(-1)
    g.qxread(LM, -1)
    g.qk(0); g.xqk(0); g.vread(0); g.qk(1)
    for i in range(31):
        top(i)
        if i == 16: wE = {k[1]: p for k, p in g.pos.items() if k[0] == 'w'}
        g.pv(2 * i)
        if i == 16: wD = {}; [wD.setdefault(r, p) for p in range(g.pos['pv', 32], len(g.M)) for r in g.M[p].dst]
        g.vread(2 * i + 1)
        g.qk(2 * i + 2); g.xqk(2 * i + 2)
        if i == 14:
            g.at(g.bar[14] + 1, L(f'v_add_u32 v{T + 14}, {QXL}, v{KA}')); g.at(g.bar[14] + 2, L(f'v_add_u32 v{T + 15}, {QXL}, v{KA + 1}'))
            g.qxread(T + 14, g.bar[14] + 4)
        g.pv(2 * i + 1); g.vread(2 * i + 2); g.qk(2 * i + 3)
    top(31); g.pv(62); g.vread(63); g.pv(63)
    for kb in range(64): g.sm(kb)
    for kb in range(0, 64, 2): g.smx(kb)
    g.caps = [(g.pos['pv', 31] + 4, g.pos['pve', 32], CAPD), (g.pos['pv', 63] + 4, len(g.M), CAPT), (0, g.bar[0], CAPP), (g.bar[31], g.pos['pv', 63] + 3, CAPP)]
    nq = sum(1 for x in SO.split(',') if x[0] == 'n'); ldit = {p: -1 for p in range(nq)}
    stp = [p for p in range(9) if p not in DS]
    for i in range(-1, 31):
        b0 = g.bar[i] + 1; nb = min(NB.get(i, 4), len(blks))
        while nb and grp(*blks[nb - 1]) > i + 3: nb -= 1
        if i < 0: pos = list(range(18, 70, 3)); xg = [4, 8, 12]
        else:
            pos = DMG if nb <= 4 else [6 + (134 * k) // (2 * nb - 1) for k in range(2 * nb)]
            xg = DMG[2 * nb::2] + XG if nb < 4 else XG
        for k in range(nb):
            p, d = blk(*blks.pop(0))
            g.vm(b0 + pos[2 * k], [c for c in p if c.kind != 'nop'], d[0]); g.vm(b0 + pos[2 * k + 1], [], d[1])
        prs = []
        if XL == i: prs.append(xld(1))
        for _ in range(QL.get(i, 0)): prs.append([qld(2 * nq + k, 1, a_(aR + 8 * nq + 4 * k, 4)) for k in range(2)]); ldit[nq] = i; nq += 1
        for _ in range(ST.get(i, 0)):
            if stp: p = stp.pop(0); prs.append([ustore(park(2 * p + k), 2 * p + k, 0) for k in range(2)])
        for pr, x in zip(prs, xg):
            x = g.vm(b0 + x, [], pr[0]); g.vm(x + XD, [], pr[1])
        assert len(prs) <= len(xg)
    assert not blks and nq == 8 and not stp, (blks, nq, stp)
    g.drain(0, wE, wD)
    g.drain(1, {k[1]: p for k, p in g.pos.items() if k[0] == 'w'}, {})
    xs = St('xs', xs_block(1), g.bar[XL + QLAG], g.bar[14] - BARW, prio=1); g.S.append(xs)
    dn = [i for i in sorted(DN) for _ in range(DN[i])]
    prev = None; seq = []
    for f in range(16):
        if f < len(dn): e = g.bar[dn[f]] + 40; seq.append((e, St(f'q{f}', qfrag(f, T), e, e, prio=1)))
        else: e = g.bar[min(14, ldit[f >> 1] + QLAG)]; seq.append((e, St(f'q{f}', qfrag(f, T, PK), e, g.pos['qk', 32] - 3, prio=1)))
    seq.append((xs.earliest, xs)); seq.sort(key=lambda x: x[0])
    for _, s in seq:
        s.after = prev; prev = s
        if s is not xs: g.S.append(s)
    start = fixh(lgk(st))
    main_ = g.build(start[-24:])
    if VERB: print('; last gaps:', [(s.name, [i for i in g.bar if g.bar[i] <= s.lastg][-1]) for _, s in seq], file=sys.stderr)
    prog = vmfix(start + main_)
    prog = fixh(lgk(prog))
    if VERB: print('; nops', sum(1 for c in prog if c.kind == 'nop'), 'young waits', [int(c.info['age']) for c in prog if c.tag == 'autowait' and c.info['age'] < 150], file=sys.stderr)
    prog += fixh(ending(), prog[-24:]) + slow()
    out = [f'; @launch grid=(256,1,1) block=(256,1,1) lds={LDSZ}',
           '.amdgcn_target "amdgcn-amd-amdhsa--gfx950"', '.text', f'.globl {NAME}', '.p2align 8', f'.type {NAME},@function', f'{NAME}:']
    dg = E('DIAG', 0); nbar = 0
    for c in prog:
        if c.kind == 'barrier': nbar += 1
        if nbar > 8 and ((dg & 1 and c.kind == 'barrier') or (dg & 2 and c.kind == 'dma') or (dg & 4 and c.tag == 'autowait')): continue
        out.append(c.text)
    out += ['.section .rodata,"a"', '.p2align 6', f'.amdhsa_kernel {NAME}',
            '  .amdhsa_next_free_vgpr 512', '  .amdhsa_next_free_sgpr 102', '  .amdhsa_accum_offset 256',
            '  .amdhsa_group_segment_fixed_size 0', '  .amdhsa_kernarg_size 48', '  .amdhsa_user_sgpr_count 2',
            '  .amdhsa_user_sgpr_kernarg_segment_ptr 1', '  .amdhsa_system_sgpr_workgroup_id_x 1', '.end_amdhsa_kernel']
    print('\n'.join(out))


main()
```

```python
import os, sys, struct, math
sys.path.insert(0, os.path.dirname(os.path.abspath(__file__)))
from asmlib import *

E = lambda k, d: int(os.environ.get(k, d))
F = lambda k, d: float(os.environ.get(k, d))
EL = lambda k, d: [int(x) for x in os.environ.get(k, d).split(',') if x]
ED = lambda k, d: dict(tuple(int(y) for y in x.split(':')) for x in os.environ.get(k, d).split(',') if x)
STAMP = E('STAMP', 0); VERB = E('VERB', 0); FINE = E('FINE', 0)
CAP = F('CAP', 9.5); DSC = F('DSC', 4.0); CAPD = F('CAPD', 9.5); CAPT = F('CAPT', 9.5); CAPP = F('CAPP', 14)
SETTLE = E('SETTLE', 170)
LEAD = E('LEAD', 12); BARW = E('BARW', 8); URG = E('URG', 4); DSS = E('DSS', 2)
DMG = EL('DMG', '6,22,38,54,70,86,102,118')
XG = EL('XG', '14,46,78,110,30,62,94,126'); XD = E('XD', 1)
LDP = os.environ.get('LDP', ' nt'); STP = os.environ.get('STP', ' nt'); STX = os.environ.get('STX', '')
SO = os.environ.get('SO', 'q0,q1,x,q2,q3,b,U,s0,b,b,s1,X,b,b,s2,b,b,s3')
NB = ED('NB', '-1:4,8:5,9:5,10:5,11:5')
QL = ED('QL', '-1:2,0:2,1:2,2:2'); XL = E('XL', 8)
QLAG = E('QLAG', 3)
DN = ED('DN', '2:4,3:4,4:4,5:4')
ST = ED('ST', '18:1,20:1,22:1,24:1,26:1,28:1,29:2,30:1')
DS = EL('DS', '')
NOD = EL('NOD', ''); XB = E('XB', 9); PK = E('PK', 0); SWM = E('SWM', 1); D0 = E('D0', 8); DSTEP = F('DSTEP', 5.3); DLAG = E('DLAG', 3)
NAME = 'standalone__mha_softmax__near_ridge_kernel'
KA = 1; KX = 3; VA = 5; PXW = 9; PXR = 10; VOD = 11; QN = 12; GO = 13
SS = [16, 48]; SX = 80; OX = 88; LM = 104; LX = 108; T = 112; O = 128
aQ = 0; aQX = 64; aR = 96; aV = 160; aK = 192; aX = 224; aC = 240
sQ, sK, sV, sO = 4, 8, 12, 16
sW, sN, sQb, sMask, sC, sLo, sRg, sM, sF, sQo, sXo, sNv = 20, 21, 22, 25, 26, 28, 29, 30, 34, 35, 36, 37
sOf = 68
sT = 48; sWS = 64; sP = 40; PFN = 4
PXL = 0x20000; QXL = 0x22000; STG = 0x22000; XST = 0x24400; LDSZ = 0x26600
XW, XR, GX = T + 4, T + 5, QN; sXc = 44
f2u = lambda x: struct.unpack('<I', struct.pack('<f', x))[0]
CSC = f2u(math.log2(math.e) / math.sqrt(128.0))
LOB = f2u(2.0 ** -20); HIB = f2u(2.0 ** 30)
HK = 262144; HQ = 73728

v = lambda a, n=1: f'v{a}' if n == 1 else f'v[{a}:{a + n - 1}]'
a_ = lambda a, n=1: f'a{a}' if n == 1 else f'a[{a}:{a + n - 1}]'
s_ = lambda a, n=1: f's{a}' if n == 1 else f's[{a}:{a + n - 1}]'
COST = {'valu': 4.65, 'trans': 8.7, 'salu': 0.3, 'wait': 0.3, 'barrier': 1.0, 'dsw': DSC, 'dsr': DSC, 'vst': 8.0, 'dma': 9.0, 'vld': 9.0, 'smem': 1.0, 'branch': 1.0}


class I2(I):
    __slots__ = ('info', 'mlen')


def J(text, **kw):
    x = I2(text)
    if x.kind in COST: x.cost = COST[x.kind]
    if x.kind == 'smem': x.kind = 'salu'
    if x.op.startswith('v_permlane'): x.cost = 8.7
    x.tag = kw.get('tag'); x.earliest = kw.get('earliest'); x.info = kw; x.mlen = 0
    if x.kind == 'mfma': x.mlen = 16 if '16x16' in x.op else 32
    if x.op.startswith('v_writelane'): x.src = x.src | x.dst
    if x.op.startswith('s_bitcmp'): x.src = x.src | (x.dst - {('scc', 0)}); x.dst = {('scc', 0)}
    return x


def L(txt, **kw): return [J(x.strip(), **kw) for x in txt.strip().split('\n') if x.strip()]
def mfma(d, a, b, c): return J(f'v_mfma_f32_32x32x16_bf16 {d}, {a}, {b}, {c}')
def mfs(d, a, b, c): return J(f'v_mfma_f32_16x16x32_bf16 {d}, {a}, {b}, {c}')
def isv(c): return c.kind in ('valu', 'trans')


def rpad(prev, c):
    dist = 0; pad = 0
    for p in reversed(prev):
        if p.kind == 'label': continue
        n = need_states(p, c)
        if n and p.kind == 'mfma' and p.mlen == 16: n = {12: 8, 10: 6, 7: 3}[n]
        if n > dist: pad = max(pad, n - dist)
        dist += p.states
        if dist >= 13: break
    return pad


def fixh(seq, prefix=()):
    out = list(prefix); n0 = len(out)
    for c in seq:
        if c.kind != 'label':
            pad = rpad(out[-24:], c)
            if pad: out.append(J(f's_nop {pad - 1}'))
        out.append(c)
    return out[n0:]


def edge_pad(prev, nxt):
    for k in range(0, 14):
        seq = list(prev[-24:]) + ([J(f's_nop {k - 1}')] if k else [])
        ok = True
        for c in nxt[:16]:
            if c.kind != 'label' and rpad(seq, c): ok = False; break
            seq.append(c)
        if ok: return k
    raise RuntimeError('edge')


def dma(voff, srd, soff, imm, name):
    o = f' offset:{imm}' if imm else ''
    return J(f'buffer_load_dwordx4 {v(voff)}, {s_(srd, 4)}, {s_(soff)} offen{o}{LDP} lds', name=name)


slotK = lambda b: ((b - 2) & 7) * 0x2000
slotV = lambda b: ((b - 1) & 7) * 0x2000
grp = lambda kind, b: ((b - 2) if kind == 'K' else (b - 1)) >> 1
BORD = os.environ.get('BORD', 'VKVK')
BLKS = [('K', 0), ('K', 1), ('V', 0)]
for j in range(32):
    nx = {'V': 2 * j + 1, 'K': 2 * j + 2}
    for c in BORD:
        if nx[c] < 64: BLKS.append((c, nx[c]))
        nx[c] += 1


def blk(kind, b):
    sn = sN if kind == 'K' else sNv
    pre = [J(f's_add_u32 m0, s{sM}, {hex(slotK(b) if kind == "K" else slotV(b) + 0x10000)}')]
    pre.append(J(f's_add_u32 s{sn}, s{sn}, 0x2000') if b else J('s_nop 0'))
    srd = sK if kind == 'K' else sV
    return pre, [dma(VOD, srd, sn, 0, (kind, b)), dma(VOD, srd, sn, 2048, (kind, b))]


def vwait(*names, lg=False): return J('s_waitcnt vmcnt(0)' + (' lgkmcnt(0)' if lg else ''), need=list(names), lg=lg)
def qld(f, h, dst): return J(f'buffer_load_dwordx4 {dst}, v{QN}, {s_(sQ, 4)}, s{sOf + 6 * h + (f >> 2)} offen offset:{(1024 if E("DIAG", 0) & 16 else 64) * (f & 3)}{LDP}'.replace(f'v{QN},', 'v80,' if E('DIAG', 0) & 16 and h == 0 else f'v{QN},'), name=('Q', h, f))
def xld(h): return [J(f'buffer_load_dwordx4 {v(T + 8 + 4 * k, 4)}, v{VOD}, {s_(sQ, 4)}, s{sOf + 6 * h + 4} offen{" offset:2048" if k else ""}{LDP}', name=('X', h)) for k in range(2)]


def scale4(r, t, pk=1):
    o = [J(f'v_lshlrev_b32 v{t + 2 * i}, 16, v{r + i}') for i in range(4)]
    o += [J(f'v_and_b32 v{t + 2 * i + 1}, s{sMask}, v{r + i}') for i in range(4)]
    if pk: o += [J(f'v_pk_mul_f32 {v(t + 2 * i, 2)}, {v(t + 2 * i, 2)}, {s_(sC, 2)}') for i in range(4)]
    else: o += [J(f'v_mul_f32 v{t + i}, s{sC}, v{t + i}') for i in range(8)]
    o += [J(f'v_cvt_pk_bf16_f32 v{r + i}, v{t + 2 * i}, v{t + 2 * i + 1}') for i in range(4)]
    return o


def xs_block(h):
    o = [vwait(('X', h))] + scale4(T + 8, T, 1 - h) + scale4(T + 12, T, 1 - h)
    o += L(f'v_add_u32 v{T}, s{sXo}, v{PXR}')
    return o + [J(f'ds_write_b128 v{T}, {v(T + 8 + 4 * k, 4)} offset:{2048 * k}') for k in range(2)]


def qfrag(f, t, pk=1):
    o = [vwait(('Q', 1, f))] + [J(f'v_accvgpr_read_b32 v{t + 2 * i + 1}, a{aR + 4 * f + i}') for i in range(4)]
    o += [J(f'v_lshlrev_b32 v{t + 2 * i}, 16, v{t + 2 * i + 1}') for i in range(4)]
    o += [J(f'v_and_b32 v{t + 2 * i + 1}, s{sMask}, v{t + 2 * i + 1}') for i in range(4)]
    if pk: o += [J(f'v_pk_mul_f32 {v(t + 2 * i, 2)}, {v(t + 2 * i, 2)}, {s_(sC, 2)}') for i in range(4)]
    else: o += [J(f'v_mul_f32 v{t + i}, s{sC}, v{t + i}') for i in range(8)]
    o += [J(f'v_cvt_pk_bf16_f32 v{t + 2 * i}, v{t + 2 * i}, v{t + 2 * i + 1}') for i in range(4)]
    return o + [J(f'v_accvgpr_write_b32 a{aR + 4 * f + i}, v{t + 2 * i}') for i in range(4)]


def stamp(idx):
    if not STAMP: return [], []
    return L('s_memtime s[98:99]\ns_memrealtime s[100:101]'), L(f'v_writelane_b32 v0, s98, {idx}\nv_writelane_b32 v0, s100, {idx + 32}')


def setup():
    o = L(f"""
s_mov_b32 s{sMask}, 0xffff0000
s_mov_b32 s{sC}, {hex(CSC)}
s_mov_b32 s{sC + 1}, {hex(CSC)}
s_mov_b32 s{sLo}, {hex(LOB)}
s_mov_b32 s{sRg}, {hex(HIB - LOB)}
s_mov_b32 s{sF}, 0
s_add_u32 s{sXo}, s{sM}, {QXL - PXL}
v_lshrrev_b32 v18, 3, v16
v_lshlrev_b32 v18, 11, v18
v_and_b32 v19, 7, v16
v_lshl_add_u32 v18, v19, 7, v18
v_and_b32 v19, 6, v16
v_xor_b32 v19, v19, v17
v_lshl_add_u32 v{KA}, v19, 4, v18
v_xor_b32 v{KA + 1}, 64, v{KA}
s_lshl_b32 s48, s{sW}, 12
v_add_u32 v{KX}, s48, v{KA}
v_add_u32 v{KX + 1}, s48, v{KA + 1}
v_lshlrev_b32 v{PXR}, 4, v0
v_add_u32 v{PXR}, {PXL}, v{PXR}
s_lshl_b32 s48, s58, 11
s_lshl_b32 s49, s59, 3
s_add_u32 s48, s48, s49
v_add_u32 v{PXW}, s48, v{PXR}
v_lshrrev_b32 v18, 5, v0
v_lshlrev_b32 v18, 11, v18
v_bfe_u32 v19, v0, 2, 3
v_lshl_add_u32 v18, v19, 7, v18
v_and_b32 v19, 6, v19
v_bfe_u32 v20, v0, 1, 1
v_or_b32 v19, v19, v20
v_lshl_add_u32 v18, v19, 4, v18
v_and_b32 v20, 1, v0
v_lshl_add_u32 v18, v20, 3, v18
s_mul_i32 s49, s{sW}, 2304
s_add_u32 s49, s49, {STG}
v_mul_u32_u24 v19, 144, v16
v_lshl_add_u32 v19, v17, 3, v19
v_add_u32 v{GO}, s49, v19
v_lshrrev_b32 v19, 3, v0
v_and_b32 v20, 7, v0
v_lshlrev_b32 v20, 4, v20
v_mul_u32_u24 v21, 144, v19
v_add3_u32 v{GO + 1}, v21, v20, s49
s_lshl_b32 s48, s{sW}, 5
v_xor_b32 v20, s48, v20
v_lshl_add_u32 v{GO + 2}, v19, 8, v20
s_sub_u32 s{sXc}, s48, s49
s_add_u32 s{sXc}, s{sXc}, {XST}
s_mul_i32 s{sXc + 1}, s{sW}, 2176
s_add_u32 s{sXc + 1}, s{sXc + 1}, {XST - PXL}
s_lshl_b32 s{sXc + 2}, s{sW}, 11
s_sub_u32 s{sXc + 2}, s{sXc + 2}, {PXL}
s_add_u32 s48, s48, 0x10000
v_xor_b32 v{VA}, s48, v18
v_xor_b32 v{VA + 1}, 32, v{VA}
v_xor_b32 v{VA + 2}, 64, v{VA}
v_xor_b32 v{VA + 3}, 0x60, v{VA}
v_and_b32 v18, 3, v0
v_mov_b32 v19, 0x3f803f80
v_add_u32 v{LM}, {QXL}, v{KA}
v_add_u32 v{LM + 1}, {QXL}, v{KA + 1}
""")
    o += L(f's_add_u32 s{sOf + 5}, s{sOf + 4}, 4096')
    o += [J(f's_add_u32 s{sOf + 6 + k}, s{sOf + k}, {HQ}') for k in range(6)]
    for t in range(4):
        o += L(f'v_cmp_eq_u32 vcc, {t}, v18\nv_cndmask_b32 v20, 0, v19, vcc')
        o += [J(f'v_accvgpr_write_b32 a{aC + 4 * t + k}, v20') for k in range(4)]
    if STAMP: o += L(f'v_writelane_b32 v0, s94, 0\nv_writelane_b32 v0, s96, 32')
    return o


def startup(blks):
    o = L(f"""
s_cmp_ge_u32 s2, 256
s_cbranch_scc1 L_end
s_load_dwordx4 s[48:51], s[0:1], 0
s_load_dwordx4 s[52:55], s[0:1], 16
""")
    if E('PF', 1):
        o += L(f'''
s_getpc_b64 s[{sP}:{sP + 1}]
L_pc:
s_mov_b32 s{sP + 2}, L_end-L_pc
s_mov_b32 s{sP + 3}, 0x20000
s_and_b32 s{sP + 1}, s{sP + 1}, 0xffff
s_bfe_u32 s62, s2, {hex(0x20003 if PFN == 4 else 0x10003)}
s_lshl_b32 s62, s62, 15
v_lshlrev_b32 v21, 7, v0
''') + [J(f'buffer_load_dword v40, v21, {s_(sP, 4)}, s62 offen', name='pf')]
    if STAMP: o += L(f's_load_dwordx2 s[56:57], s[0:1], {32 if STAMP == 2 else 40}\ns_memtime s[94:95]\ns_memrealtime s[96:97]')
    o += L(f"""
v_lshrrev_b32 v16, 6, v0
v_and_b32 v0, 63, v0
v_readfirstlane_b32 s{sW}, v16
v_and_b32 v16, 15, v0
v_lshlrev_b32 v80, 4, v0
v_lshrrev_b32 v17, 4, v0
v_lshlrev_b32 v{QN}, 8, v16
v_lshl_add_u32 v{QN}, v17, 4, v{QN}
v_lshrrev_b32 v18, 3, v0
v_and_b32 v19, 6, v18
v_and_b32 v20, 7, v0
v_xor_b32 v19, v19, v20
v_lshlrev_b32 v18, 8, v18
v_lshl_add_u32 v{VOD}, v19, 4, v18
s_lshr_b32 s58, s{sW}, 1
s_and_b32 s59, s{sW}, 1
s_mul_i32 s{sQb}, s2, {2 * HQ}
s_lshl_b32 s60, s{sW}, 14
s_add_u32 s{sQo}, s{sQb}, s60
s_lshl_b32 s{sN}, s2, 19
s_mov_b32 s{sNv}, s{sN}
s_lshl_b32 s61, s58, 12
s_lshl_b32 s62, s59, 10
s_add_u32 s{sM}, s61, s62
s_lshl_b32 s63, s59, 7
s_add_u32 s63, s63, s61
v_add_u32 v{VOD}, s63, v{VOD}
s_mov_b32 s{sOf}, s{sQo}
s_add_u32 s{sOf + 1}, s{sQo}, 4096
s_add_u32 s{sOf + 2}, s{sQo}, 8192
s_add_u32 s{sOf + 3}, s{sQo}, 12288
s_add_u32 s{sOf + 4}, s{sQb}, 0x10000
s_mov_b32 s{sK + 2}, 134217728
s_mov_b32 s{sV + 2}, 134217728
s_mov_b32 s{sQ + 2}, 37748736
s_mov_b32 s{sO + 2}, 37748736
s_mov_b32 s{sQ + 3}, 0x20000
s_mov_b32 s{sK + 3}, 0x20000
s_mov_b32 s{sV + 3}, 0x20000
s_mov_b32 s{sO + 3}, 0x20000
s_waitcnt lgkmcnt(0)
""")
    srd = lambda d, b: L(f's_mov_b32 s{d}, s{b}\ns_and_b32 s{d + 1}, s{b + 1}, 0xffff')
    o += srd(sQ, 48) + srd(sK, 50) + srd(sV, 52) + srd(sO, 54)
    if STAMP: o += srd(sWS, 56) + L(f's_mov_b32 s{sWS + 2}, {256 if STAMP == 2 else 0x100000}\ns_mov_b32 s{sWS + 3}, 0x20000')
    nf = 0
    for x in SO.split(','):
        if x[0] == 'q': o += [qld(4 * int(x[1]) + k, 0, v(O + 16 * int(x[1]) + 4 * k, 4)) for k in range(4)]
        elif x[0] == 'n': o += [qld(2 * int(x[1]) + k, 1, a_(aR + 8 * int(x[1]) + 4 * k, 4)) for k in range(2)]
        elif x == 'x': o += xld(0)
        elif x == 'b': p, d = blk(*blks.pop(0)); o += p + d
        elif x == 'U': o += setup()
        elif x == 'I':
            o += L('v_mul_u32_u24 v200, 0x9e3779, v0\nv_and_b32 v200, 0xbfffbfff, v200\nv_or_b32 v200, 0x3e003e00, v200')
            for k in range(1, 16): o += L(f'v_mul_lo_u32 v{200 + k}, v{199 + k}, v{199 + k}\nv_and_b32 v{200 + k}, 0xbfffbfff, v{200 + k}\nv_or_b32 v{200 + k}, 0x3e013e01, v{200 + k}')
        elif x[0] == 'm': o += [mfs(v(216 + 4 * (k % 8), 4), v(200 + 4 * (k & 3), 4), v(200 + 4 * ((k >> 2) & 3), 4), '0' if k < 8 else v(216 + 4 * (k % 8), 4)) for k in range(int(x[1:]))]
        elif x == 'X': o += xs_block(0)
        elif x[0] == 's':
            for f in range(4 * int(x[1]), 4 * int(x[1]) + 4):
                o += [vwait(('Q', 0, f))] + scale4(O + 4 * f, SS[0] + 8 * (f & 1)) + [J(f'v_accvgpr_write_b32 a{aQ + 4 * f + i}, v{O + 4 * f + i}') for i in range(4)]
        if FINE and STAMP == 1 and (x[0] in 'sXU') == (FINE == 1) and nf < 12:
            o += L(f's_memrealtime s[100:101]\ns_waitcnt lgkmcnt(0)\ns_mov_b32 s{82 + nf}, s100'); nf += 1
    o += [J(f'v_writelane_b32 v0, s{82 + k}, {51 + k}') for k in range(nf)]
    return o


class St:
    def __init__(self, name, ins, earliest=-1, deadline=10 ** 9, after=None, prio=0):
        self.name = name; self.ins = list(ins); self.earliest = earliest; self.pos = 0; self.after = after; self.prio = prio
        self.dl = [deadline] * (len(self.ins) + 1)
        for k in range(len(self.ins) - 1, -1, -1): self.dl[k] = min(self.dl[k + 1], self.ins[k].info.get('d', 10 ** 9))
    def done(self): return self.pos >= len(self.ins)


VORD = [1, 5, 2, 6, 3, 7, 0, 4]
UB = [O + 8 * k for k in range(16)] + [OX, OX + 8]
def pstore(data, p, i, h):
    vo, so, im = (GO + 2, p >> 1, (p & 1) * 128 + i * 2048) if p < 8 else (GX, 4, i * 1024)
    return J(f'buffer_store_dwordx4 {data}, v{vo}, {s_(sO, 4)}, s{sOf + 6 * h + so} offen{f" offset:{im}" if im else ""}{STP}', name='st')
def park(p, i): return a_(aQ + 8 * p + 4 * i, 4) if p < 8 else v(T + 8 + 4 * i, 4)
def xread(i): return J(f'ds_read_b128 {park(8, i)}, v{XR} offset:{1088 * i}')


class G:
    def __init__(self):
        self.M = []; self.reads = []; self.S = []; self.last = {}; self.pos = {}; self.fix = {}; self.resv = set(); self.it = -1
        self.bar = {}; self.caps = []; self.post = {}; self.nods = set()
    def at(self, g, xs): self.fix.setdefault(g, []).extend(xs)
    def top(self, i, ins):
        self.it = i; self.bar[i] = len(self.M) - 1; self.at(len(self.M) - 1, ins)
    def frag(self, reg, rd, it=None, e=None):
        f = {'reg': reg, 'rd': rd, 'e': max(self.last.get(reg, -1), self.bar[self.it] if e is None else e), 'first': None, 'it': self.it if it is None else it}
        self.reads.append(f); return f
    def use(self, m, *fs):
        for f in fs:
            if f['first'] is None: f['first'] = len(self.M)
            self.last[f['reg']] = len(self.M)
        for r in m.dst: self.pos['w', r] = len(self.M)
        self.M.append(m)
    def vread(self, b):
        self.vf = {}
        for i in range(8):
            dt = VORD[i]; r = (aK if b == 63 else aV) + 4 * i
            self.vf[dt] = self.frag(r, [J(f'ds_read_b64_tr_b16 {a_(r + 2 * u, 2)}, v{VA + (dt & 3)} offset:{slotV(b) + (dt >> 2) * 1024 + u * 4096}') for u in range(2)])
    def qxread(self, adr, e):
        self.qx = {(u, k): self.frag(aQX + 16 * u + 4 * k, [J(f'ds_read_b128 {a_(aQX + 16 * u + 4 * k, 4)}, v{adr + (k & 1)} offset:{u * 4096 + (k >> 1) * 1024}')], e=e) for k in range(4) for u in range(2)}
    def qk(self, kb):
        b = kb & 1; q = aQ if kb < 32 else aR
        self.pos['qk', kb] = len(self.M)
        for hf in range(2):
            for k4 in range(4):
                r = aK + 4 * (4 * hf + k4)
                f = self.frag(r, [J(f'ds_read_b128 {a_(r, 4)}, v{KA + (k4 & 1)} offset:{slotK(kb) + hf * 4096 + (k4 >> 1) * 1024}')])
                for t in range(4):
                    d = v(SS[b] + 8 * t + 4 * hf, 4)
                    self.use(mfs(d, a_(r, 4), a_(q + 16 * t + 4 * k4, 4), '0' if k4 == 0 else d), f)
                    if k4 == 3: self.pos['s', kb, t, hf] = len(self.M) - 1
    def xqk(self, kb):
        for k4 in range(4):
            r = aX + 4 * ((k4 + 2) & 3)
            f = self.frag(r, [J(f'ds_read_b128 {a_(r, 4)}, v{KX + (k4 & 1)} offset:{slotK(kb) + (k4 >> 1) * 1024}')])
            for u in range(2):
                d = v(SX + 4 * u, 4)
                self.use(mfs(d, a_(r, 4), a_(aQX + 16 * u + 4 * k4, 4), '0' if k4 == 0 else d), f, self.qx[u, k4])
        self.pos['x', kb] = len(self.M) - 1
    def pv(self, kb):
        b = kb & 1; buf = (kb >> 1) & 1; z = kb % 32 == 0
        self.pos['pv', kb] = len(self.M)
        px = [self.frag(aX + 8 * b + 4 * u, [J(f'ds_read_b128 {a_(aX + 8 * b + 4 * u, 4)}, v{PXR} offset:{buf * 4096 + b * 2048 + u * 1024}')]) for u in range(2)]
        def o(t, dt):
            d = v(O + 32 * t + 4 * dt, 4); f = self.vf[dt]; self.pos.setdefault(('p', kb, t), len(self.M))
            self.use(mfs(d, a_(f['reg'], 4), v(SS[b] + 8 * t, 4), '0' if z else d), f)
        def lm(t):
            self.pos.setdefault(('p', kb, t), len(self.M)); self.pos['lm', kb, t] = len(self.M)
            self.use(mfs(v(LM, 4), a_(aC + 4 * t, 4), v(SS[b] + 8 * t, 4), '0' if z and t == 0 else v(LM, 4)))
        def x(h):
            f = self.vf[4 * h]
            for u in range(2):
                d = v(OX + 8 * u + 4 * h, 4)
                self.use(mfs(d, a_(f['reg'], 4), a_(px[u]['reg'], 4), '0' if z else d), f, px[u])
            self.pos['lx', kb, h] = len(self.M)
            self.use(mfs(v(LX, 4), a_(aC + 4 * h, 4), a_(px[h]['reg'], 4), '0' if z and h == 0 else v(LX, 4)), px[h])
        if kb % 32 == 31:
            if kb == 63: x(0); x(1)
            for t in range(4):
                lm(t)
                for dt in range(8): o(t, dt)
            if kb == 31: x(0); x(1)
        elif kb == 32:
            for t in range(4):
                for dt in range(8):
                    o(t, dt)
                    if t == 3 and dt & 1: lm(dt >> 1)
            x(0); x(1)
        else:
            for i in range(8):
                for t in range(4): o(t, VORD[i])
                if i < 4: lm(i)
                if VORD[i] & 3 == 0: x(VORD[i] >> 2)
        self.pos['pve', kb] = len(self.M) - 1
    def sm(self, kb):
        for t in range(4):
            prev = None; S = SS[kb & 1] + 8 * t; dl = self.pos['p', kb, t] - 2
            for hf in range(2):
                x = [J(f'v_exp_f32 v{S + 4 * hf + r}, v{S + 4 * hf + r}') for r in range(4)]
                x += [J(f'v_cvt_pk_bf16_f32 v{S + 2 * hf + k}, v{S + 4 * hf + 2 * k}, v{S + 4 * hf + 2 * k + 1}') for k in range(2)]
                prev = St(f'sm{kb}.{t}{hf}', x, self.pos['s', kb, t, hf], dl - (4 if hf == 0 else 0), after=prev); self.S.append(prev)
    def smx(self, kb):
        for u in range(2):
            S = SX + 4 * u
            x = [J(f'v_exp_f32 v{S + r}, v{S + r}') for r in range(4)]
            x += [J(f'v_cvt_pk_bf16_f32 v{S + k}, v{S + 2 * k}, v{S + 2 * k + 1}') for k in range(2)]
            x += [J(f'ds_write_b64 v{PXW}, {v(S, 2)} offset:{((kb >> 1) & 1) * 4096 + u * 1024}')]
            self.S.append(St(f'smx{kb}.{u}', x, self.pos['x', kb], self.bar[kb >> 1] - BARW))
    def vm(self, g, pre, c):
        while g in self.resv: g += 1
        self.resv.add(g); self.at(g - 1, pre); self.at(g, [c])
        for k in NOD: self.nods.add(g + k)
        return g

    def drain(self, h, wE, wD):
        kb = 32 * h + 31; big = len(self.M) - 1
        def tag(xs, e=None, d=None):
            for c in xs:
                if e is not None: c.info['e'] = e
                if d is not None: c.info['d'] = d
            return xs
        order = list(range(18)) if h == 0 else [16, 17] + list(range(16))
        n = len(order)
        dd = lambda k: min(wD['v', UB[k]], wD['v', UB[k] + 4]) - 2
        Gk = []
        for j in range(n + 2):
            x = self.pos['pv', kb] + (D0 + int(DSTEP * j) if h == 0 else 0)
            if j < n: x = max(x, wE['v', UB[order[j]] + 4] + DLAG, (self.pos['lx', kb, order[j] - 16] + DLAG + 2) if order[j] >= 16 else 0)
            if j: x = max(x, Gk[-1] + 2)
            while x in self.resv or x in self.bar.values(): x += 1
            Gk.append(min(x, big))
        grpof = lambda k: k >> 2 if k < 16 else k - 12
        lastuse = {}; st = []; pend = []
        for j in range(n + 1):
            o = []; x = []
            if j >= 1:
                k = order[j - 1]; b = UB[k]
                o += [J(f'v_cvt_pk_bf16_f32 v{b + i}, v{b + 2 * i}, v{b + 2 * i + 1}') for i in range(4)]
                if k < 16:
                    x = [J(f'ds_write2_b64 v{GO}, {v(b, 2)}, {v(b + 2, 2)} offset0:{8 * (k & 1)} offset1:{8 * (k & 1) + 4}')]; x[0].cost = 9
                else:
                    x = [J(f'ds_write_b64 v{XW}, {v(b + 2 * i, 2)} offset:{(k - 16) * 4352 + 128 * i}') for i in range(2)]
                    for c in x: c.dst = {('x', 0)}; c.cost = 9
                tag(x, Gk[j] + 1, dd(k) if h == 0 else Gk[j + 1])
                if h == 0: assert Gk[j] < dd(k), k
                if k < 16 and k & 1:
                    dst = [park(k >> 1, i) if h == 0 else v(b - 4 + 8 * i, 4) for i in range(2)]
                    x += tag(pend, d=Gk[j + 1]) + [J(f'ds_read_b128 {dst[i]}, v{GO + 1} offset:{1152 * i}') for i in range(2)]
                    pend = [pstore(dst[i], k >> 1, i, 1) for i in range(2)] if h else []
                if h and j == XB:
                    bb = J('s_barrier'); bb.src = {('x', 0)}
                    x += [bb, xread(0), xread(1)]
                if h and j == XB + 3: x += [pstore(park(8, i), 8, i, 1) for i in range(2)]
            if j < n:
                k = order[j]; b = UB[k]; r = T + 2 * (len(set(map(grpof, order[:j + 1]))) & 1)
                if j == 0 or grpof(k) != grpof(order[j - 1]):
                    l = LX + k - 16 if k >= 16 else LM + (k >> 2)
                    e = self.pos['lx', kb, k - 16] if k >= 16 else self.pos['lm', kb, k >> 2]
                    self.S.append(St(f'rcp{h}.{k}', L(f'v_rcp_f32 v{r}, v{l}\nv_rcp_f32 v{r + 1}, v{l}'), max(e, lastuse.get(r, -1) + 1), Gk[j]))
                    assert lastuse.get(r, -1) < Gk[j]
                o += [J(f'v_pk_mul_f32 {v(b + 2 * i, 2)}, {v(b + 2 * i, 2)}, {v(r, 2)}') for i in range(4)]; lastuse[r] = Gk[j]
            if Gk[j] == big: o += x
            else: st += x
            self.post.setdefault(Gk[j], []).extend(o)
        self.S.append(St(f'dr{h}', st, Gk[0], big if h else self.bar[17] - BARW))
        c = tag(L(f"""
v_subrev_u32 v{T + 6}, s{sLo}, v{LM}
v_subrev_u32 v{T + 7}, s{sLo}, v{LM + 1}
v_max_u32 v{T + 6}, v{T + 6}, v{T + 7}
v_subrev_u32 v{T + 7}, s{sLo}, v{LM + 2}
v_cmp_lt_u32 s[48:49], s{sRg}, v{T + 6}
v_subrev_u32 v{T + 6}, s{sLo}, v{LM + 3}
v_max_u32 v{T + 6}, v{T + 6}, v{T + 7}
v_subrev_u32 v{T + 7}, s{sLo}, v{LX}
v_cmp_lt_u32 s[50:51], s{sRg}, v{T + 6}
v_subrev_u32 v{T + 6}, s{sLo}, v{LX + 1}
"""), d=wD.get(('v', LM), big + 2) - 2) + L(f"""
v_max_u32 v{T + 6}, v{T + 6}, v{T + 7}
s_lshl_b32 s{sF}, s{sF}, 3
v_cmp_lt_u32 s[52:53], s{sRg}, v{T + 6}
""")
        for k in range(3): c += [J(f's_cmp_lg_u64 s[{48 + 2 * k}:{49 + 2 * k}], 0\ns_cselect_b32 s55, {1 << k}, 0\ns_or_b32 s{sF}, s{sF}, s55')]
        if h: self.post[big].extend(c + pend)
        else: self.S.append(St(f'chk{h}', c, self.pos['pve', kb], self.pos['pve', kb + 1] + 8))

    def build(self, prefix):
        M = self.M; n = len(M); fix = self.fix
        items = []
        for f in self.reads:
            d = min(f['first'] - LEAD, self.bar.get(f['it'] + 1, 10 ** 9) - BARW)
            for r in f['rd']: items.append((f['e'], d, len(items), r, f))
        items.sort(key=lambda x: x[0]); ip = 0; act = []; lastg = -100
        for g in range(-1, n):
            while ip < len(items) and items[ip][0] <= g: act.append(items[ip][1:]); ip += 1
            k = 0
            while k < (4 if g < 0 else 1) and g not in self.resv and g not in self.nods and act:
                act.sort(key=lambda x: x[:2])
                urgent = any(x[0] - g <= URG + DSS * i for i, x in enumerate(act))
                if not (g - lastg >= DSS or urgent or g < 0): break
                x = act.pop(0); self.at(g, [x[2]]); lastg = g; k += 1
                assert g < x[3]['first'] and g < self.bar.get(x[3]['it'] + 1, 10 ** 9), (g, x[2].text)
        assert not act and ip == len(items)
        S = sorted(self.S, key=lambda s: s.earliest); sp = 0; act = []
        out = []; hist = list(prefix); rep = []; forced = {}
        for g in range(-1, n):
            while sp < len(S) and S[sp].earliest <= g: act.append(S[sp]); sp += 1
            if g >= 0: out.append(M[g]); hist.append(M[g])
            fx = fix.get(g, [])
            for c in fx: out.append(c); hist.append(c)
            used = sum(c.cost for c in fx)
            nds = sum(1 for c in fx if c.kind in ('dsr', 'dsw', 'dma', 'vld', 'vst'))
            cap = 0 if g < 0 else CAP
            for lo, hi, cp in self.caps:
                if lo <= g <= hi: cap = cp
            nval = 0
            while True:
                cand = []
                for s in act:
                    if s.done() or (s.after is not None and not s.after.done()): continue
                    c = s.ins[s.pos]; force = s.dl[s.pos] <= g
                    if c.info.get('e', -1) > g:
                        assert not force, (s.name, c.text); continue
                    if c.kind in ('dsw', 'vst') and not force and (nval or nds): continue
                    if c.kind == 'dsr' and not force and (nval or nds > 1): continue
                    cand.append((c.kind not in ('dsw', 'dsr', 'vst'), s.prio, s.dl[s.pos], s, c, force))
                cand.sort(key=lambda x: x[:3])
                pick = None
                for _, _, _, s, c, force in cand:
                    if (used + c.cost <= cap or force) and rpad(hist, c) == 0:
                        pick = (s, c)
                        if used + c.cost > cap: forced[s.name] = forced.get(s.name, 0) + 1
                        break
                if pick is None:
                    fl = [x for x in cand if x[5]]
                    if fl:
                        p = J(f's_nop {rpad(hist, fl[0][4]) - 1}'); out.append(p); hist.append(p); used += p.cost
                        continue
                    break
                s, c = pick; s.pos += 1; s.lastg = g
                out.append(c); hist.append(c); used += c.cost
                if isv(c): nval += 1
                elif c.kind not in ('salu', 'wait'): nds += 1
            for c in self.post.get(g, []): out.append(c); hist.append(c); used += c.cost
            rep.append(used); hist = hist[-24:]; act = [s for s in act if not s.done()]
        assert not act and sp == len(S), [(s.name, s.pos) for s in act]
        if VERB:
            bs = sorted(self.bar.items()) + [(99, n - 1)]
            for (i, a), (_, b) in zip(bs, bs[1:]):
                r = rep[a + 1:b + 1]
                print(f'; it {i}: n={b - a} est={sum(max(16, x + 6.5) for x in r):.0f} free={sum(1 for x in r if x < 4.8)}', ' '.join('%d' % x for x in r) if VERB > 1 else '', file=sys.stderr)
            print('; forced', forced, file=sys.stderr)
        return out


def lgk(seq):
    out = []; t = 0; pipe = 0; q = []
    for c in seq:
        if c.kind == 'label': out.append(c); continue
        if c.kind == 'wait':
            k = parse_wait(c.text)
            if k is not None: del q[:max(0, len(q) - k)]
        else:
            touch = c.src | (c.dst if c.kind != 'dsw' else set())
            k = -1
            for idx, (regs, ti) in enumerate(q):
                if regs & touch and not (c.kind == 'dsr' and not (regs & c.src)): k = idx
            if len(q) >= 15 and c.kind in ('dsr', 'dsw'): k = max(k, 0)
            if k >= 0:
                while k + 1 < len(q) and t - q[k + 1][1] >= SETTLE: k += 1
                w = J(f's_waitcnt lgkmcnt({len(q) - 1 - k})', tag='autowait'); w.info['age'] = t - q[k][1]
                out.append(w); del q[:k + 1]
        if c.kind == 'mfma':
            t = max(t, pipe); pipe = t + c.mlen
        if c.kind in ('dsr', 'dsw'): q.append((set(c.dst), t))
        t += c.cost
        out.append(c)
    return out


def vmfix(seq):
    ops = []; done = -1; out = []
    for c in seq:
        if c.kind in ('dma', 'vst', 'vld'): ops.append(c.info.get('name'))
        elif c.kind == 'wait' and 'need' in c.info:
            k = -1
            for nm in c.info['need']:
                idx = [i for i, x in enumerate(ops) if x == nm]
                assert len(idx) == (1 if nm[0] == 'Q' else 2), (nm, idx)
                k = max(k, idx[-1])
            if k <= done:
                if not c.info['lg']: continue
                c.text = 's_waitcnt lgkmcnt(0)'
            else:
                done = k; nn = len(ops) - 1 - k
                assert nn <= 63
                c.text = c.text.replace('vmcnt(0)', f'vmcnt({nn})')
                if VERB: print('; vm', c.info['need'][-1], nn, end=' ', file=sys.stderr)
        out.append(c)
    if VERB: print(file=sys.stderr)
    return out


def ending():
    o = L('L_fin:')
    if STAMP:
        pre, post = stamp(18)
        o += L('s_waitcnt vmcnt(0)') + pre + L('s_waitcnt lgkmcnt(0)') + post
    if STAMP == 2:
        sel = [32 + x for x in (1, 2, 4, 6, 8, 10, 11, 13, 15, 17, 18)] + [2, 10, 18]
        o += L('v_mov_b32 v23, s96\ns_mov_b32 exec_hi, 0\nv_mov_b32 v23, s94\ns_mov_b64 exec, -1\nv_sub_u32 v22, v0, v23\nv_mov_b32 v21, 0')
        o += [J(f'v_writelane_b32 v21, {8 + 4 * k}, {x}') for k, x in enumerate(sel)]
        m = sum(1 << x for x in sel)
        o += L(f's_mov_b32 exec_lo, {hex(m & 0xffffffff)}\ns_mov_b32 exec_hi, {hex(m >> 32)}\ns_nop 4\nbuffer_atomic_add v22, v21, {s_(sWS, 4)}, 0 offen sc1')
        o += L(f's_mov_b64 exec, 1\ns_not_b32 s48, s96\nv_mov_b32 v16, s48\nv_mov_b32 v17, s100\nbuffer_atomic_umax v16, off, {s_(sWS, 4)}, 0 sc1\nbuffer_atomic_umax v17, off, {s_(sWS, 4)}, 0 offset:4 sc1\ns_mov_b64 exec, -1')
    elif STAMP:
        o += L(f'''
v_mov_b32 v16, s96
v_mov_b32 v17, s97
v_mov_b32 v18, s100
v_mov_b32 v19, s101
s_lshl_b32 s48, s2, 6
s_lshl_b32 s49, s{sW}, 4
s_add_u32 s48, s48, s49
v_mov_b32 v20, 0
v_mov_b32 v22, v0
v_mov_b32 v23, v0
v_permlane32_swap_b32 v22, v23
v_subrev_u32 v21, {PXL}, v{PXR}
v_lshrrev_b32 v21, 1, v21
s_lshl_b32 s49, s48, 5
s_add_u32 s49, s49, 0x40000
buffer_store_dwordx2 v[22:23], v21, {s_(sWS, 4)}, s49 offen
s_mov_b64 exec, 1
buffer_store_dwordx4 v[16:19], v20, {s_(sWS, 4)}, s48 offen
s_mov_b64 exec, -1
''')
    o += L(f's_cmp_lg_u32 s{sF}, 0\ns_cbranch_scc1 L_slow\nL_end:\ns_endpgm')
    return o


def slow():
    sB = sT + 1; sR = sT + 2; sKV = sT + 3; sJ = sT + 4; sY = sT + 5; sP = sT + 7
    LN = 1; VO = 2; VAs = 3; VD = 5; m = 6; l = 7; t = 8; GX = 13; Q = 128; OO = 160; KF = 16; S = 48; VF = 64; QT = 240
    o = L(f'''
L_slow:
s_waitcnt vmcnt(0) lgkmcnt(0)
s_and_b32 s{sB}, s{sF}, 0x24
s_cbranch_scc0 L_sl1
s_barrier
s_cmp_eq_u32 s{sW}, 0
s_cbranch_scc1 L_sl1
s_and_b32 s{sF}, s{sF}, 0x1b
s_cbranch_scc0 L_end
L_sl1:
v_subrev_u32 v{LN}, {PXL}, v{PXR}
v_lshrrev_b32 v{LN}, 4, v{LN}
v_and_b32 v{VO}, 31, v{LN}
v_lshrrev_b32 v{t}, 5, v{LN}
v_lshlrev_b32 v{VO}, 8, v{VO}
v_lshl_add_u32 v{GX}, v{t}, 5, v{VO}
v_lshl_add_u32 v{VO}, v{t}, 4, v{VO}
v_lshrrev_b32 v17, 3, v{LN}
v_and_b32 v18, 7, v{LN}
v_and_b32 v19, 2, v17
v_lshlrev_b32 v19, 1, v19
v_xor_b32 v18, v18, v19
v_lshlrev_b32 v17, 8, v17
v_lshl_add_u32 v{VD}, v18, 4, v17
v_bfe_u32 v16, v{LN}, 2, 2
v_lshl_add_u32 v18, v{t}, 2, v16
v_lshlrev_b32 v18, 7, v18
v_lshrrev_b32 v16, 1, v16
v_lshl_add_u32 v18, v16, 6, v18
v_and_b32 v16, 1, v{LN}
v_lshl_add_u32 v18, v16, 5, v18
v_bfe_u32 v16, v{LN}, 4, 1
v_lshl_add_u32 v18, v16, 4, v18
v_bfe_u32 v16, v{LN}, 1, 1
v_lshl_add_u32 v18, v16, 3, v18
s_lshl_b32 s{sP}, s{sW}, 13
v_add_u32 v{VAs}, s{sP}, v18
v_xor_b32 v{VAs + 1}, 64, v{VAs}
L_sl2:
s_ff1_i32_b32 s{sB}, s{sF}
s_bitset0_b32 s{sF}, s{sB}
s_cmp_ge_u32 s{sB}, 3
s_cselect_b32 s{sR}, 0, {HQ}
s_cselect_b32 s{sKV}, 0, {HK}
s_cselect_b32 s{sY}, 3, 0
s_sub_u32 s{sB}, s{sB}, s{sY}
s_lshl_b32 s{sY}, s2, 19
s_add_u32 s{sKV}, s{sKV}, s{sY}
s_lshl_b32 s{sY}, s{sB}, 13
s_add_u32 s{sY}, s{sY}, s{sQo}
s_add_u32 s{sJ}, s{sQb}, 0x10000
s_cmp_eq_u32 s{sB}, 2
s_cselect_b32 s{sY}, s{sJ}, s{sY}
s_add_u32 s{sR}, s{sR}, s{sY}
''')
    o += [J(f'buffer_load_dwordx4 {v(Q + 4 * k, 4)}, v{VO}, {s_(sQ, 4)}, s{sR} offen offset:{32 * k}') for k in range(8)]
    o += [J(f'v_mov_b64 {v(OO + 2 * k, 2)}, 0') for k in range(32)]
    o += L(f'v_mov_b32 v{m}, 0xff800000\nv_mov_b32 v{l}, 0\ns_mov_b32 s{sJ}, 0\ns_waitcnt vmcnt(0)')
    for k in range(8): o += scale4(Q + 4 * k, QT)
    o += L('L_sl3:')
    o += [J(f'buffer_load_dwordx4 {v(KF + 4 * k, 4)}, v{VO}, {s_(sK, 4)}, s{sKV} offen offset:{32 * k}') for k in range(8)]
    for w in range(4):
        o += L(f's_add_u32 m0, s{sP}, {(w >> 1) * 4096 + (w & 1) * 1024}\ns_add_u32 s{sY}, s{sKV}, {(w >> 1) * 4096 + (w & 1) * 128}')
        o += [dma(VD, sV, sY, 0, None), dma(VD, sV, sY, 2048, None)]
    o += L('s_waitcnt vmcnt(0)')
    o += [mfma(v(S, 16), v(KF + 4 * k, 4), v(Q + 4 * k, 4), '0' if k == 0 else v(S, 16)) for k in range(8)]
    for s in range(2):
        for d in range(4):
            o += [J(f'ds_read_b64_tr_b16 {v(VF + 16 * s + 4 * d + 2 * u, 2)}, v{VAs + (d & 1)} offset:{(2 * s + u) * 2048 + (d >> 1) * 1024}') for u in range(2)]
        o += L('s_waitcnt lgkmcnt(0)')
    o += L(f'v_max3_f32 v{t}, v{S}, v{S + 1}, v{m}')
    o += [J(f'v_max3_f32 v{t}, v{t}, v{S + 2 * k}, v{S + 2 * k + 1}') for k in range(1, 8)]
    o += L(f'''v_mov_b32 v{t + 1}, v{t}
v_permlane32_swap_b32 v{t}, v{t + 1}
v_max_f32 v{t}, v{t}, v{t + 1}
v_sub_f32 v{t + 1}, v{m}, v{t}
v_mov_b32 v{m}, v{t}
v_exp_f32 v{t + 1}, v{t + 1}''')
    o += [J(f'v_sub_f32 v{S + k}, v{S + k}, v{m}') for k in range(16)]
    o += L(f'v_mul_f32 v{l}, v{l}, v{t + 1}')
    o += [J(f'v_mul_f32 v{OO + k}, v{OO + k}, v{t + 1}') for k in range(64)]
    o += [J(f'v_exp_f32 v{S + k}, v{S + k}') for k in range(16)]
    o += [J(f'v_add_f32 v{l}, v{l}, v{S + k}') for k in range(16)]
    o += [J(f'v_cvt_pk_bf16_f32 v{S + 8 * s + k}, v{S + 8 * s + 2 * k}, v{S + 8 * s + 2 * k + 1}') for s in range(2) for k in range(4)]
    for s in range(2):
        for d in range(4):
            o.append(mfma(v(OO + 16 * d, 16), v(VF + 16 * s + 4 * d, 4), v(S + 8 * s, 4), v(OO + 16 * d, 16)))
    o += L(f'''s_nop 15
s_add_u32 s{sKV}, s{sKV}, 0x2000
s_add_u32 s{sJ}, s{sJ}, 1
s_cmp_lt_u32 s{sJ}, 32
s_cbranch_scc1 L_sl3
v_mov_b32 v{t}, v{l}
v_permlane32_swap_b32 v{l}, v{t}
v_add_f32 v{l}, v{l}, v{t}
v_rcp_f32 v{l}, v{l}''')
    o += [J(f'v_mul_f32 v{OO + k}, v{OO + k}, v{l}') for k in range(64)]
    o += [J(f'v_cvt_pk_bf16_f32 v{OO + k}, v{OO + 2 * k}, v{OO + 2 * k + 1}') for k in range(32)]
    o += [J(f'buffer_store_dwordx4 {v(OO + 4 * k, 4)}, v{GX}, {s_(sO, 4)}, s{sR} offen offset:{64 * (k >> 1) + 16 * (k & 1)}') for k in range(8)]
    o += L(f's_waitcnt vmcnt(0)\ns_cmp_lg_u32 s{sF}, 0\ns_cbranch_scc1 L_sl2\ns_endpgm')
    return fixh(o)


def main():
    blks = list(BLKS)
    st = startup(blks)
    g = G()
    def top(i):
        k = 1 if i < 0 else (2 + i // 2 if i % 2 == 0 else None)
        pre, post = stamp(k) if k else ([], [])
        g.top(i, pre + [vwait(*[x for x in BLKS if grp(*x) == i], lg=True)] + post + L('s_barrier'))
    top(-1)
    g.qxread(LM, -1)
    g.qk(0); g.xqk(0); g.vread(0); g.qk(1)
    for i in range(31):
        top(i)
        if i == 16: wE = {k[1]: p for k, p in g.pos.items() if k[0] == 'w'}
        g.pv(2 * i)
        if i == 16: wD = {}; [wD.setdefault(r, p) for p in range(g.pos['pv', 32], len(g.M)) for r in g.M[p].dst]
        g.vread(2 * i + 1)
        g.qk(2 * i + 2); g.xqk(2 * i + 2)
        if i == 14:
            g.at(g.bar[14] + 1, L(f'v_add_u32 v{T + 14}, {QXL}, v{KA}')); g.at(g.bar[14] + 2, L(f'v_add_u32 v{T + 15}, {QXL}, v{KA + 1}'))
            g.qxread(T + 14, g.bar[14] + 4)
        g.pv(2 * i + 1); g.vread(2 * i + 2); g.qk(2 * i + 3)
    top(31); g.pv(62); g.vread(63); g.pv(63)
    for kb in range(64): g.sm(kb)
    for kb in range(0, 64, 2): g.smx(kb)
    g.caps = [(g.pos['pv', 31] + 4, g.pos['pve', 32], CAPD), (g.pos['pv', 63] + 4, len(g.M), CAPT), (0, g.bar[0], CAPP), (g.bar[31], g.pos['pv', 63] + 3, CAPP)]
    nq = sum(1 for x in SO.split(',') if x[0] == 'n'); ldit = {p: -1 for p in range(nq)}
    stp = list(range(9))
    for i in range(-1, 31):
        b0 = g.bar[i] + 1; nb = min(NB.get(i, 4), len(blks))
        while nb and grp(*blks[nb - 1]) > i + 3: nb -= 1
        if i < 0: pos = list(range(18, 70, 3)); xg = [4, 8, 12]
        else:
            pos = DMG if nb <= 4 else [6 + (134 * k) // (2 * nb - 1) for k in range(2 * nb)]
            xg = DMG[2 * nb::2] + XG if nb < 4 else XG
        for k in range(nb):
            p, d = blk(*blks.pop(0))
            g.vm(b0 + pos[2 * k], [c for c in p if c.kind != 'nop'], d[0]); g.vm(b0 + pos[2 * k + 1], [], d[1])
        prs = []
        if XL == i: prs.append(xld(1))
        for _ in range(QL.get(i, 0)): prs.append([qld(2 * nq + k, 1, a_(aR + 8 * nq + 4 * k, 4)) for k in range(2)]); ldit[nq] = i; nq += 1
        for _ in range(ST.get(i, 0)):
            if stp: p = stp.pop(0); prs.append([pstore(park(p, k), p, k, 0) for k in range(2)]); assert i >= 17
        for pr, x in zip(prs, xg):
            x = g.vm(b0 + x, [], pr[0]); g.vm(x + XD, [], pr[1])
            if f'v{GX},' in pr[0].text and pr[0].kind == 'vst': g.reads.append({'reg': None, 'rd': [xread(0), xread(1)], 'e': max(g.bar[17], x - 60), 'first': x, 'it': 99})
        assert len(prs) <= len(xg)
    assert not blks and nq == 8 and not stp, (blks, nq, stp)
    g.drain(0, wE, wD)
    g.drain(1, {k[1]: p for k, p in g.pos.items() if k[0] == 'w'}, {})
    g.S.append(St('xadr', L(f'v_lshrrev_b32 v{XW}, 1, v{QN}\nv_and_b32 v{XR}, 0x30, v{QN}\nv_and_b32 v{XW}, 0x780, v{XW}\nv_add3_u32 v{XR}, v{PXR}, v{XR}, s{sXc + 1}\nv_add3_u32 v{XW}, v{GO}, v{XW}, s{sXc}\nv_add_u32 v{GX}, s{sXc + 2}, v{PXR}'), g.pos['qk', 32], g.pos['pv', 31], prio=1))
    xs = St('xs', xs_block(1), g.bar[XL + QLAG], g.bar[14] - BARW, prio=1); g.S.append(xs)
    dn = [i for i in sorted(DN) for _ in range(DN[i])]
    prev = None; seq = []
    for f in range(16):
        if f < len(dn): e = g.bar[dn[f]] + 40; seq.append((e, St(f'q{f}', qfrag(f, T), e, e, prio=1)))
        else: e = g.bar[min(14, ldit[f >> 1] + QLAG)]; seq.append((e, St(f'q{f}', qfrag(f, T, PK), e, g.pos['qk', 32] - 3, prio=1)))
    seq.append((xs.earliest, xs)); seq.sort(key=lambda x: x[0])
    for _, s in seq:
        s.after = prev; prev = s
        if s is not xs: g.S.append(s)
    start = fixh(lgk(st))
    main_ = g.build(start[-24:])
    if VERB: print('; last gaps:', [(s.name, [i for i in g.bar if g.bar[i] <= s.lastg][-1]) for _, s in seq], file=sys.stderr)
    prog = vmfix(start + main_)
    prog = fixh(lgk(prog))
    if VERB: print('; nops', sum(1 for c in prog if c.kind == 'nop'), 'young waits', [int(c.info['age']) for c in prog if c.tag == 'autowait' and c.info['age'] < 150], file=sys.stderr)
    prog += fixh(ending(), prog[-24:]) + slow()
    out = [f'; @launch grid=(256,1,1) block=(256,1,1) lds={LDSZ}',
           '.amdgcn_target "amdgcn-amd-amdhsa--gfx950"', '.text', f'.globl {NAME}', '.p2align 8', f'.type {NAME},@function', f'{NAME}:']
    dg = E('DIAG', 0); nbar = 0
    for c in prog:
        if c.kind == 'barrier': nbar += 1
        if nbar > 8 and ((dg & 1 and c.kind == 'barrier') or (dg & 2 and c.kind == 'dma') or (dg & 4 and c.tag == 'autowait')): continue
        if c.kind == 'vst' and c.info.get('name') == 'st' and ((dg & 32 and nbar > 32) or dg & 64): continue
        out.append(c.text)
    out += ['.section .rodata,"a"', '.p2align 6', f'.amdhsa_kernel {NAME}',
            '  .amdhsa_next_free_vgpr 512', '  .amdhsa_next_free_sgpr 102', '  .amdhsa_accum_offset 256',
            '  .amdhsa_group_segment_fixed_size 0', '  .amdhsa_kernarg_size 48', '  .amdhsa_user_sgpr_count 2',
            '  .amdhsa_user_sgpr_kernarg_segment_ptr 1', '  .amdhsa_system_sgpr_workgroup_id_x 1', '.end_amdhsa_kernel']
    print('\n'.join(out))


main()
```

```python
import os, sys, struct, math
sys.path.insert(0, os.path.dirname(os.path.abspath(__file__)))
from asmlib import *

E = lambda k, d: int(os.environ.get(k, d))
F = lambda k, d: float(os.environ.get(k, d))
EL = lambda k, d: [int(x) for x in os.environ.get(k, d).split(',') if x]
ED = lambda k, d: dict(tuple(int(y) for y in x.split(':')) for x in os.environ.get(k, d).split(',') if x)
STAMP = E('STAMP', 0); VERB = E('VERB', 0); FINE = E('FINE', 0)
CAP = F('CAP', 9.5); DSC = F('DSC', 4.0); CAPD = F('CAPD', 9.5); CAPT = F('CAPT', 9.5); CAPP = F('CAPP', 14)
SETTLE = E('SETTLE', 170)
LEAD = E('LEAD', 12); BARW = E('BARW', 8); URG = E('URG', 4); DSS = E('DSS', 2)
DMG = EL('DMG', '6,22,38,54,70,86,102,118')
XG = EL('XG', '14,46,78,110,30,62,94,126'); XD = E('XD', 1)
LDP = os.environ.get('LDP', ' nt'); STP = os.environ.get('STP', ' nt'); STX = os.environ.get('STX', '')
SO = os.environ.get('SO', 'q0,q1,x,q2,q3,b,U,s0,b,b,s1,X,b,b,s2,b,b,s3')
NB = ED('NB', '-1:4,8:5,9:5,10:5,11:5')
QL = ED('QL', '-1:2,0:2,1:2,2:2'); XL = E('XL', 8)
QLAG = E('QLAG', 3)
DN = ED('DN', '2:4,3:4,4:4,5:4')
ST = ED('ST', '18:1,20:1,22:1,24:1,26:1,28:1,29:2,30:1')
DS = EL('DS', '')
EL0 = E('EL0', 2); CQ = E('CQ', 6); CL = E('CL', 3); LMI = EL('LMI', '1,3'); ZDS = E('ZDS', 1); NOD = EL('NOD', ''); XB = E('XB', 9); PK = E('PK', 0); SWM = E('SWM', 1); D0 = E('D0', 8); DSTEP = F('DSTEP', 5.3); DLAG = E('DLAG', 3)
NAME = 'standalone__mha_softmax__near_ridge_kernel'
KA = 1; KX = 3; VA = 5; PXW = 9; PXR = 10; VOD = 11; QN = 12; GO = 13
SS = [16, 48]; SX = 80; OX = 88; LM = 104; LX = 108; T = 112; O = 128
aQ = 0; aQX = 64; aR = 96; aV = 160; aK = 192; aX = 224; aC = 240; aL = 244; IDX = LX + 2
sQ, sK, sV, sO = 4, 8, 12, 16
sW, sN, sQb, sMask, sC, sLo, sRg, sM, sF, sQo, sXo, sNv = 20, 21, 22, 25, 26, 28, 29, 30, 34, 35, 36, 37
sOf = 68
sT = 48; sWS = 64; sP = 40; PFN = 4
PXL = 0x20000; QXL = 0x22000; STG = 0x22000; XST = 0x24400; LDSZ = 0x26600
XW, XR, GX = T + 4, T + 5, QN; sXc = 44
f2u = lambda x: struct.unpack('<I', struct.pack('<f', x))[0]
CSC = f2u(math.log2(math.e) / math.sqrt(128.0))
LOB = f2u(2.0 ** -20); HIB = f2u(2.0 ** 30)
HK = 262144; HQ = 73728

v = lambda a, n=1: f'v{a}' if n == 1 else f'v[{a}:{a + n - 1}]'
a_ = lambda a, n=1: f'a{a}' if n == 1 else f'a[{a}:{a + n - 1}]'
s_ = lambda a, n=1: f's{a}' if n == 1 else f's[{a}:{a + n - 1}]'
COST = {'valu': 4.65, 'trans': 8.7, 'salu': 0.3, 'wait': 0.3, 'barrier': 1.0, 'dsw': DSC, 'dsr': DSC, 'vst': 8.0, 'dma': 9.0, 'vld': 9.0, 'smem': 1.0, 'branch': 1.0}


class I2(I):
    __slots__ = ('info', 'mlen')


def J(text, **kw):
    x = I2(text)
    if x.kind in COST: x.cost = COST[x.kind]
    if x.kind == 'smem': x.kind = 'salu'
    if x.op.startswith('v_permlane'): x.cost = 8.7
    x.tag = kw.get('tag'); x.earliest = kw.get('earliest'); x.info = kw; x.mlen = 0
    if x.kind == 'mfma': x.mlen = 16 if '16x16' in x.op else 32
    if x.op.startswith('v_writelane'): x.src = x.src | x.dst
    if x.op.startswith('s_bitcmp'): x.src = x.src | (x.dst - {('scc', 0)}); x.dst = {('scc', 0)}
    return x


def L(txt, **kw): return [J(x.strip(), **kw) for x in txt.strip().split('\n') if x.strip()]
def mfma(d, a, b, c): return J(f'v_mfma_f32_32x32x16_bf16 {d}, {a}, {b}, {c}')
def mfs(d, a, b, c): return J(f'v_mfma_f32_16x16x32_bf16 {d}, {a}, {b}, {c}')
def smf(k, b): return J(f'v_smfmac_f32_16x16x64_bf16 {a_(aL + 4 * k, 4)}, {a_(aC, 4)}, {b}, v{IDX}')
sreg = lambda b, t, hf: SS[b] + 8 * t + 4 * (hf ^ (~t & 1))
preg = lambda b, t: SS[b] + 8 * t + 4 * (~t & 1)
def isv(c): return c.kind in ('valu', 'trans')


def rpad(prev, c):
    dist = 0; pad = 0
    for p in reversed(prev):
        if p.kind == 'label': continue
        n = need_states(p, c)
        if n and p.kind == 'mfma' and p.mlen == 16: n = {12: 8, 10: 6, 7: 3}[n]
        if n > dist: pad = max(pad, n - dist)
        dist += p.states
        if dist >= 13: break
    return pad


def fixh(seq, prefix=()):
    out = list(prefix); n0 = len(out)
    for c in seq:
        if c.kind != 'label':
            pad = rpad(out[-24:], c)
            if pad: out.append(J(f's_nop {pad - 1}'))
        out.append(c)
    return out[n0:]


def edge_pad(prev, nxt):
    for k in range(0, 14):
        seq = list(prev[-24:]) + ([J(f's_nop {k - 1}')] if k else [])
        ok = True
        for c in nxt[:16]:
            if c.kind != 'label' and rpad(seq, c): ok = False; break
            seq.append(c)
        if ok: return k
    raise RuntimeError('edge')


def dma(voff, srd, soff, imm, name):
    o = f' offset:{imm}' if imm else ''
    return J(f'buffer_load_dwordx4 {v(voff)}, {s_(srd, 4)}, {s_(soff)} offen{o}{LDP} lds', name=name)


slotK = lambda b: ((b - 2) & 7) * 0x2000
slotV = lambda b: ((b - 1) & 7) * 0x2000
grp = lambda kind, b: ((b - 2) if kind == 'K' else (b - 1)) >> 1
BORD = os.environ.get('BORD', 'VKVK')
BLKS = [('K', 0), ('K', 1), ('V', 0)]
for j in range(32):
    nx = {'V': 2 * j + 1, 'K': 2 * j + 2}
    for c in BORD:
        if nx[c] < 64: BLKS.append((c, nx[c]))
        nx[c] += 1


def blk(kind, b):
    sn = sN if kind == 'K' else sNv
    pre = [J(f's_add_u32 m0, s{sM}, {hex(slotK(b) if kind == "K" else slotV(b) + 0x10000)}')]
    pre.append(J(f's_add_u32 s{sn}, s{sn}, 0x2000') if b else J('s_nop 0'))
    srd = sK if kind == 'K' else sV
    return pre, [dma(VOD, srd, sn, 0, (kind, b)), dma(VOD, srd, sn, 2048, (kind, b))]


def vwait(*names, lg=False): return J('s_waitcnt vmcnt(0)' + (' lgkmcnt(0)' if lg else ''), need=list(names), lg=lg)
def qld(f, h, dst): return J(f'buffer_load_dwordx4 {dst}, v{QN}, {s_(sQ, 4)}, s{sOf + 6 * h + (f >> 2)} offen offset:{(1024 if E("DIAG", 0) & 16 else 64) * (f & 3)}{LDP}'.replace(f'v{QN},', 'v80,' if E('DIAG', 0) & 16 and h == 0 else f'v{QN},'), name=('Q', h, f))
def xld(h): return [J(f'buffer_load_dwordx4 {v(T + 8 + 4 * k, 4)}, v{VOD}, {s_(sQ, 4)}, s{sOf + 6 * h + 4} offen{" offset:2048" if k else ""}{LDP}', name=('X', h)) for k in range(2)]


def scale4(r, t, pk=1):
    o = [J(f'v_lshlrev_b32 v{t + 2 * i}, 16, v{r + i}') for i in range(4)]
    o += [J(f'v_and_b32 v{t + 2 * i + 1}, s{sMask}, v{r + i}') for i in range(4)]
    if pk: o += [J(f'v_pk_mul_f32 {v(t + 2 * i, 2)}, {v(t + 2 * i, 2)}, {s_(sC, 2)}') for i in range(4)]
    else: o += [J(f'v_mul_f32 v{t + i}, s{sC}, v{t + i}') for i in range(8)]
    o += [J(f'v_cvt_pk_bf16_f32 v{r + i}, v{t + 2 * i}, v{t + 2 * i + 1}') for i in range(4)]
    return o


def xs_block(h):
    o = [vwait(('X', h))] + scale4(T + 8, T, 1 - h) + scale4(T + 12, T, 1 - h)
    o += L(f'v_add_u32 v{T}, s{sXo}, v{PXR}')
    return o + [J(f'ds_write_b128 v{T}, {v(T + 8 + 4 * k, 4)} offset:{2048 * k}') for k in range(2)]


def qfrag(f, t, pk=1):
    o = [vwait(('Q', 1, f))] + [J(f'v_accvgpr_read_b32 v{t + 2 * i + 1}, a{aR + 4 * f + i}') for i in range(4)]
    o += [J(f'v_lshlrev_b32 v{t + 2 * i}, 16, v{t + 2 * i + 1}') for i in range(4)]
    o += [J(f'v_and_b32 v{t + 2 * i + 1}, s{sMask}, v{t + 2 * i + 1}') for i in range(4)]
    if pk: o += [J(f'v_pk_mul_f32 {v(t + 2 * i, 2)}, {v(t + 2 * i, 2)}, {s_(sC, 2)}') for i in range(4)]
    else: o += [J(f'v_mul_f32 v{t + i}, s{sC}, v{t + i}') for i in range(8)]
    o += [J(f'v_cvt_pk_bf16_f32 v{t + 2 * i}, v{t + 2 * i}, v{t + 2 * i + 1}') for i in range(4)]
    return o + [J(f'v_accvgpr_write_b32 a{aR + 4 * f + i}, v{t + 2 * i}') for i in range(4)]


def stamp(idx):
    if not STAMP: return [], []
    return L('s_memtime s[98:99]\ns_memrealtime s[100:101]'), L(f'v_writelane_b32 v0, s98, {idx}\nv_writelane_b32 v0, s100, {idx + 32}')


def setup():
    o = L(f"""
s_mov_b32 s{sMask}, 0xffff0000
s_mov_b32 s{sC}, {hex(CSC)}
s_mov_b32 s{sC + 1}, {hex(CSC)}
s_mov_b32 s{sLo}, {hex(LOB)}
s_mov_b32 s{sRg}, {hex(HIB - LOB)}
s_mov_b32 s{sF}, 0
s_add_u32 s{sXo}, s{sM}, {QXL - PXL}
v_lshrrev_b32 v18, 3, v16
v_lshlrev_b32 v18, 11, v18
v_and_b32 v19, 7, v16
v_lshl_add_u32 v18, v19, 7, v18
v_and_b32 v19, 6, v16
v_xor_b32 v19, v19, v17
v_lshl_add_u32 v{KA}, v19, 4, v18
v_xor_b32 v{KA + 1}, 64, v{KA}
s_lshl_b32 s48, s{sW}, 12
v_add_u32 v{KX}, s48, v{KA}
v_add_u32 v{KX + 1}, s48, v{KA + 1}
v_lshlrev_b32 v{PXR}, 4, v0
v_add_u32 v{PXR}, {PXL}, v{PXR}
s_lshl_b32 s48, s58, 11
s_lshl_b32 s49, s59, 3
s_add_u32 s48, s48, s49
v_add_u32 v{PXW}, s48, v{PXR}
v_lshrrev_b32 v18, 5, v0
v_lshlrev_b32 v18, 11, v18
v_bfe_u32 v19, v0, 2, 3
v_lshl_add_u32 v18, v19, 7, v18
v_and_b32 v19, 6, v19
v_bfe_u32 v20, v0, 1, 1
v_or_b32 v19, v19, v20
v_lshl_add_u32 v18, v19, 4, v18
v_and_b32 v20, 1, v0
v_lshl_add_u32 v18, v20, 3, v18
s_mul_i32 s49, s{sW}, 2304
s_add_u32 s49, s49, {STG}
v_mul_u32_u24 v19, 144, v16
v_lshl_add_u32 v19, v17, 3, v19
v_add_u32 v{GO}, s49, v19
v_lshrrev_b32 v19, 3, v0
v_and_b32 v20, 7, v0
v_lshlrev_b32 v20, 4, v20
v_mul_u32_u24 v21, 144, v19
v_add3_u32 v{GO + 1}, v21, v20, s49
s_lshl_b32 s48, s{sW}, 5
v_xor_b32 v20, s48, v20
v_lshl_add_u32 v{GO + 2}, v19, 8, v20
s_sub_u32 s{sXc}, s48, s49
s_add_u32 s{sXc}, s{sXc}, {XST}
s_mul_i32 s{sXc + 1}, s{sW}, 2176
s_add_u32 s{sXc + 1}, s{sXc + 1}, {XST - PXL}
s_lshl_b32 s{sXc + 2}, s{sW}, 11
s_sub_u32 s{sXc + 2}, s{sXc + 2}, {PXL}
s_add_u32 s48, s48, 0x10000
v_xor_b32 v{VA}, s48, v18
v_xor_b32 v{VA + 1}, 32, v{VA}
v_xor_b32 v{VA + 2}, 64, v{VA}
v_xor_b32 v{VA + 3}, 0x60, v{VA}
v_lshrrev_b32 v18, 4, v0
v_xor_b32 v18, v18, v0
v_and_b32 v18, 2, v18
v_mov_b32 v19, 0x3f803f80
v_and_b32 v20, 1, v0
v_mul_u32_u24 v20, 0xaaaa, v20
v_add_u32 v{IDX}, 0x4444, v20
v_add_u32 v{LM}, {QXL}, v{KA}
v_add_u32 v{LM + 1}, {QXL}, v{KA + 1}
""")
    o += L(f's_add_u32 s{sOf + 5}, s{sOf + 4}, 4096')
    o += [J(f's_add_u32 s{sOf + 6 + k}, s{sOf + k}, {HQ}') for k in range(6)]
    o += L(f'v_cmp_eq_u32 vcc, 0, v18\nv_cndmask_b32 v20, 0, v19, vcc')
    o += [J(f'v_accvgpr_write_b32 a{aC + k}, v20') for k in range(4)]
    o += [J(f'v_accvgpr_write_b32 a{aL + k}, 0') for k in range(12)]
    if STAMP: o += L(f'v_writelane_b32 v0, s94, 0\nv_writelane_b32 v0, s96, 32')
    return o


def startup(blks):
    o = L(f"""
s_cmp_ge_u32 s2, 256
s_cbranch_scc1 L_end
s_load_dwordx4 s[48:51], s[0:1], 0
s_load_dwordx4 s[52:55], s[0:1], 16
""")
    if E('PF', 1):
        o += L(f'''
s_getpc_b64 s[{sP}:{sP + 1}]
L_pc:
s_mov_b32 s{sP + 2}, L_end-L_pc
s_mov_b32 s{sP + 3}, 0x20000
s_and_b32 s{sP + 1}, s{sP + 1}, 0xffff
s_bfe_u32 s62, s2, {hex(0x20003 if PFN == 4 else 0x10003)}
s_lshl_b32 s62, s62, 15
v_lshlrev_b32 v21, 7, v0
''') + [J(f'buffer_load_dword v40, v21, {s_(sP, 4)}, s62 offen', name='pf')]
    if STAMP: o += L(f's_load_dwordx2 s[56:57], s[0:1], {32 if STAMP == 2 else 40}\ns_memtime s[94:95]\ns_memrealtime s[96:97]')
    o += L(f"""
v_lshrrev_b32 v16, 6, v0
v_and_b32 v0, 63, v0
v_readfirstlane_b32 s{sW}, v16
v_and_b32 v16, 15, v0
v_lshlrev_b32 v80, 4, v0
v_lshrrev_b32 v17, 4, v0
v_lshlrev_b32 v{QN}, 8, v16
v_lshl_add_u32 v{QN}, v17, 4, v{QN}
v_lshrrev_b32 v18, 3, v0
v_and_b32 v19, 6, v18
v_and_b32 v20, 7, v0
v_xor_b32 v19, v19, v20
v_lshlrev_b32 v18, 8, v18
v_lshl_add_u32 v{VOD}, v19, 4, v18
s_lshr_b32 s58, s{sW}, 1
s_and_b32 s59, s{sW}, 1
s_mul_i32 s{sQb}, s2, {2 * HQ}
s_lshl_b32 s60, s{sW}, 14
s_add_u32 s{sQo}, s{sQb}, s60
s_lshl_b32 s{sN}, s2, 19
s_mov_b32 s{sNv}, s{sN}
s_lshl_b32 s61, s58, 12
s_lshl_b32 s62, s59, 10
s_add_u32 s{sM}, s61, s62
s_lshl_b32 s63, s59, 7
s_add_u32 s63, s63, s61
v_add_u32 v{VOD}, s63, v{VOD}
s_mov_b32 s{sOf}, s{sQo}
s_add_u32 s{sOf + 1}, s{sQo}, 4096
s_add_u32 s{sOf + 2}, s{sQo}, 8192
s_add_u32 s{sOf + 3}, s{sQo}, 12288
s_add_u32 s{sOf + 4}, s{sQb}, 0x10000
s_mov_b32 s{sK + 2}, 134217728
s_mov_b32 s{sV + 2}, 134217728
s_mov_b32 s{sQ + 2}, 37748736
s_mov_b32 s{sO + 2}, 37748736
s_mov_b32 s{sQ + 3}, 0x20000
s_mov_b32 s{sK + 3}, 0x20000
s_mov_b32 s{sV + 3}, 0x20000
s_mov_b32 s{sO + 3}, 0x20000
s_waitcnt lgkmcnt(0)
""")
    srd = lambda d, b: L(f's_mov_b32 s{d}, s{b}\ns_and_b32 s{d + 1}, s{b + 1}, 0xffff')
    o += srd(sQ, 48) + srd(sK, 50) + srd(sV, 52) + srd(sO, 54)
    if STAMP: o += srd(sWS, 56) + L(f's_mov_b32 s{sWS + 2}, {256 if STAMP == 2 else 0x100000}\ns_mov_b32 s{sWS + 3}, 0x20000')
    nf = 0
    for x in SO.split(','):
        if x[0] == 'q': o += [qld(4 * int(x[1]) + k, 0, v(O + 16 * int(x[1]) + 4 * k, 4)) for k in range(4)]
        elif x[0] == 'n': o += [qld(2 * int(x[1]) + k, 1, a_(aR + 8 * int(x[1]) + 4 * k, 4)) for k in range(2)]
        elif x == 'x': o += xld(0)
        elif x == 'b': p, d = blk(*blks.pop(0)); o += p + d
        elif x == 'U': o += setup()
        elif x == 'I':
            o += L('v_mul_u32_u24 v200, 0x9e3779, v0\nv_and_b32 v200, 0xbfffbfff, v200\nv_or_b32 v200, 0x3e003e00, v200')
            for k in range(1, 16): o += L(f'v_mul_lo_u32 v{200 + k}, v{199 + k}, v{199 + k}\nv_and_b32 v{200 + k}, 0xbfffbfff, v{200 + k}\nv_or_b32 v{200 + k}, 0x3e013e01, v{200 + k}')
        elif x[0] == 'm': o += [mfs(v(216 + 4 * (k % 8), 4), v(200 + 4 * (k & 3), 4), v(200 + 4 * ((k >> 2) & 3), 4), '0' if k < 8 else v(216 + 4 * (k % 8), 4)) for k in range(int(x[1:]))]
        elif x == 'X': o += xs_block(0)
        elif x[0] == 's':
            for f in range(4 * int(x[1]), 4 * int(x[1]) + 4):
                o += [vwait(('Q', 0, f))] + scale4(O + 4 * f, SS[0] + 8 * (f & 1)) + [J(f'v_accvgpr_write_b32 a{aQ + 4 * f + i}, v{O + 4 * f + i}') for i in range(4)]
        if FINE and STAMP == 1 and (x[0] in 'sXU') == (FINE == 1) and nf < 12:
            o += L(f's_memrealtime s[100:101]\ns_waitcnt lgkmcnt(0)\ns_mov_b32 s{82 + nf}, s100'); nf += 1
    o += [J(f'v_writelane_b32 v0, s{82 + k}, {51 + k}') for k in range(nf)]
    return o


class St:
    def __init__(self, name, ins, earliest=-1, deadline=10 ** 9, after=None, prio=0):
        self.name = name; self.ins = list(ins); self.earliest = earliest; self.pos = 0; self.after = after; self.prio = prio
        self.dl = [deadline] * (len(self.ins) + 1)
        for k in range(len(self.ins) - 1, -1, -1): self.dl[k] = min(self.dl[k + 1], self.ins[k].info.get('d', 10 ** 9))
    def done(self): return self.pos >= len(self.ins)


VORD = [1, 5, 2, 6, 3, 7, 0, 4]
UB = [O + 8 * k for k in range(16)] + [OX, OX + 8]
def pstore(data, p, i, h):
    vo, so, im = (GO + 2, p >> 1, (p & 1) * 128 + i * 2048) if p < 8 else (GX, 4, i * 1024)
    return J(f'buffer_store_dwordx4 {data}, v{vo}, {s_(sO, 4)}, s{sOf + 6 * h + so} offen{f" offset:{im}" if im else ""}{STP}', name='st')
def park(p, i): return a_(aQ + 8 * p + 4 * i, 4) if p < 8 else v(T + 8 + 4 * i, 4)
def xread(i): return J(f'ds_read_b128 {park(8, i)}, v{XR} offset:{1088 * i}')


class G:
    def __init__(self):
        self.M = []; self.reads = []; self.S = []; self.last = {}; self.pos = {}; self.fix = {}; self.resv = set(); self.it = -1
        self.bar = {}; self.caps = []; self.post = {}; self.nods = set()
    def at(self, g, xs): self.fix.setdefault(g, []).extend(xs)
    def top(self, i, ins):
        self.it = i; self.bar[i] = len(self.M) - 1; self.at(len(self.M) - 1, ins)
    def frag(self, reg, rd, it=None, e=None):
        f = {'reg': reg, 'rd': rd, 'e': max(self.last.get(reg, -1), self.bar[self.it] if e is None else e), 'first': None, 'it': self.it if it is None else it}
        self.reads.append(f); return f
    def use(self, m, *fs):
        for f in fs:
            if f['first'] is None: f['first'] = len(self.M)
            self.last[f['reg']] = len(self.M)
        for r in m.dst: self.pos['w', r] = len(self.M)
        self.M.append(m)
    def vread(self, b):
        self.vf = {}
        for i in range(8):
            dt = VORD[i]; r = (aK if b == 63 else aV) + 4 * i
            self.vf[dt] = self.frag(r, [J(f'ds_read_b64_tr_b16 {a_(r + 2 * u, 2)}, v{VA + (dt & 3)} offset:{slotV(b) + (dt >> 2) * 1024 + u * 4096}') for u in range(2)])
    def qxread(self, adr, e):
        self.qx = {(u, k): self.frag(aQX + 16 * u + 4 * k, [J(f'ds_read_b128 {a_(aQX + 16 * u + 4 * k, 4)}, v{adr + (k & 1)} offset:{u * 4096 + (k >> 1) * 1024}')], e=e) for k in range(4) for u in range(2)}
    def qk(self, kb):
        b = kb & 1; q = aQ if kb < 32 else aR
        self.pos['qk', kb] = len(self.M)
        for hf in range(2):
            for k4 in range(4):
                r = aK + 4 * (4 * hf + k4)
                f = self.frag(r, [J(f'ds_read_b128 {a_(r, 4)}, v{KA + (k4 & 1)} offset:{slotK(kb) + hf * 4096 + (k4 >> 1) * 1024}')])
                for t in range(4):
                    d = v(sreg(b, t, hf), 4)
                    self.use(mfs(d, a_(r, 4), a_(q + 16 * t + 4 * k4, 4), '0' if k4 == 0 else d), f)
                    if k4 == 3: self.pos['s', kb, t, hf] = len(self.M) - 1
    def xqk(self, kb):
        for k4 in range(4):
            r = aX + 4 * ((k4 + 2) & 3)
            f = self.frag(r, [J(f'ds_read_b128 {a_(r, 4)}, v{KX + (k4 & 1)} offset:{slotK(kb) + (k4 >> 1) * 1024}')])
            for u in range(2):
                d = v(SX + 4 * u, 4)
                self.use(mfs(d, a_(r, 4), a_(aQX + 16 * u + 4 * k4, 4), '0' if k4 == 0 else d), f, self.qx[u, k4])
        self.pos['x', kb] = len(self.M) - 1
    def pv(self, kb):
        b = kb & 1; buf = (kb >> 1) & 1; z = kb % 32 == 0
        self.pos['pv', kb] = len(self.M)
        px = [self.frag(aX + 8 * b + 4 * u, [J(f'ds_read_b128 {a_(aX + 8 * b + 4 * u, 4)}, v{PXR} offset:{buf * 4096 + b * 2048 + u * 1024}')]) for u in range(2)]
        def o(t, dt):
            d = v(O + 32 * t + 4 * dt, 4); f = self.vf[dt]; self.pos.setdefault(('p', kb, t), len(self.M))
            self.use(mfs(d, a_(f['reg'], 4), v(preg(b, t), 4), '0' if z else d), f)
        def lm(t):
            if t & 1: return
            for k in (t, t + 1): self.pos.setdefault(('p', kb, k), len(self.M)); self.pos['lm', kb, k] = len(self.M)
            self.use(smf(t >> 1, v(preg(b, t), 8)))
        def x(h):
            f = self.vf[4 * h]
            for u in range(2):
                d = v(OX + 8 * u + 4 * h, 4)
                self.use(mfs(d, a_(f['reg'], 4), a_(px[u]['reg'], 4), '0' if z else d), f, px[u])
            if h != (kb == 32): return
            self.pos['lx', kb, 0] = self.pos['lx', kb, 1] = len(self.M)
            self.use(smf(2, a_(px[0]['reg'], 8)), px[0], px[1])
        if kb % 32 == 31:
            if kb == 63: x(0); x(1)
            for t in range(4):
                lm(t)
                for dt in range(8): o(t, dt)
            if kb == 31: x(0); x(1)
        elif kb == 32:
            for t in range(4):
                for dt in range(8):
                    o(t, dt)
                    if t == 3 and dt in (3, 7): lm(dt >> 1 & 2)
            x(0); x(1)
        else:
            for i in range(8):
                for t in range(4): o(t, VORD[i])
                if i in LMI: lm(2 * LMI.index(i))
                if VORD[i] & 3 == 0: x(VORD[i] >> 2)
        self.pos['pve', kb] = len(self.M) - 1
    def sm(self, kb):
        for t in range(4):
            prev = None; P = preg(kb & 1, t); dl = self.pos['p', kb, t] - 2
            for hf in range(2):
                S = sreg(kb & 1, t, hf)
                x = [J(f'v_exp_f32 v{S + r}, v{S + r}') for r in range(4)]
                y = [J(f'v_cvt_pk_bf16_f32 v{P + 2 * hf + k}, v{S + 2 * k}, v{S + 2 * k + 1}', dep=x[2 * k + 1], cv=1) for k in range(2)]
                self.S.append(St(f'sm{kb}.{t}{hf}', x, self.pos['s', kb, t, hf], dl - EL0 - (4 if hf == 0 else 0)))
                prev = St(f'cv{kb}.{t}{hf}', y, self.pos['s', kb, t, hf], dl - (1 if hf == 0 else 0), after=prev); self.S.append(prev)
    def smx(self, kb):
        for u in range(2):
            S = SX + 4 * u
            x = [J(f'v_exp_f32 v{S + r}, v{S + r}') for r in range(4)]
            y = [J(f'v_cvt_pk_bf16_f32 v{S + k}, v{S + 2 * k}, v{S + 2 * k + 1}', dep=x[2 * k + 1], cv=1) for k in range(2)]
            y += [J(f'ds_write_b64 v{PXW}, {v(S, 2)} offset:{((kb >> 1) & 1) * 4096 + u * 1024}')]
            self.S.append(St(f'smx{kb}.{u}', x, self.pos['x', kb], self.bar[kb >> 1] - BARW - 4))
            self.S.append(St(f'cvx{kb}.{u}', y, self.pos['x', kb], self.bar[kb >> 1] - BARW))
    def vm(self, g, pre, c):
        while g in self.resv: g += 1
        self.resv.add(g); self.at(g - 1, pre); self.at(g, [c])
        for k in NOD: self.nods.add(g + k)
        return g

    def drain(self, h, wE, wD):
        kb = 32 * h + 31; big = len(self.M) - 1
        def tag(xs, e=None, d=None):
            for c in xs:
                if e is not None: c.info['e'] = e
                if d is not None: c.info['d'] = d
            return xs
        order = list(range(18)) if h == 0 else [16, 17] + list(range(16))
        n = len(order)
        dd = lambda k: min(wD['v', UB[k]], wD['v', UB[k] + 4]) - 2
        Gk = []
        for j in range(n + 2):
            x = self.pos['pv', kb] + (D0 + int(DSTEP * j) if h == 0 else 0)
            if j < n: x = max(x, wE['v', UB[order[j]] + 4] + DLAG, (self.pos['lx', kb, order[j] - 16] + DLAG + 2) if order[j] >= 16 else 0)
            if j: x = max(x, Gk[-1] + 2)
            while x in self.resv or x in self.bar.values(): x += 1
            Gk.append(min(x, big))
        grpof = lambda k: k >> 2 if k < 16 else k - 12
        lastuse = {}; st = []; pend = []; ls = None
        for j in range(n + 1):
            o = []; x = []
            if j >= 1:
                k = order[j - 1]; b = UB[k]
                o += [J(f'v_cvt_pk_bf16_f32 v{b + i}, v{b + 2 * i}, v{b + 2 * i + 1}') for i in range(4)]
                if k < 16:
                    x = [J(f'ds_write2_b64 v{GO}, {v(b, 2)}, {v(b + 2, 2)} offset0:{8 * (k & 1)} offset1:{8 * (k & 1) + 4}')]; x[0].cost = 9
                else:
                    x = [J(f'ds_write_b64 v{XW}, {v(b + 2 * i, 2)} offset:{(k - 16) * 4352 + 128 * i}') for i in range(2)]
                    for c in x: c.dst = {('x', 0)}; c.cost = 9
                tag(x, Gk[j] + 1, dd(k) if h == 0 else Gk[j + 1])
                if h == 0: assert Gk[j] < dd(k), k
                if k < 16 and k & 1:
                    dst = [park(k >> 1, i) if h == 0 else v(b - 4 + 8 * i, 4) for i in range(2)]
                    x += tag(pend, d=Gk[j + 1]) + [J(f'ds_read_b128 {dst[i]}, v{GO + 1} offset:{1152 * i}') for i in range(2)]
                    pend = [pstore(dst[i], k >> 1, i, 1) for i in range(2)] if h else []
                if h and j == XB:
                    bb = J('s_barrier'); bb.src = {('x', 0)}
                    x += [bb, xread(0), xread(1)]
                if h and j == XB + 3: x += [pstore(park(8, i), 8, i, 1) for i in range(2)]
            if j < n:
                k = order[j]; b = UB[k]; r = T + 2 * (len(set(map(grpof, order[:j + 1]))) & 1)
                if j == 0 or grpof(k) != grpof(order[j - 1]):
                    l = LX + k - 16 if k >= 16 else LM + (k >> 2)
                    e = self.pos['lx', kb, k - 16] if k >= 16 else self.pos['lm', kb, k >> 2]
                    ac = aL + 2 * grpof(k)
                    y = tag(L(f'v_accvgpr_read_b32 v{l}, a{ac}\nv_accvgpr_read_b32 v{IDX + 1}, a{ac + 1}\nv_add_f32 v{l}, v{l}, v{IDX + 1}'), d=Gk[j] - 1)
                    ls = St(f'l{h}.{k}', y, e, big, after=ls); self.S.append(ls)
                    if h == 0: self.S.append(St(f'z{k}', L(f'v_accvgpr_write_b32 a{ac}, 0\nv_accvgpr_write_b32 a{ac + 1}, 0'), e, self.pos['lx' if k >= 16 else 'lm', 32, (k - 16) if k >= 16 else k >> 2] - 2, after=ls))
                    self.S.append(St(f'rcp{h}.{k}', L(f'v_rcp_f32 v{r}, v{l}\nv_rcp_f32 v{r + 1}, v{l}'), max(e, lastuse.get(r, -1) + 1), Gk[j], after=ls))
                    assert lastuse.get(r, -1) < Gk[j]
                o += [J(f'v_pk_mul_f32 {v(b + 2 * i, 2)}, {v(b + 2 * i, 2)}, {v(r, 2)}') for i in range(4)]; lastuse[r] = Gk[j]
            if Gk[j] == big: o += x
            else: st += x
            self.post.setdefault(Gk[j], []).extend(o)
        self.S.append(St(f'dr{h}', st, Gk[0], big if h else self.bar[17] - BARW))
        c = tag(L(f"""
v_subrev_u32 v{T + 6}, s{sLo}, v{LM}
v_subrev_u32 v{T + 7}, s{sLo}, v{LM + 1}
v_max_u32 v{T + 6}, v{T + 6}, v{T + 7}
v_subrev_u32 v{T + 7}, s{sLo}, v{LM + 2}
v_cmp_lt_u32 s[48:49], s{sRg}, v{T + 6}
v_subrev_u32 v{T + 6}, s{sLo}, v{LM + 3}
v_max_u32 v{T + 6}, v{T + 6}, v{T + 7}
v_subrev_u32 v{T + 7}, s{sLo}, v{LX}
v_cmp_lt_u32 s[50:51], s{sRg}, v{T + 6}
v_subrev_u32 v{T + 6}, s{sLo}, v{LX + 1}
""")) + L(f"""
v_max_u32 v{T + 6}, v{T + 6}, v{T + 7}
s_lshl_b32 s{sF}, s{sF}, 3
v_cmp_lt_u32 s[52:53], s{sRg}, v{T + 6}
""")
        for k in range(3): c += [J(f's_cmp_lg_u64 s[{48 + 2 * k}:{49 + 2 * k}], 0\ns_cselect_b32 s55, {1 << k}, 0\ns_or_b32 s{sF}, s{sF}, s55')]
        if h: self.post[big].extend(c + pend)
        else: self.S.append(St(f'chk{h}', c, self.pos['pve', kb], self.bar[18], after=ls, prio=1))

    def build(self, prefix):
        M = self.M; n = len(M); fix = self.fix
        items = []
        for f in self.reads:
            d = min(f['first'] - LEAD, self.bar.get(f['it'] + 1, 10 ** 9) - BARW)
            for r in f['rd']: items.append((f['e'], d, len(items), r, f))
        items.sort(key=lambda x: x[0]); ip = 0; act = []; lastg = -100
        for g in range(-1, n):
            while ip < len(items) and items[ip][0] <= g: act.append(items[ip][1:]); ip += 1
            k = 0
            while k < (4 if g < 0 else 1) and g not in self.resv and g not in self.nods and act:
                act.sort(key=lambda x: x[:2])
                urgent = (ZDS and g >= 0 and M[g].op.startswith('v_smf')) or any(x[0] - g <= URG + DSS * i for i, x in enumerate(act))
                if not (g - lastg >= DSS or urgent or g < 0): break
                x = act.pop(0); self.at(g, [x[2]]); lastg = g; k += 1
                assert g < x[3]['first'] and g < self.bar.get(x[3]['it'] + 1, 10 ** 9), (g, x[2].text)
        assert not act and ip == len(items)
        S = sorted(self.S, key=lambda s: s.earliest); sp = 0; act = []
        out = []; hist = list(prefix); rep = []; forced = {}; npend = 0
        for g in range(-1, n):
            while sp < len(S) and S[sp].earliest <= g: act.append(S[sp]); sp += 1
            if g >= 0: out.append(M[g]); hist.append(M[g])
            fx = fix.get(g, [])
            for c in fx: out.append(c); hist.append(c)
            used = sum(c.cost for c in fx)
            nds = sum(1 for c in fx if c.kind in ('dsr', 'dsw', 'dma', 'vld', 'vst'))
            cap = 0 if g < 0 else CAP
            for lo, hi, cp in self.caps:
                if lo <= g <= hi: cap = cp
            nval = 0; zg = g >= 0 and M[g].op.startswith('v_smf')
            while True:
                cand = []
                for s in act:
                    if s.done() or (s.after is not None and not s.after.done()): continue
                    c = s.ins[s.pos]; force = s.dl[s.pos] <= g
                    if c.info.get('e', -1) > g:
                        assert not force, (s.name, c.text); continue
                    if 'dep' in c.info and not c.info['dep'].info.get('done'):
                        assert not force, s.name; continue
                    if c.kind in ('dsw', 'vst') and not force and (nval or nds): continue
                    if c.kind == 'dsr' and not force and (nval or nds > 1): continue
                    if zg and isv(c) and not force and (nval or c.cost > 5): continue
                    cand.append((c.kind not in ('dsw', 'dsr', 'vst'), s.prio, s.dl[s.pos], s, c, force))
                cv = [x for x in cand if x[4].info.get('cv')]
                lazy = used < 1 and not zg and not (npend >= CQ or any(x[2] - g <= CL for x in cv))
                cand.sort(key=lambda x: (x[0], x[1], lazy and bool(x[4].info.get('cv')), not lazy and used < 1 and not x[4].info.get('cv'), x[2]))
                pick = None
                for _, _, _, s, c, force in cand:
                    if (used + c.cost <= cap or force) and rpad(hist, c) == 0:
                        pick = (s, c)
                        if used + c.cost > cap: forced[s.name] = forced.get(s.name, 0) + 1
                        break
                if pick is None:
                    fl = [x for x in cand if x[5]]
                    if fl:
                        p = J(f's_nop {rpad(hist, fl[0][4]) - 1}'); out.append(p); hist.append(p); used += p.cost
                        continue
                    break
                s, c = pick; s.pos += 1; s.lastg = g; c.info['done'] = 1
                npend += 0.5 if c.op == 'v_exp_f32' else -1 if c.info.get('cv') else 0
                out.append(c); hist.append(c); used += c.cost
                if isv(c): nval += 1
                elif c.kind not in ('salu', 'wait'): nds += 1
            for s in act: assert s.done() or s.dl[s.pos] > g, ('late', s.name, g)
            for c in self.post.get(g, []): out.append(c); hist.append(c); used += c.cost
            rep.append(used); hist = hist[-24:]; act = [s for s in act if not s.done()]
        assert not act and sp == len(S), [(s.name, s.pos) for s in act]
        if VERB:
            bs = sorted(self.bar.items()) + [(99, n - 1)]
            for (i, a), (_, b) in zip(bs, bs[1:]):
                r = rep[a + 1:b + 1]
                print(f'; it {i}: n={b - a} est={sum(max(16, x + 6.5) for x in r):.0f} free={sum(1 for x in r if x < 4.8)}', ' '.join('%d' % x for x in r) if VERB > 1 else '', file=sys.stderr)
            print('; forced', forced, file=sys.stderr)
        return out


def lgk(seq):
    out = []; t = 0; pipe = 0; q = []
    for c in seq:
        if c.kind == 'label': out.append(c); continue
        if c.kind == 'wait':
            k = parse_wait(c.text)
            if k is not None: del q[:max(0, len(q) - k)]
        else:
            touch = c.src | (c.dst if c.kind != 'dsw' else set())
            k = -1
            for idx, (regs, ti) in enumerate(q):
                if regs & touch and not (c.kind == 'dsr' and not (regs & c.src)): k = idx
            if len(q) >= 15 and c.kind in ('dsr', 'dsw'): k = max(k, 0)
            if k >= 0:
                while k + 1 < len(q) and t - q[k + 1][1] >= SETTLE: k += 1
                w = J(f's_waitcnt lgkmcnt({len(q) - 1 - k})', tag='autowait'); w.info['age'] = t - q[k][1]
                out.append(w); del q[:k + 1]
        if c.kind == 'mfma':
            t = max(t, pipe); pipe = t + c.mlen
        if c.kind in ('dsr', 'dsw'): q.append((set(c.dst), t))
        t += c.cost
        out.append(c)
    return out


def vmfix(seq):
    ops = []; done = -1; out = []
    for c in seq:
        if c.kind in ('dma', 'vst', 'vld'): ops.append(c.info.get('name'))
        elif c.kind == 'wait' and 'need' in c.info:
            k = -1
            for nm in c.info['need']:
                idx = [i for i, x in enumerate(ops) if x == nm]
                assert len(idx) == (1 if nm[0] == 'Q' else 2), (nm, idx)
                k = max(k, idx[-1])
            if k <= done:
                if not c.info['lg']: continue
                c.text = 's_waitcnt lgkmcnt(0)'
            else:
                done = k; nn = len(ops) - 1 - k
                assert nn <= 63
                c.text = c.text.replace('vmcnt(0)', f'vmcnt({nn})')
                if VERB: print('; vm', c.info['need'][-1], nn, end=' ', file=sys.stderr)
        out.append(c)
    if VERB: print(file=sys.stderr)
    return out


def ending():
    o = L('L_fin:')
    if STAMP:
        pre, post = stamp(18)
        o += L('s_waitcnt vmcnt(0)') + pre + L('s_waitcnt lgkmcnt(0)') + post
    if STAMP == 2:
        sel = [32 + x for x in (1, 2, 4, 6, 8, 10, 11, 13, 15, 17, 18)] + [2, 10, 18]
        o += L('v_mov_b32 v23, s96\ns_mov_b32 exec_hi, 0\nv_mov_b32 v23, s94\ns_mov_b64 exec, -1\nv_sub_u32 v22, v0, v23\nv_mov_b32 v21, 0')
        o += [J(f'v_writelane_b32 v21, {8 + 4 * k}, {x}') for k, x in enumerate(sel)]
        m = sum(1 << x for x in sel)
        o += L(f's_mov_b32 exec_lo, {hex(m & 0xffffffff)}\ns_mov_b32 exec_hi, {hex(m >> 32)}\ns_nop 4\nbuffer_atomic_add v22, v21, {s_(sWS, 4)}, 0 offen sc1')
        o += L(f's_mov_b64 exec, 1\ns_not_b32 s48, s96\nv_mov_b32 v16, s48\nv_mov_b32 v17, s100\nbuffer_atomic_umax v16, off, {s_(sWS, 4)}, 0 sc1\nbuffer_atomic_umax v17, off, {s_(sWS, 4)}, 0 offset:4 sc1\ns_mov_b64 exec, -1')
    elif STAMP:
        o += L(f'''
v_mov_b32 v16, s96
v_mov_b32 v17, s97
v_mov_b32 v18, s100
v_mov_b32 v19, s101
s_lshl_b32 s48, s2, 6
s_lshl_b32 s49, s{sW}, 4
s_add_u32 s48, s48, s49
v_mov_b32 v20, 0
v_mov_b32 v22, v0
v_mov_b32 v23, v0
v_permlane32_swap_b32 v22, v23
v_subrev_u32 v21, {PXL}, v{PXR}
v_lshrrev_b32 v21, 1, v21
s_lshl_b32 s49, s48, 5
s_add_u32 s49, s49, 0x40000
buffer_store_dwordx2 v[22:23], v21, {s_(sWS, 4)}, s49 offen
s_mov_b64 exec, 1
buffer_store_dwordx4 v[16:19], v20, {s_(sWS, 4)}, s48 offen
s_mov_b64 exec, -1
''')
    o += L(f's_cmp_lg_u32 s{sF}, 0\ns_cbranch_scc1 L_slow\nL_end:\ns_endpgm')
    return o


def slow():
    sB = sT + 1; sR = sT + 2; sKV = sT + 3; sJ = sT + 4; sY = sT + 5; sP = sT + 7
    LN = 1; VO = 2; VAs = 3; VD = 5; m = 6; l = 7; t = 8; GX = 13; Q = 128; OO = 160; KF = 16; S = 48; VF = 64; QT = 240
    o = L(f'''
L_slow:
s_waitcnt vmcnt(0) lgkmcnt(0)
s_and_b32 s{sB}, s{sF}, 0x24
s_cbranch_scc0 L_sl1
s_barrier
s_cmp_eq_u32 s{sW}, 0
s_cbranch_scc1 L_sl1
s_and_b32 s{sF}, s{sF}, 0x1b
s_cbranch_scc0 L_end
L_sl1:
v_subrev_u32 v{LN}, {PXL}, v{PXR}
v_lshrrev_b32 v{LN}, 4, v{LN}
v_and_b32 v{VO}, 31, v{LN}
v_lshrrev_b32 v{t}, 5, v{LN}
v_lshlrev_b32 v{VO}, 8, v{VO}
v_lshl_add_u32 v{GX}, v{t}, 5, v{VO}
v_lshl_add_u32 v{VO}, v{t}, 4, v{VO}
v_lshrrev_b32 v17, 3, v{LN}
v_and_b32 v18, 7, v{LN}
v_and_b32 v19, 2, v17
v_lshlrev_b32 v19, 1, v19
v_xor_b32 v18, v18, v19
v_lshlrev_b32 v17, 8, v17
v_lshl_add_u32 v{VD}, v18, 4, v17
v_bfe_u32 v16, v{LN}, 2, 2
v_lshl_add_u32 v18, v{t}, 2, v16
v_lshlrev_b32 v18, 7, v18
v_lshrrev_b32 v16, 1, v16
v_lshl_add_u32 v18, v16, 6, v18
v_and_b32 v16, 1, v{LN}
v_lshl_add_u32 v18, v16, 5, v18
v_bfe_u32 v16, v{LN}, 4, 1
v_lshl_add_u32 v18, v16, 4, v18
v_bfe_u32 v16, v{LN}, 1, 1
v_lshl_add_u32 v18, v16, 3, v18
s_lshl_b32 s{sP}, s{sW}, 13
v_add_u32 v{VAs}, s{sP}, v18
v_xor_b32 v{VAs + 1}, 64, v{VAs}
L_sl2:
s_ff1_i32_b32 s{sB}, s{sF}
s_bitset0_b32 s{sF}, s{sB}
s_cmp_ge_u32 s{sB}, 3
s_cselect_b32 s{sR}, 0, {HQ}
s_cselect_b32 s{sKV}, 0, {HK}
s_cselect_b32 s{sY}, 3, 0
s_sub_u32 s{sB}, s{sB}, s{sY}
s_lshl_b32 s{sY}, s2, 19
s_add_u32 s{sKV}, s{sKV}, s{sY}
s_lshl_b32 s{sY}, s{sB}, 13
s_add_u32 s{sY}, s{sY}, s{sQo}
s_add_u32 s{sJ}, s{sQb}, 0x10000
s_cmp_eq_u32 s{sB}, 2
s_cselect_b32 s{sY}, s{sJ}, s{sY}
s_add_u32 s{sR}, s{sR}, s{sY}
''')
    o += [J(f'buffer_load_dwordx4 {v(Q + 4 * k, 4)}, v{VO}, {s_(sQ, 4)}, s{sR} offen offset:{32 * k}') for k in range(8)]
    o += [J(f'v_mov_b64 {v(OO + 2 * k, 2)}, 0') for k in range(32)]
    o += L(f'v_mov_b32 v{m}, 0xff800000\nv_mov_b32 v{l}, 0\ns_mov_b32 s{sJ}, 0\ns_waitcnt vmcnt(0)')
    for k in range(8): o += scale4(Q + 4 * k, QT)
    o += L('L_sl3:')
    o += [J(f'buffer_load_dwordx4 {v(KF + 4 * k, 4)}, v{VO}, {s_(sK, 4)}, s{sKV} offen offset:{32 * k}') for k in range(8)]
    for w in range(4):
        o += L(f's_add_u32 m0, s{sP}, {(w >> 1) * 4096 + (w & 1) * 1024}\ns_add_u32 s{sY}, s{sKV}, {(w >> 1) * 4096 + (w & 1) * 128}')
        o += [dma(VD, sV, sY, 0, None), dma(VD, sV, sY, 2048, None)]
    o += L('s_waitcnt vmcnt(0)')
    o += [mfma(v(S, 16), v(KF + 4 * k, 4), v(Q + 4 * k, 4), '0' if k == 0 else v(S, 16)) for k in range(8)]
    for s in range(2):
        for d in range(4):
            o += [J(f'ds_read_b64_tr_b16 {v(VF + 16 * s + 4 * d + 2 * u, 2)}, v{VAs + (d & 1)} offset:{(2 * s + u) * 2048 + (d >> 1) * 1024}') for u in range(2)]
        o += L('s_waitcnt lgkmcnt(0)')
    o += L(f'v_max3_f32 v{t}, v{S}, v{S + 1}, v{m}')
    o += [J(f'v_max3_f32 v{t}, v{t}, v{S + 2 * k}, v{S + 2 * k + 1}') for k in range(1, 8)]
    o += L(f'''v_mov_b32 v{t + 1}, v{t}
v_permlane32_swap_b32 v{t}, v{t + 1}
v_max_f32 v{t}, v{t}, v{t + 1}
v_sub_f32 v{t + 1}, v{m}, v{t}
v_mov_b32 v{m}, v{t}
v_exp_f32 v{t + 1}, v{t + 1}''')
    o += [J(f'v_sub_f32 v{S + k}, v{S + k}, v{m}') for k in range(16)]
    o += L(f'v_mul_f32 v{l}, v{l}, v{t + 1}')
    o += [J(f'v_mul_f32 v{OO + k}, v{OO + k}, v{t + 1}') for k in range(64)]
    o += [J(f'v_exp_f32 v{S + k}, v{S + k}') for k in range(16)]
    o += [J(f'v_add_f32 v{l}, v{l}, v{S + k}') for k in range(16)]
    o += [J(f'v_cvt_pk_bf16_f32 v{S + 8 * s + k}, v{S + 8 * s + 2 * k}, v{S + 8 * s + 2 * k + 1}') for s in range(2) for k in range(4)]
    for s in range(2):
        for d in range(4):
            o.append(mfma(v(OO + 16 * d, 16), v(VF + 16 * s + 4 * d, 4), v(S + 8 * s, 4), v(OO + 16 * d, 16)))
    o += L(f'''s_nop 15
s_add_u32 s{sKV}, s{sKV}, 0x2000
s_add_u32 s{sJ}, s{sJ}, 1
s_cmp_lt_u32 s{sJ}, 32
s_cbranch_scc1 L_sl3
v_mov_b32 v{t}, v{l}
v_permlane32_swap_b32 v{l}, v{t}
v_add_f32 v{l}, v{l}, v{t}
v_rcp_f32 v{l}, v{l}''')
    o += [J(f'v_mul_f32 v{OO + k}, v{OO + k}, v{l}') for k in range(64)]
    o += [J(f'v_cvt_pk_bf16_f32 v{OO + k}, v{OO + 2 * k}, v{OO + 2 * k + 1}') for k in range(32)]
    o += [J(f'buffer_store_dwordx4 {v(OO + 4 * k, 4)}, v{GX}, {s_(sO, 4)}, s{sR} offen offset:{64 * (k >> 1) + 16 * (k & 1)}') for k in range(8)]
    o += L(f's_waitcnt vmcnt(0)\ns_cmp_lg_u32 s{sF}, 0\ns_cbranch_scc1 L_sl2\ns_endpgm')
    return fixh(o)


def main():
    blks = list(BLKS)
    st = startup(blks)
    g = G()
    def top(i):
        k = 1 if i < 0 else (2 + i // 2 if i % 2 == 0 else None)
        pre, post = stamp(k) if k else ([], [])
        g.top(i, pre + [vwait(*[x for x in BLKS if grp(*x) == i], lg=True)] + post + L('s_barrier'))
    top(-1)
    g.qxread(LM, -1)
    g.qk(0); g.xqk(0); g.vread(0); g.qk(1)
    for i in range(31):
        top(i)
        if i == 16: wE = {k[1]: p for k, p in g.pos.items() if k[0] == 'w'}
        g.pv(2 * i)
        if i == 16: wD = {}; [wD.setdefault(r, p) for p in range(g.pos['pv', 32], len(g.M)) for r in g.M[p].dst]
        g.vread(2 * i + 1)
        g.qk(2 * i + 2); g.xqk(2 * i + 2)
        if i == 14:
            g.at(g.bar[14] + 1, L(f'v_add_u32 v{T + 14}, {QXL}, v{KA}')); g.at(g.bar[14] + 2, L(f'v_add_u32 v{T + 15}, {QXL}, v{KA + 1}'))
            g.qxread(T + 14, g.bar[14] + 4)
        g.pv(2 * i + 1); g.vread(2 * i + 2); g.qk(2 * i + 3)
    top(31); g.pv(62); g.vread(63); g.pv(63)
    for kb in range(64): g.sm(kb)
    for kb in range(0, 64, 2): g.smx(kb)
    g.caps = [(g.pos['pv', 31] + 4, g.pos['pve', 32], CAPD), (g.pos['pv', 63] + 4, len(g.M), CAPT), (0, g.bar[0], CAPP), (g.bar[31], g.pos['pv', 63] + 3, CAPP)]
    nq = sum(1 for x in SO.split(',') if x[0] == 'n'); ldit = {p: -1 for p in range(nq)}
    stp = list(range(9))
    for i in range(-1, 31):
        b0 = g.bar[i] + 1; nb = min(NB.get(i, 4), len(blks))
        while nb and grp(*blks[nb - 1]) > i + 3: nb -= 1
        if i < 0: pos = list(range(18, 70, 3)); xg = [4, 8, 12]
        else:
            pos = DMG if nb <= 4 else [6 + (134 * k) // (2 * nb - 1) for k in range(2 * nb)]
            xg = DMG[2 * nb::2] + XG if nb < 4 else XG
        for k in range(nb):
            p, d = blk(*blks.pop(0))
            g.vm(b0 + pos[2 * k], [c for c in p if c.kind != 'nop'], d[0]); g.vm(b0 + pos[2 * k + 1], [], d[1])
        prs = []
        if XL == i: prs.append(xld(1))
        for _ in range(QL.get(i, 0)): prs.append([qld(2 * nq + k, 1, a_(aR + 8 * nq + 4 * k, 4)) for k in range(2)]); ldit[nq] = i; nq += 1
        for _ in range(ST.get(i, 0)):
            if stp: p = stp.pop(0); prs.append([pstore(park(p, k), p, k, 0) for k in range(2)]); assert i >= 17
        for pr, x in zip(prs, xg):
            x = g.vm(b0 + x, [], pr[0]); g.vm(x + XD, [], pr[1])
            if f'v{GX},' in pr[0].text and pr[0].kind == 'vst': g.reads.append({'reg': None, 'rd': [xread(0), xread(1)], 'e': max(g.bar[17], x - 60), 'first': x, 'it': 99})
        assert len(prs) <= len(xg)
    assert not blks and nq == 8 and not stp, (blks, nq, stp)
    g.drain(0, wE, wD)
    g.drain(1, {k[1]: p for k, p in g.pos.items() if k[0] == 'w'}, {})
    g.S.append(St('xadr', L(f'v_lshrrev_b32 v{XW}, 1, v{QN}\nv_and_b32 v{XR}, 0x30, v{QN}\nv_and_b32 v{XW}, 0x780, v{XW}\nv_add3_u32 v{XR}, v{PXR}, v{XR}, s{sXc + 1}\nv_add3_u32 v{XW}, v{GO}, v{XW}, s{sXc}\nv_add_u32 v{GX}, s{sXc + 2}, v{PXR}'), g.pos['qk', 32], g.pos['pv', 31], prio=1))
    xs = St('xs', xs_block(1), g.bar[XL + QLAG], g.bar[14] - BARW, prio=1); g.S.append(xs)
    dn = [i for i in sorted(DN) for _ in range(DN[i])]
    prev = None; seq = []
    for f in range(16):
        if f < len(dn): e = g.bar[dn[f]] + 40; seq.append((e, St(f'q{f}', qfrag(f, T), e, e, prio=1)))
        else: e = g.bar[min(14, ldit[f >> 1] + QLAG)]; seq.append((e, St(f'q{f}', qfrag(f, T, PK), e, g.pos['qk', 32] - 3, prio=1)))
    seq.append((xs.earliest, xs)); seq.sort(key=lambda x: x[0])
    for _, s in seq:
        s.after = prev; prev = s
        if s is not xs: g.S.append(s)
    start = fixh(lgk(st))
    main_ = g.build(start[-24:])
    if VERB: print('; last gaps:', [(s.name, [i for i in g.bar if g.bar[i] <= s.lastg][-1]) for _, s in seq], file=sys.stderr)
    prog = vmfix(start + main_)
    prog = fixh(lgk(prog))
    if VERB: print('; nops', sum(1 for c in prog if c.kind == 'nop'), 'young waits', [int(c.info['age']) for c in prog if c.tag == 'autowait' and c.info['age'] < 150], file=sys.stderr)
    prog += fixh(ending(), prog[-24:]) + slow()
    out = [f'; @launch grid=(256,1,1) block=(256,1,1) lds={LDSZ}',
           '.amdgcn_target "amdgcn-amd-amdhsa--gfx950"', '.text', f'.globl {NAME}', '.p2align 8', f'.type {NAME},@function', f'{NAME}:']
    dg = E('DIAG', 0); nbar = 0
    for c in prog:
        if c.kind == 'barrier': nbar += 1
        if nbar > 8 and ((dg & 1 and c.kind == 'barrier') or (dg & 2 and c.kind == 'dma') or (dg & 4 and c.tag == 'autowait')): continue
        if c.kind == 'vst' and c.info.get('name') == 'st' and ((dg & 32 and nbar > 32) or dg & 64): continue
        out.append(c.text)
    out += ['.section .rodata,"a"', '.p2align 6', f'.amdhsa_kernel {NAME}',
            '  .amdhsa_next_free_vgpr 512', '  .amdhsa_next_free_sgpr 102', '  .amdhsa_accum_offset 256',
            '  .amdhsa_group_segment_fixed_size 0', '  .amdhsa_kernarg_size 48', '  .amdhsa_user_sgpr_count 2',
            '  .amdhsa_user_sgpr_kernarg_segment_ptr 1', '  .amdhsa_system_sgpr_workgroup_id_x 1', '.end_amdhsa_kernel']
    print('\n'.join(out))


main()
```

```python
import os, sys, struct, math
sys.path.insert(0, os.path.dirname(os.path.abspath(__file__)))
from asmlib import *

E = lambda k, d: int(os.environ.get(k, d))
F = lambda k, d: float(os.environ.get(k, d))
EL = lambda k, d: [int(x) for x in os.environ.get(k, d).split(',') if x]
ED = lambda k, d: dict(tuple(int(y) for y in x.split(':')) for x in os.environ.get(k, d).split(',') if x)
STAMP = E('STAMP', 0); VERB = E('VERB', 0); FINE = E('FINE', 0)
CAP = F('CAP', 9.5); DSC = F('DSC', 4.0); CAPD = F('CAPD', 9.5); CAPT = F('CAPT', 9.5); CAPP = F('CAPP', 14)
SETTLE = E('SETTLE', 170)
LEAD = E('LEAD', 12); BARW = E('BARW', 8); URG = E('URG', 4); DSS = E('DSS', 2)
DMG = EL('DMG', '6,22,38,54,70,86,102,118')
XG = EL('XG', '14,46,78,110,30,62,94,126'); XD = E('XD', 1)
LDP = os.environ.get('LDP', ' nt'); STP = os.environ.get('STP', ' sc0 sc1'); STX = os.environ.get('STX', '')
SO = os.environ.get('SO', 'q0,q1,x,q2,q3,b,U,s0,b,b,s1,X,b,b,s2,s3')
NB = ED('NB', '-1:4,1:5,2:5,5:5,6:5,15:5,16:5')
QL = ED('QL', '1:1,2:1,3:2,4:2,5:1,6:1'); XL = E('XL', 0)
QLAG = E('QLAG', 2)
DN = ED('DN', '')
ST = ED('ST', '28:3,29:3,30:3')
DS = EL('DS', '')
EL0 = E('EL0', 2); CQ = E('CQ', 6); CL = E('CL', 3); LMI = EL('LMI', '1,3'); ZDS = E('ZDS', 1); NOD = EL('NOD', ''); XB = E('XB', 9); PK = E('PK', 0); SWM = E('SWM', 1); D0 = E('D0', 8); DSTEP = F('DSTEP', 5.3); DLAG = E('DLAG', 3)
NAME = 'standalone__mha_softmax__near_ridge_kernel'
KA = 1; KX = 3; VA = 5; PXW = 9; PXR = 10; VOD = 11; QN = 12; GO = 13
SS = [16, 48]; SX = 80; OX = 88; LM = 104; LX = 108; T = 112; O = 128
aQ = 0; aQX = 64; aR = 96; aV = 160; aK = 192; aX = 224; aC = 240; aL = 244; IDX = LX + 2
sQ, sK, sV, sO = 4, 8, 12, 16
sW, sN, sQb, sMask, sC, sLo, sRg, sM, sF, sQo, sXo, sNv = 20, 21, 22, 25, 26, 28, 29, 30, 34, 35, 36, 37
sOf = 68
sT = 48; sWS = 64; sP = 40; PFN = 4
PXL = 0x20000; QXL = 0x22000; STG = 0x22000; XST = 0x24400; LDSZ = 0x26600
XW, XR, GX = T + 4, T + 5, QN; sXc = 44
f2u = lambda x: struct.unpack('<I', struct.pack('<f', x))[0]
CSC = f2u(math.log2(math.e) / math.sqrt(128.0))
LOB = f2u(2.0 ** -20); HIB = f2u(2.0 ** 30)
HK = 262144; HQ = 73728

v = lambda a, n=1: f'v{a}' if n == 1 else f'v[{a}:{a + n - 1}]'
a_ = lambda a, n=1: f'a{a}' if n == 1 else f'a[{a}:{a + n - 1}]'
s_ = lambda a, n=1: f's{a}' if n == 1 else f's[{a}:{a + n - 1}]'
COST = {'valu': 4.65, 'trans': 8.7, 'salu': 0.3, 'wait': 0.3, 'barrier': 1.0, 'dsw': DSC, 'dsr': DSC, 'vst': 8.0, 'dma': 9.0, 'vld': 9.0, 'smem': 1.0, 'branch': 1.0}


class I2(I):
    __slots__ = ('info', 'mlen')


def J(text, **kw):
    x = I2(text)
    if x.kind in COST: x.cost = COST[x.kind]
    if x.kind == 'smem': x.kind = 'salu'
    if x.op.startswith('v_permlane'): x.cost = 8.7
    x.tag = kw.get('tag'); x.earliest = kw.get('earliest'); x.info = kw; x.mlen = 0
    if x.kind == 'mfma': x.mlen = 16 if '16x16' in x.op else 32
    if x.op.startswith('v_writelane'): x.src = x.src | x.dst
    if x.op.startswith('s_bitcmp'): x.src = x.src | (x.dst - {('scc', 0)}); x.dst = {('scc', 0)}
    return x


def L(txt, **kw): return [J(x.strip(), **kw) for x in txt.strip().split('\n') if x.strip()]
def mfma(d, a, b, c): return J(f'v_mfma_f32_32x32x16_bf16 {d}, {a}, {b}, {c}')
def mfs(d, a, b, c): return J(f'v_mfma_f32_16x16x32_bf16 {d}, {a}, {b}, {c}')
def smf(k, b): return J(f'v_smfmac_f32_16x16x64_bf16 {a_(aL + 4 * k, 4)}, {a_(aC, 4)}, {b}, v{IDX}')
sreg = lambda b, t, hf: SS[b] + 8 * t + 4 * (hf ^ (~t & 1))
preg = lambda b, t: SS[b] + 8 * t + 4 * (~t & 1)
def isv(c): return c.kind in ('valu', 'trans')


def rpad(prev, c):
    dist = 0; pad = 0
    for p in reversed(prev):
        if p.kind == 'label': continue
        n = need_states(p, c)
        if n and p.kind == 'mfma' and p.mlen == 16: n = {12: 8, 10: 6, 7: 3}[n]
        if n > dist: pad = max(pad, n - dist)
        dist += p.states
        if dist >= 13: break
    return pad


def fixh(seq, prefix=()):
    out = list(prefix); n0 = len(out)
    for c in seq:
        if c.kind != 'label':
            pad = rpad(out[-24:], c)
            if pad: out.append(J(f's_nop {pad - 1}'))
        out.append(c)
    return out[n0:]


def edge_pad(prev, nxt):
    for k in range(0, 14):
        seq = list(prev[-24:]) + ([J(f's_nop {k - 1}')] if k else [])
        ok = True
        for c in nxt[:16]:
            if c.kind != 'label' and rpad(seq, c): ok = False; break
            seq.append(c)
        if ok: return k
    raise RuntimeError('edge')


def dma(voff, srd, soff, imm, name):
    o = f' offset:{imm}' if imm else ''
    return J(f'buffer_load_dwordx4 {v(voff)}, {s_(srd, 4)}, {s_(soff)} offen{o}{LDP} lds', name=name)


slotK = lambda b: ((b - 2) & 7) * 0x2000
slotV = lambda b: ((b - 1) & 7) * 0x2000
grp = lambda kind, b: ((b - 2) if kind == 'K' else (b - 1)) >> 1
BORD = os.environ.get('BORD', 'VKVK')
BLKS = [('K', 0), ('K', 1), ('V', 0)]
for j in range(32):
    nx = {'V': 2 * j + 1, 'K': 2 * j + 2}
    for c in BORD:
        if nx[c] < 64: BLKS.append((c, nx[c]))
        nx[c] += 1


def blk(kind, b):
    sn = sN if kind == 'K' else sNv
    pre = [J(f's_add_u32 m0, s{sM}, {hex(slotK(b) if kind == "K" else slotV(b) + 0x10000)}')]
    pre.append(J(f's_add_u32 s{sn}, s{sn}, 0x2000') if b else J('s_nop 0'))
    srd = sK if kind == 'K' else sV
    return pre, [dma(VOD, srd, sn, 0, (kind, b)), dma(VOD, srd, sn, 2048, (kind, b))]


def vwait(*names, lg=False): return J('s_waitcnt vmcnt(0)' + (' lgkmcnt(0)' if lg else ''), need=list(names), lg=lg)
def qld(f, h, dst): return J(f'buffer_load_dwordx4 {dst}, v{QN}, {s_(sQ, 4)}, s{sOf + 6 * h + (f >> 2)} offen offset:{(1024 if E("DIAG", 0) & 16 else 64) * (f & 3)}{LDP}'.replace(f'v{QN},', 'v80,' if E('DIAG', 0) & 16 and h == 0 else f'v{QN},'), name=('Q', h, f))
def xld(h): return [J(f'buffer_load_dwordx4 {v(T + 8 + 4 * k, 4)}, v{VOD}, {s_(sQ, 4)}, s{sOf + 6 * h + 4} offen{" offset:2048" if k else ""}{LDP}', name=('X', h)) for k in range(2)]


def scale4(r, t, pk=1):
    o = [J(f'v_lshlrev_b32 v{t + 2 * i}, 16, v{r + i}') for i in range(4)]
    o += [J(f'v_and_b32 v{t + 2 * i + 1}, s{sMask}, v{r + i}') for i in range(4)]
    if pk: o += [J(f'v_pk_mul_f32 {v(t + 2 * i, 2)}, {v(t + 2 * i, 2)}, {s_(sC, 2)}') for i in range(4)]
    else: o += [J(f'v_mul_f32 v{t + i}, s{sC}, v{t + i}') for i in range(8)]
    o += [J(f'v_cvt_pk_bf16_f32 v{r + i}, v{t + 2 * i}, v{t + 2 * i + 1}') for i in range(4)]
    return o


def xs_block(h):
    o = [vwait(('X', h))] + scale4(T + 8, T, 1 - h) + scale4(T + 12, T, 1 - h)
    o += L(f'v_add_u32 v{T}, s{sXo}, v{PXR}')
    return o + [J(f'ds_write_b128 v{T}, {v(T + 8 + 4 * k, 4)} offset:{2048 * k}') for k in range(2)]


def qfrag(f, t, pk=1):
    o = [vwait(('Q', 1, f))] + [J(f'v_accvgpr_read_b32 v{t + 2 * i + 1}, a{aR + 4 * f + i}') for i in range(4)]
    o += [J(f'v_lshlrev_b32 v{t + 2 * i}, 16, v{t + 2 * i + 1}') for i in range(4)]
    o += [J(f'v_and_b32 v{t + 2 * i + 1}, s{sMask}, v{t + 2 * i + 1}') for i in range(4)]
    if pk: o += [J(f'v_pk_mul_f32 {v(t + 2 * i, 2)}, {v(t + 2 * i, 2)}, {s_(sC, 2)}') for i in range(4)]
    else: o += [J(f'v_mul_f32 v{t + i}, s{sC}, v{t + i}') for i in range(8)]
    o += [J(f'v_cvt_pk_bf16_f32 v{t + 2 * i}, v{t + 2 * i}, v{t + 2 * i + 1}') for i in range(4)]
    return o + [J(f'v_accvgpr_write_b32 a{aR + 4 * f + i}, v{t + 2 * i}') for i in range(4)]


def stamp(idx):
    if not STAMP: return [], []
    return L('s_memtime s[98:99]\ns_memrealtime s[100:101]'), L(f'v_writelane_b32 v0, s98, {idx}\nv_writelane_b32 v0, s100, {idx + 32}')


def setup():
    o = L(f"""
s_mov_b32 s{sMask}, 0xffff0000
s_mov_b32 s{sC}, {hex(CSC)}
s_mov_b32 s{sC + 1}, {hex(CSC)}
s_mov_b32 s{sLo}, {hex(LOB)}
s_mov_b32 s{sRg}, {hex(HIB - LOB)}
s_mov_b32 s{sF}, 0
s_add_u32 s{sXo}, s{sM}, {QXL - PXL}
v_lshrrev_b32 v18, 3, v16
v_lshlrev_b32 v18, 11, v18
v_and_b32 v19, 7, v16
v_lshl_add_u32 v18, v19, 7, v18
v_and_b32 v19, 6, v16
v_xor_b32 v19, v19, v17
v_lshl_add_u32 v{KA}, v19, 4, v18
v_xor_b32 v{KA + 1}, 64, v{KA}
s_lshl_b32 s48, s{sW}, 12
v_add_u32 v{KX}, s48, v{KA}
v_add_u32 v{KX + 1}, s48, v{KA + 1}
v_lshlrev_b32 v{PXR}, 4, v0
v_add_u32 v{PXR}, {PXL}, v{PXR}
s_lshl_b32 s48, s58, 11
s_lshl_b32 s49, s59, 3
s_add_u32 s48, s48, s49
v_add_u32 v{PXW}, s48, v{PXR}
v_lshrrev_b32 v18, 5, v0
v_lshlrev_b32 v18, 11, v18
v_bfe_u32 v19, v0, 2, 3
v_lshl_add_u32 v18, v19, 7, v18
v_and_b32 v19, 6, v19
v_bfe_u32 v20, v0, 1, 1
v_or_b32 v19, v19, v20
v_lshl_add_u32 v18, v19, 4, v18
v_and_b32 v20, 1, v0
v_lshl_add_u32 v18, v20, 3, v18
s_mul_i32 s49, s{sW}, 2304
s_add_u32 s49, s49, {STG}
v_mul_u32_u24 v19, 144, v16
v_lshl_add_u32 v19, v17, 3, v19
v_add_u32 v{GO}, s49, v19
v_lshrrev_b32 v19, 3, v0
v_and_b32 v20, 7, v0
v_lshlrev_b32 v20, 4, v20
v_mul_u32_u24 v21, 144, v19
v_add3_u32 v{GO + 1}, v21, v20, s49
s_lshl_b32 s48, s{sW}, 5
v_xor_b32 v20, s48, v20
v_lshl_add_u32 v{GO + 2}, v19, 8, v20
s_sub_u32 s{sXc}, s48, s49
s_add_u32 s{sXc}, s{sXc}, {XST}
s_mul_i32 s{sXc + 1}, s{sW}, 2176
s_add_u32 s{sXc + 1}, s{sXc + 1}, {XST - PXL}
s_lshl_b32 s{sXc + 2}, s{sW}, 11
s_sub_u32 s{sXc + 2}, s{sXc + 2}, {PXL}
s_add_u32 s48, s48, 0x10000
v_xor_b32 v{VA}, s48, v18
v_xor_b32 v{VA + 1}, 32, v{VA}
v_xor_b32 v{VA + 2}, 64, v{VA}
v_xor_b32 v{VA + 3}, 0x60, v{VA}
v_lshrrev_b32 v18, 4, v0
v_xor_b32 v18, v18, v0
v_and_b32 v18, 2, v18
v_mov_b32 v19, 0x3f803f80
v_and_b32 v20, 1, v0
v_mul_u32_u24 v20, 0xaaaa, v20
v_add_u32 v{IDX}, 0x4444, v20
v_add_u32 v{LM}, {QXL}, v{KA}
v_add_u32 v{LM + 1}, {QXL}, v{KA + 1}
""")
    o += L(f's_add_u32 s{sOf + 5}, s{sOf + 4}, 4096')
    o += [J(f's_add_u32 s{sOf + 6 + k}, s{sOf + k}, {HQ}') for k in range(6)]
    o += L(f'v_cmp_eq_u32 vcc, 0, v18\nv_cndmask_b32 v20, 0, v19, vcc')
    o += [J(f'v_accvgpr_write_b32 a{aC + k}, v20') for k in range(4)]
    o += [J(f'v_accvgpr_write_b32 a{aL + k}, 0') for k in range(12)]
    if STAMP: o += L(f'v_writelane_b32 v0, s94, 0\nv_writelane_b32 v0, s96, 32')
    return o


def startup(blks):
    o = L(f"""
s_cmp_ge_u32 s2, 256
s_cbranch_scc1 L_end
s_load_dwordx4 s[48:51], s[0:1], 0
s_load_dwordx4 s[52:55], s[0:1], 16
""")
    if E('PF', 1):
        o += L(f'''
s_getpc_b64 s[{sP}:{sP + 1}]
L_pc:
s_mov_b32 s{sP + 2}, L_end-L_pc
s_mov_b32 s{sP + 3}, 0x20000
s_and_b32 s{sP + 1}, s{sP + 1}, 0xffff
s_bfe_u32 s62, s2, {hex(0x20003 if PFN == 4 else 0x10003)}
s_lshl_b32 s62, s62, 15
v_lshlrev_b32 v21, 7, v0
''') + [J(f'buffer_load_dword v40, v21, {s_(sP, 4)}, s62 offen', name='pf')]
    if STAMP: o += L(f's_load_dwordx2 s[56:57], s[0:1], {32 if STAMP == 2 else 40}\ns_memtime s[94:95]\ns_memrealtime s[96:97]')
    o += L(f"""
v_lshrrev_b32 v16, 6, v0
v_and_b32 v0, 63, v0
v_readfirstlane_b32 s{sW}, v16
v_and_b32 v16, 15, v0
v_lshlrev_b32 v80, 4, v0
v_lshrrev_b32 v17, 4, v0
v_lshlrev_b32 v{QN}, 8, v16
v_lshl_add_u32 v{QN}, v17, 4, v{QN}
v_lshrrev_b32 v18, 3, v0
v_and_b32 v19, 6, v18
v_and_b32 v20, 7, v0
v_xor_b32 v19, v19, v20
v_lshlrev_b32 v18, 8, v18
v_lshl_add_u32 v{VOD}, v19, 4, v18
s_lshr_b32 s58, s{sW}, 1
s_and_b32 s59, s{sW}, 1
s_mul_i32 s{sQb}, s2, {2 * HQ}
s_lshl_b32 s60, s{sW}, 14
s_add_u32 s{sQo}, s{sQb}, s60
s_lshl_b32 s{sN}, s2, 19
s_mov_b32 s{sNv}, s{sN}
s_lshl_b32 s61, s58, 12
s_lshl_b32 s62, s59, 10
s_add_u32 s{sM}, s61, s62
s_lshl_b32 s63, s59, 7
s_add_u32 s63, s63, s61
v_add_u32 v{VOD}, s63, v{VOD}
s_mov_b32 s{sOf}, s{sQo}
s_add_u32 s{sOf + 1}, s{sQo}, 4096
s_add_u32 s{sOf + 2}, s{sQo}, 8192
s_add_u32 s{sOf + 3}, s{sQo}, 12288
s_add_u32 s{sOf + 4}, s{sQb}, 0x10000
s_mov_b32 s{sK + 2}, 134217728
s_mov_b32 s{sV + 2}, 134217728
s_mov_b32 s{sQ + 2}, 37748736
s_mov_b32 s{sO + 2}, 37748736
s_mov_b32 s{sQ + 3}, 0x20000
s_mov_b32 s{sK + 3}, 0x20000
s_mov_b32 s{sV + 3}, 0x20000
s_mov_b32 s{sO + 3}, 0x20000
s_waitcnt lgkmcnt(0)
""")
    srd = lambda d, b: L(f's_mov_b32 s{d}, s{b}\ns_and_b32 s{d + 1}, s{b + 1}, 0xffff')
    o += srd(sQ, 48) + srd(sK, 50) + srd(sV, 52) + srd(sO, 54)
    if STAMP: o += srd(sWS, 56) + L(f's_mov_b32 s{sWS + 2}, {256 if STAMP == 2 else 0x100000}\ns_mov_b32 s{sWS + 3}, 0x20000')
    nf = 0
    for x in SO.split(','):
        if x[0] == 'q': o += [qld(4 * int(x[1]) + k, 0, v(O + 16 * int(x[1]) + 4 * k, 4)) for k in range(4)]
        elif x[0] == 'n': o += [qld(2 * int(x[1]) + k, 1, a_(aR + 8 * int(x[1]) + 4 * k, 4)) for k in range(2)]
        elif x == 'x': o += xld(0)
        elif x == 'b': p, d = blk(*blks.pop(0)); o += p + d
        elif x == 'U': o += setup()
        elif x == 'T': o += L('s_branch L_far\nL_back:')
        elif x == 'I':
            o += L('v_mul_u32_u24 v200, 0x9e3779, v0\nv_and_b32 v200, 0xbfffbfff, v200\nv_or_b32 v200, 0x3e003e00, v200')
            for k in range(1, 16): o += L(f'v_mul_lo_u32 v{200 + k}, v{199 + k}, v{199 + k}\nv_and_b32 v{200 + k}, 0xbfffbfff, v{200 + k}\nv_or_b32 v{200 + k}, 0x3e013e01, v{200 + k}')
        elif x[0] == 'm': o += [mfs(v(216 + 4 * (k % 8), 4), v(200 + 4 * (k & 3), 4), v(200 + 4 * ((k >> 2) & 3), 4), '0' if k < 8 else v(216 + 4 * (k % 8), 4)) for k in range(int(x[1:]))]
        elif x == 'X': o += xs_block(0)
        elif x[0] == 's':
            for f in range(4 * int(x[1]), 4 * int(x[1]) + 4):
                o += [vwait(('Q', 0, f))] + scale4(O + 4 * f, SS[0] + 8 * (f & 1)) + [J(f'v_accvgpr_write_b32 a{aQ + 4 * f + i}, v{O + 4 * f + i}') for i in range(4)]
        if FINE and STAMP == 1 and (x[0] in 'sXU') == (FINE == 1) and nf < 12:
            o += L(f's_memrealtime s[100:101]\ns_waitcnt lgkmcnt(0)\ns_mov_b32 s{82 + nf}, s100'); nf += 1
    o += [J(f'v_writelane_b32 v0, s{82 + k}, {51 + k}') for k in range(nf)]
    return o


class St:
    def __init__(self, name, ins, earliest=-1, deadline=10 ** 9, after=None, prio=0):
        self.name = name; self.ins = list(ins); self.earliest = earliest; self.pos = 0; self.after = after; self.prio = prio
        self.dl = [deadline] * (len(self.ins) + 1)
        for k in range(len(self.ins) - 1, -1, -1): self.dl[k] = min(self.dl[k + 1], self.ins[k].info.get('d', 10 ** 9))
    def done(self): return self.pos >= len(self.ins)


VORD = [1, 5, 2, 6, 3, 7, 0, 4]
UB = [O + 8 * k for k in range(16)] + [OX, OX + 8]
def pstore(data, p, i, h):
    vo, so, im = (GO + 2, p >> 1, (p & 1) * 128 + i * 2048) if p < 8 else (GX, 4, i * 1024)
    return J(f'buffer_store_dwordx4 {data}, v{vo}, {s_(sO, 4)}, s{sOf + 6 * h + so} offen{f" offset:{im}" if im else ""}{STP}', name='st')
def park(p, i): return a_(aQ + 8 * p + 4 * i, 4) if p < 8 else v(T + 8 + 4 * i, 4)
def xread(i): return J(f'ds_read_b128 {park(8, i)}, v{XR} offset:{1088 * i}')


class G:
    def __init__(self):
        self.M = []; self.reads = []; self.S = []; self.last = {}; self.pos = {}; self.fix = {}; self.resv = set(); self.it = -1
        self.bar = {}; self.caps = []; self.post = {}; self.nods = set()
    def at(self, g, xs): self.fix.setdefault(g, []).extend(xs)
    def top(self, i, ins):
        self.it = i; self.bar[i] = len(self.M) - 1; self.at(len(self.M) - 1, ins)
    def frag(self, reg, rd, it=None, e=None):
        f = {'reg': reg, 'rd': rd, 'e': max(self.last.get(reg, -1), self.bar[self.it] if e is None else e), 'first': None, 'it': self.it if it is None else it}
        self.reads.append(f); return f
    def use(self, m, *fs):
        for f in fs:
            if f['first'] is None: f['first'] = len(self.M)
            self.last[f['reg']] = len(self.M)
        for r in m.dst: self.pos['w', r] = len(self.M)
        self.M.append(m)
    def vread(self, b):
        self.vf = {}
        for i in range(8):
            dt = VORD[i]; r = (aK if b == 63 else aV) + 4 * i
            self.vf[dt] = self.frag(r, [J(f'ds_read_b64_tr_b16 {a_(r + 2 * u, 2)}, v{VA + (dt & 3)} offset:{slotV(b) + (dt >> 2) * 1024 + u * 4096}') for u in range(2)])
    def qxread(self, adr, e):
        self.qx = {(u, k): self.frag(aQX + 16 * u + 4 * k, [J(f'ds_read_b128 {a_(aQX + 16 * u + 4 * k, 4)}, v{adr + (k & 1)} offset:{u * 4096 + (k >> 1) * 1024}')], e=e) for k in range(4) for u in range(2)}
    def qk(self, kb):
        b = kb & 1; q = aQ if kb < 32 else aR
        self.pos['qk', kb] = len(self.M)
        for hf in range(2):
            for k4 in range(4):
                r = aK + 4 * (4 * hf + k4)
                f = self.frag(r, [J(f'ds_read_b128 {a_(r, 4)}, v{KA + (k4 & 1)} offset:{slotK(kb) + hf * 4096 + (k4 >> 1) * 1024}')])
                for t in range(4):
                    d = v(sreg(b, t, hf), 4)
                    self.use(mfs(d, a_(r, 4), a_(q + 16 * t + 4 * k4, 4), '0' if k4 == 0 else d), f)
                    if k4 == 3: self.pos['s', kb, t, hf] = len(self.M) - 1
    def xqk(self, kb):
        for k4 in range(4):
            r = aX + 4 * ((k4 + 2) & 3)
            f = self.frag(r, [J(f'ds_read_b128 {a_(r, 4)}, v{KX + (k4 & 1)} offset:{slotK(kb) + (k4 >> 1) * 1024}')])
            for u in range(2):
                d = v(SX + 4 * u, 4)
                self.use(mfs(d, a_(r, 4), a_(aQX + 16 * u + 4 * k4, 4), '0' if k4 == 0 else d), f, self.qx[u, k4])
        self.pos['x', kb] = len(self.M) - 1
    def pv(self, kb):
        b = kb & 1; buf = (kb >> 1) & 1; z = kb % 32 == 0
        self.pos['pv', kb] = len(self.M)
        px = [self.frag(aX + 8 * b + 4 * u, [J(f'ds_read_b128 {a_(aX + 8 * b + 4 * u, 4)}, v{PXR} offset:{buf * 4096 + b * 2048 + u * 1024}')]) for u in range(2)]
        def o(t, dt):
            d = v(O + 32 * t + 4 * dt, 4); f = self.vf[dt]; self.pos.setdefault(('p', kb, t), len(self.M))
            self.use(mfs(d, a_(f['reg'], 4), v(preg(b, t), 4), '0' if z else d), f)
        def lm(t):
            if t & 1: return
            for k in (t, t + 1): self.pos.setdefault(('p', kb, k), len(self.M)); self.pos['lm', kb, k] = len(self.M)
            self.use(smf(t >> 1, v(preg(b, t), 8)))
        def x(h):
            f = self.vf[4 * h]
            for u in range(2):
                d = v(OX + 8 * u + 4 * h, 4)
                self.use(mfs(d, a_(f['reg'], 4), a_(px[u]['reg'], 4), '0' if z else d), f, px[u])
            if h != (kb == 32): return
            self.pos['lx', kb, 0] = self.pos['lx', kb, 1] = len(self.M)
            self.use(smf(2, a_(px[0]['reg'], 8)), px[0], px[1])
        if kb % 32 == 31:
            if kb == 63: x(0); x(1)
            for t in range(4):
                lm(t)
                for dt in range(8): o(t, dt)
            if kb == 31: x(0); x(1)
        elif kb == 32:
            for t in range(4):
                for dt in range(8):
                    o(t, dt)
                    if t == 3 and dt in (3, 7): lm(dt >> 1 & 2)
            x(0); x(1)
        else:
            for i in range(8):
                for t in range(4): o(t, VORD[i])
                if i in LMI: lm(2 * LMI.index(i))
                if VORD[i] & 3 == 0: x(VORD[i] >> 2)
        self.pos['pve', kb] = len(self.M) - 1
    def sm(self, kb):
        for t in range(4):
            prev = None; P = preg(kb & 1, t); dl = self.pos['p', kb, t] - 2
            for hf in range(2):
                S = sreg(kb & 1, t, hf)
                x = [J(f'v_exp_f32 v{S + r}, v{S + r}') for r in range(4)]
                y = [J(f'v_cvt_pk_bf16_f32 v{P + 2 * hf + k}, v{S + 2 * k}, v{S + 2 * k + 1}', dep=x[2 * k + 1], cv=1) for k in range(2)]
                self.S.append(St(f'sm{kb}.{t}{hf}', x, self.pos['s', kb, t, hf], dl - EL0 - (4 if hf == 0 else 0)))
                prev = St(f'cv{kb}.{t}{hf}', y, self.pos['s', kb, t, hf], dl - (1 if hf == 0 else 0), after=prev); self.S.append(prev)
    def smx(self, kb):
        for u in range(2):
            S = SX + 4 * u
            x = [J(f'v_exp_f32 v{S + r}, v{S + r}') for r in range(4)]
            y = [J(f'v_cvt_pk_bf16_f32 v{S + k}, v{S + 2 * k}, v{S + 2 * k + 1}', dep=x[2 * k + 1], cv=1) for k in range(2)]
            y += [J(f'ds_write_b64 v{PXW}, {v(S, 2)} offset:{((kb >> 1) & 1) * 4096 + u * 1024}')]
            self.S.append(St(f'smx{kb}.{u}', x, self.pos['x', kb], self.bar[kb >> 1] - BARW - 4))
            self.S.append(St(f'cvx{kb}.{u}', y, self.pos['x', kb], self.bar[kb >> 1] - BARW))
    def vm(self, g, pre, c):
        while g in self.resv: g += 1
        self.resv.add(g); self.at(g - 1, pre); self.at(g, [c])
        for k in NOD: self.nods.add(g + k)
        return g

    def drain(self, h, wE, wD):
        kb = 32 * h + 31; big = len(self.M) - 1
        def tag(xs, e=None, d=None):
            for c in xs:
                if e is not None: c.info['e'] = e
                if d is not None: c.info['d'] = d
            return xs
        order = list(range(18)) if h == 0 else [16, 17] + list(range(16))
        n = len(order)
        dd = lambda k: min(wD['v', UB[k]], wD['v', UB[k] + 4]) - 2
        Gk = []
        for j in range(n + 2):
            x = self.pos['pv', kb] + (D0 + int(DSTEP * j) if h == 0 else 0)
            if j < n: x = max(x, wE['v', UB[order[j]] + 4] + DLAG, (self.pos['lx', kb, order[j] - 16] + DLAG + 2) if order[j] >= 16 else 0)
            if j: x = max(x, Gk[-1] + 2)
            while x in self.resv or x in self.bar.values(): x += 1
            Gk.append(min(x, big))
        grpof = lambda k: k >> 2 if k < 16 else k - 12
        lastuse = {}; st = []; pend = []; ls = None
        for j in range(n + 1):
            o = []; x = []
            if j >= 1:
                k = order[j - 1]; b = UB[k]
                o += [J(f'v_cvt_pk_bf16_f32 v{b + i}, v{b + 2 * i}, v{b + 2 * i + 1}') for i in range(4)]
                if k < 16:
                    x = [J(f'ds_write2_b64 v{GO}, {v(b, 2)}, {v(b + 2, 2)} offset0:{8 * (k & 1)} offset1:{8 * (k & 1) + 4}')]; x[0].cost = 9
                else:
                    x = [J(f'ds_write_b64 v{XW}, {v(b + 2 * i, 2)} offset:{(k - 16) * 4352 + 128 * i}') for i in range(2)]
                    for c in x: c.dst = {('x', 0)}; c.cost = 9
                tag(x, Gk[j] + 1, dd(k) if h == 0 else Gk[j + 1])
                if h == 0: assert Gk[j] < dd(k), k
                if k < 16 and k & 1:
                    dst = [park(k >> 1, i) if h == 0 else v(b - 4 + 8 * i, 4) for i in range(2)]
                    x += tag(pend, d=Gk[j + 1]) + [J(f'ds_read_b128 {dst[i]}, v{GO + 1} offset:{1152 * i}') for i in range(2)]
                    pend = [pstore(dst[i], k >> 1, i, 1) for i in range(2)] if h else []
                if h and j == XB:
                    bb = J('s_barrier'); bb.src = {('x', 0)}
                    x += [bb, xread(0), xread(1)]
                if h and j == XB + 3: x += [pstore(park(8, i), 8, i, 1) for i in range(2)]
            if j < n:
                k = order[j]; b = UB[k]; r = T + 2 * (len(set(map(grpof, order[:j + 1]))) & 1)
                if j == 0 or grpof(k) != grpof(order[j - 1]):
                    l = LX + k - 16 if k >= 16 else LM + (k >> 2)
                    e = self.pos['lx', kb, k - 16] if k >= 16 else self.pos['lm', kb, k >> 2]
                    ac = aL + 2 * grpof(k)
                    y = tag(L(f'v_accvgpr_read_b32 v{l}, a{ac}\nv_accvgpr_read_b32 v{IDX + 1}, a{ac + 1}\nv_add_f32 v{l}, v{l}, v{IDX + 1}'), d=Gk[j] - 1)
                    ls = St(f'l{h}.{k}', y, e, big, after=ls); self.S.append(ls)
                    if h == 0: self.S.append(St(f'z{k}', L(f'v_accvgpr_write_b32 a{ac}, 0\nv_accvgpr_write_b32 a{ac + 1}, 0'), e, self.pos['lx' if k >= 16 else 'lm', 32, (k - 16) if k >= 16 else k >> 2] - 2, after=ls))
                    self.S.append(St(f'rcp{h}.{k}', L(f'v_rcp_f32 v{r}, v{l}\nv_rcp_f32 v{r + 1}, v{l}'), max(e, lastuse.get(r, -1) + 1), Gk[j], after=ls))
                    assert lastuse.get(r, -1) < Gk[j]
                o += [J(f'v_pk_mul_f32 {v(b + 2 * i, 2)}, {v(b + 2 * i, 2)}, {v(r, 2)}') for i in range(4)]; lastuse[r] = Gk[j]
            if Gk[j] == big: o += x
            else: st += x
            self.post.setdefault(Gk[j], []).extend(o)
        self.S.append(St(f'dr{h}', st, Gk[0], big if h else self.bar[17] - BARW))
        c = tag(L(f"""
v_subrev_u32 v{T + 6}, s{sLo}, v{LM}
v_subrev_u32 v{T + 7}, s{sLo}, v{LM + 1}
v_max_u32 v{T + 6}, v{T + 6}, v{T + 7}
v_subrev_u32 v{T + 7}, s{sLo}, v{LM + 2}
v_cmp_lt_u32 s[48:49], s{sRg}, v{T + 6}
v_subrev_u32 v{T + 6}, s{sLo}, v{LM + 3}
v_max_u32 v{T + 6}, v{T + 6}, v{T + 7}
v_subrev_u32 v{T + 7}, s{sLo}, v{LX}
v_cmp_lt_u32 s[50:51], s{sRg}, v{T + 6}
v_subrev_u32 v{T + 6}, s{sLo}, v{LX + 1}
""")) + L(f"""
v_max_u32 v{T + 6}, v{T + 6}, v{T + 7}
s_lshl_b32 s{sF}, s{sF}, 3
v_cmp_lt_u32 s[52:53], s{sRg}, v{T + 6}
""")
        for k in range(3): c += [J(f's_cmp_lg_u64 s[{48 + 2 * k}:{49 + 2 * k}], 0\ns_cselect_b32 s55, {1 << k}, 0\ns_or_b32 s{sF}, s{sF}, s55')]
        if h: self.post[big].extend(c + pend)
        else: self.S.append(St(f'chk{h}', c, self.pos['pve', kb], self.bar[18], after=ls, prio=1))

    def build(self, prefix):
        M = self.M; n = len(M); fix = self.fix
        items = []
        for f in self.reads:
            d = min(f['first'] - LEAD, self.bar.get(f['it'] + 1, 10 ** 9) - BARW)
            for r in f['rd']: items.append((f['e'], d, len(items), r, f))
        items.sort(key=lambda x: x[0]); ip = 0; act = []; lastg = -100
        for g in range(-1, n):
            while ip < len(items) and items[ip][0] <= g: act.append(items[ip][1:]); ip += 1
            k = 0
            while k < (4 if g < 0 else 1) and g not in self.resv and g not in self.nods and act:
                act.sort(key=lambda x: x[:2])
                urgent = (ZDS and g >= 0 and M[g].op.startswith('v_smf')) or any(x[0] - g <= URG + DSS * i for i, x in enumerate(act))
                if not (g - lastg >= DSS or urgent or g < 0): break
                x = act.pop(0); self.at(g, [x[2]]); lastg = g; k += 1
                assert g < x[3]['first'] and g < self.bar.get(x[3]['it'] + 1, 10 ** 9), (g, x[2].text)
        assert not act and ip == len(items)
        S = sorted(self.S, key=lambda s: s.earliest); sp = 0; act = []
        out = []; hist = list(prefix); rep = []; forced = {}; npend = 0
        for g in range(-1, n):
            while sp < len(S) and S[sp].earliest <= g: act.append(S[sp]); sp += 1
            if g >= 0: out.append(M[g]); hist.append(M[g])
            fx = fix.get(g, [])
            for c in fx: out.append(c); hist.append(c)
            used = sum(c.cost for c in fx)
            nds = sum(1 for c in fx if c.kind in ('dsr', 'dsw', 'dma', 'vld', 'vst'))
            cap = 0 if g < 0 else CAP
            for lo, hi, cp in self.caps:
                if lo <= g <= hi: cap = cp
            nval = 0; zg = g >= 0 and M[g].op.startswith('v_smf')
            while True:
                cand = []
                for s in act:
                    if s.done() or (s.after is not None and not s.after.done()): continue
                    c = s.ins[s.pos]; force = s.dl[s.pos] <= g
                    if c.info.get('e', -1) > g:
                        assert not force, (s.name, c.text); continue
                    if 'dep' in c.info and not c.info['dep'].info.get('done'):
                        assert not force, s.name; continue
                    if c.kind in ('dsw', 'vst') and not force and (nval or nds): continue
                    if c.kind == 'dsr' and not force and (nval or nds > 1): continue
                    if zg and isv(c) and not force and (nval or c.cost > 5): continue
                    cand.append((c.kind not in ('dsw', 'dsr', 'vst'), s.prio, s.dl[s.pos], s, c, force))
                cv = [x for x in cand if x[4].info.get('cv')]
                lazy = used < 1 and not zg and not (npend >= CQ or any(x[2] - g <= CL for x in cv))
                cand.sort(key=lambda x: (x[0], x[1], lazy and bool(x[4].info.get('cv')), not lazy and used < 1 and not x[4].info.get('cv'), x[2]))
                pick = None
                for _, _, _, s, c, force in cand:
                    if (used + c.cost <= cap or force) and rpad(hist, c) == 0:
                        pick = (s, c)
                        if used + c.cost > cap: forced[s.name] = forced.get(s.name, 0) + 1
                        break
                if pick is None:
                    fl = [x for x in cand if x[5]]
                    if fl:
                        p = J(f's_nop {rpad(hist, fl[0][4]) - 1}'); out.append(p); hist.append(p); used += p.cost
                        continue
                    break
                s, c = pick; s.pos += 1; s.lastg = g; c.info['done'] = 1
                npend += 0.5 if c.op == 'v_exp_f32' else -1 if c.info.get('cv') else 0
                out.append(c); hist.append(c); used += c.cost
                if isv(c): nval += 1
                elif c.kind not in ('salu', 'wait'): nds += 1
            for s in act: assert s.done() or s.dl[s.pos] > g, ('late', s.name, g)
            for c in self.post.get(g, []): out.append(c); hist.append(c); used += c.cost
            rep.append(used); hist = hist[-24:]; act = [s for s in act if not s.done()]
        assert not act and sp == len(S), [(s.name, s.pos) for s in act]
        if VERB:
            bs = sorted(self.bar.items()) + [(99, n - 1)]
            for (i, a), (_, b) in zip(bs, bs[1:]):
                r = rep[a + 1:b + 1]
                print(f'; it {i}: n={b - a} est={sum(max(16, x + 6.5) for x in r):.0f} free={sum(1 for x in r if x < 4.8)}', ' '.join('%d' % x for x in r) if VERB > 1 else '', file=sys.stderr)
            print('; forced', forced, file=sys.stderr)
        return out


def lgk(seq):
    out = []; t = 0; pipe = 0; q = []
    for c in seq:
        if c.kind == 'label': out.append(c); continue
        if c.kind == 'wait':
            k = parse_wait(c.text)
            if k is not None: del q[:max(0, len(q) - k)]
        else:
            touch = c.src | (c.dst if c.kind != 'dsw' else set())
            k = -1
            for idx, (regs, ti) in enumerate(q):
                if regs & touch and not (c.kind == 'dsr' and not (regs & c.src)): k = idx
            if len(q) >= 15 and c.kind in ('dsr', 'dsw'): k = max(k, 0)
            if k >= 0:
                while k + 1 < len(q) and t - q[k + 1][1] >= SETTLE: k += 1
                w = J(f's_waitcnt lgkmcnt({len(q) - 1 - k})', tag='autowait'); w.info['age'] = t - q[k][1]
                out.append(w); del q[:k + 1]
        if c.kind == 'mfma':
            t = max(t, pipe); pipe = t + c.mlen
        if c.kind in ('dsr', 'dsw'): q.append((set(c.dst), t))
        t += c.cost
        out.append(c)
    return out


def vmfix(seq):
    ops = []; done = -1; out = []
    for c in seq:
        if c.kind in ('dma', 'vst', 'vld'): ops.append(c.info.get('name'))
        elif c.kind == 'wait' and 'need' in c.info:
            k = -1
            for nm in c.info['need']:
                idx = [i for i, x in enumerate(ops) if x == nm]
                assert len(idx) == (1 if nm[0] == 'Q' else 2), (nm, idx)
                k = max(k, idx[-1])
            if k <= done:
                if not c.info['lg']: continue
                c.text = 's_waitcnt lgkmcnt(0)'
            else:
                done = k; nn = len(ops) - 1 - k
                assert nn <= 63
                c.text = c.text.replace('vmcnt(0)', f'vmcnt({nn})')
                if VERB: print('; vm', c.info['need'][-1], nn, end=' ', file=sys.stderr)
        out.append(c)
    if VERB: print(file=sys.stderr)
    return out


def ending():
    o = L('L_fin:')
    if STAMP:
        pre, post = stamp(18)
        o += L('s_waitcnt vmcnt(0)') + pre + L('s_waitcnt lgkmcnt(0)') + post
    if STAMP == 2:
        sel = [32 + x for x in (1, 2, 4, 6, 8, 10, 11, 13, 15, 17, 18)] + [2, 10, 18]
        o += L('v_mov_b32 v23, s96\ns_mov_b32 exec_hi, 0\nv_mov_b32 v23, s94\ns_mov_b64 exec, -1\nv_sub_u32 v22, v0, v23\nv_mov_b32 v21, 0')
        o += [J(f'v_writelane_b32 v21, {8 + 4 * k}, {x}') for k, x in enumerate(sel)]
        m = sum(1 << x for x in sel)
        o += L(f's_mov_b32 exec_lo, {hex(m & 0xffffffff)}\ns_mov_b32 exec_hi, {hex(m >> 32)}\ns_nop 4\nbuffer_atomic_add v22, v21, {s_(sWS, 4)}, 0 offen sc1')
        o += L(f's_mov_b64 exec, 1\ns_not_b32 s48, s96\nv_mov_b32 v16, s48\nv_mov_b32 v17, s100\nbuffer_atomic_umax v16, off, {s_(sWS, 4)}, 0 sc1\nbuffer_atomic_umax v17, off, {s_(sWS, 4)}, 0 offset:4 sc1\ns_mov_b64 exec, -1')
    elif STAMP:
        o += L(f'''
v_mov_b32 v16, s96
v_mov_b32 v17, s97
v_mov_b32 v18, s100
v_mov_b32 v19, s101
s_lshl_b32 s48, s2, 6
s_lshl_b32 s49, s{sW}, 4
s_add_u32 s48, s48, s49
v_mov_b32 v20, 0
v_mov_b32 v22, v0
v_mov_b32 v23, v0
v_permlane32_swap_b32 v22, v23
v_subrev_u32 v21, {PXL}, v{PXR}
v_lshrrev_b32 v21, 1, v21
s_lshl_b32 s49, s48, 5
s_add_u32 s49, s49, 0x40000
buffer_store_dwordx2 v[22:23], v21, {s_(sWS, 4)}, s49 offen
s_mov_b64 exec, 1
buffer_store_dwordx4 v[16:19], v20, {s_(sWS, 4)}, s48 offen
s_mov_b64 exec, -1
''')
    o += L(f's_cmp_lg_u32 s{sF}, 0\ns_cbranch_scc1 L_slow\nL_end:\ns_endpgm' + ('\nL_far:\ns_branch L_back' if 'T' in SO else ''))
    return o


def slow():
    sB = sT + 1; sR = sT + 2; sKV = sT + 3; sJ = sT + 4; sY = sT + 5; sP = sT + 7
    LN = 1; VO = 2; VAs = 3; VD = 5; m = 6; l = 7; t = 8; GX = 13; Q = 128; OO = 160; KF = 16; S = 48; VF = 64; QT = 240
    o = L(f'''
L_slow:
s_waitcnt vmcnt(0) lgkmcnt(0)
s_and_b32 s{sB}, s{sF}, 0x24
s_cbranch_scc0 L_sl1
s_barrier
s_cmp_eq_u32 s{sW}, 0
s_cbranch_scc1 L_sl1
s_and_b32 s{sF}, s{sF}, 0x1b
s_cbranch_scc0 L_end
L_sl1:
v_subrev_u32 v{LN}, {PXL}, v{PXR}
v_lshrrev_b32 v{LN}, 4, v{LN}
v_and_b32 v{VO}, 31, v{LN}
v_lshrrev_b32 v{t}, 5, v{LN}
v_lshlrev_b32 v{VO}, 8, v{VO}
v_lshl_add_u32 v{GX}, v{t}, 5, v{VO}
v_lshl_add_u32 v{VO}, v{t}, 4, v{VO}
v_lshrrev_b32 v17, 3, v{LN}
v_and_b32 v18, 7, v{LN}
v_and_b32 v19, 2, v17
v_lshlrev_b32 v19, 1, v19
v_xor_b32 v18, v18, v19
v_lshlrev_b32 v17, 8, v17
v_lshl_add_u32 v{VD}, v18, 4, v17
v_bfe_u32 v16, v{LN}, 2, 2
v_lshl_add_u32 v18, v{t}, 2, v16
v_lshlrev_b32 v18, 7, v18
v_lshrrev_b32 v16, 1, v16
v_lshl_add_u32 v18, v16, 6, v18
v_and_b32 v16, 1, v{LN}
v_lshl_add_u32 v18, v16, 5, v18
v_bfe_u32 v16, v{LN}, 4, 1
v_lshl_add_u32 v18, v16, 4, v18
v_bfe_u32 v16, v{LN}, 1, 1
v_lshl_add_u32 v18, v16, 3, v18
s_lshl_b32 s{sP}, s{sW}, 13
v_add_u32 v{VAs}, s{sP}, v18
v_xor_b32 v{VAs + 1}, 64, v{VAs}
L_sl2:
s_ff1_i32_b32 s{sB}, s{sF}
s_bitset0_b32 s{sF}, s{sB}
s_cmp_ge_u32 s{sB}, 3
s_cselect_b32 s{sR}, 0, {HQ}
s_cselect_b32 s{sKV}, 0, {HK}
s_cselect_b32 s{sY}, 3, 0
s_sub_u32 s{sB}, s{sB}, s{sY}
s_lshl_b32 s{sY}, s2, 19
s_add_u32 s{sKV}, s{sKV}, s{sY}
s_lshl_b32 s{sY}, s{sB}, 13
s_add_u32 s{sY}, s{sY}, s{sQo}
s_add_u32 s{sJ}, s{sQb}, 0x10000
s_cmp_eq_u32 s{sB}, 2
s_cselect_b32 s{sY}, s{sJ}, s{sY}
s_add_u32 s{sR}, s{sR}, s{sY}
''')
    o += [J(f'buffer_load_dwordx4 {v(Q + 4 * k, 4)}, v{VO}, {s_(sQ, 4)}, s{sR} offen offset:{32 * k}') for k in range(8)]
    o += [J(f'v_mov_b64 {v(OO + 2 * k, 2)}, 0') for k in range(32)]
    o += L(f'v_mov_b32 v{m}, 0xff800000\nv_mov_b32 v{l}, 0\ns_mov_b32 s{sJ}, 0\ns_waitcnt vmcnt(0)')
    for k in range(8): o += scale4(Q + 4 * k, QT)
    o += L('L_sl3:')
    o += [J(f'buffer_load_dwordx4 {v(KF + 4 * k, 4)}, v{VO}, {s_(sK, 4)}, s{sKV} offen offset:{32 * k}') for k in range(8)]
    for w in range(4):
        o += L(f's_add_u32 m0, s{sP}, {(w >> 1) * 4096 + (w & 1) * 1024}\ns_add_u32 s{sY}, s{sKV}, {(w >> 1) * 4096 + (w & 1) * 128}')
        o += [dma(VD, sV, sY, 0, None), dma(VD, sV, sY, 2048, None)]
    o += L('s_waitcnt vmcnt(0)')
    o += [mfma(v(S, 16), v(KF + 4 * k, 4), v(Q + 4 * k, 4), '0' if k == 0 else v(S, 16)) for k in range(8)]
    for s in range(2):
        for d in range(4):
            o += [J(f'ds_read_b64_tr_b16 {v(VF + 16 * s + 4 * d + 2 * u, 2)}, v{VAs + (d & 1)} offset:{(2 * s + u) * 2048 + (d >> 1) * 1024}') for u in range(2)]
        o += L('s_waitcnt lgkmcnt(0)')
    o += L(f'v_max3_f32 v{t}, v{S}, v{S + 1}, v{m}')
    o += [J(f'v_max3_f32 v{t}, v{t}, v{S + 2 * k}, v{S + 2 * k + 1}') for k in range(1, 8)]
    o += L(f'''v_mov_b32 v{t + 1}, v{t}
v_permlane32_swap_b32 v{t}, v{t + 1}
v_max_f32 v{t}, v{t}, v{t + 1}
v_sub_f32 v{t + 1}, v{m}, v{t}
v_mov_b32 v{m}, v{t}
v_exp_f32 v{t + 1}, v{t + 1}''')
    o += [J(f'v_sub_f32 v{S + k}, v{S + k}, v{m}') for k in range(16)]
    o += L(f'v_mul_f32 v{l}, v{l}, v{t + 1}')
    o += [J(f'v_mul_f32 v{OO + k}, v{OO + k}, v{t + 1}') for k in range(64)]
    o += [J(f'v_exp_f32 v{S + k}, v{S + k}') for k in range(16)]
    o += [J(f'v_add_f32 v{l}, v{l}, v{S + k}') for k in range(16)]
    o += [J(f'v_cvt_pk_bf16_f32 v{S + 8 * s + k}, v{S + 8 * s + 2 * k}, v{S + 8 * s + 2 * k + 1}') for s in range(2) for k in range(4)]
    for s in range(2):
        for d in range(4):
            o.append(mfma(v(OO + 16 * d, 16), v(VF + 16 * s + 4 * d, 4), v(S + 8 * s, 4), v(OO + 16 * d, 16)))
    o += L(f'''s_nop 15
s_add_u32 s{sKV}, s{sKV}, 0x2000
s_add_u32 s{sJ}, s{sJ}, 1
s_cmp_lt_u32 s{sJ}, 32
s_cbranch_scc1 L_sl3
v_mov_b32 v{t}, v{l}
v_permlane32_swap_b32 v{l}, v{t}
v_add_f32 v{l}, v{l}, v{t}
v_rcp_f32 v{l}, v{l}''')
    o += [J(f'v_mul_f32 v{OO + k}, v{OO + k}, v{l}') for k in range(64)]
    o += [J(f'v_cvt_pk_bf16_f32 v{OO + k}, v{OO + 2 * k}, v{OO + 2 * k + 1}') for k in range(32)]
    o += [J(f'buffer_store_dwordx4 {v(OO + 4 * k, 4)}, v{GX}, {s_(sO, 4)}, s{sR} offen offset:{64 * (k >> 1) + 16 * (k & 1)}') for k in range(8)]
    o += L(f's_waitcnt vmcnt(0)\ns_cmp_lg_u32 s{sF}, 0\ns_cbranch_scc1 L_sl2\ns_endpgm')
    return fixh(o)


def main():
    blks = list(BLKS)
    st = startup(blks)
    g = G()
    def top(i):
        k = 1 if i < 0 else (2 + i // 2 if i % 2 == 0 else None)
        pre, post = stamp(k) if k else ([], [])
        g.top(i, pre + [vwait(*[x for x in BLKS if grp(*x) == i], lg=True)] + post + L('s_barrier'))
    top(-1)
    g.qxread(LM, -1)
    g.qk(0); g.xqk(0); g.vread(0); g.qk(1)
    for i in range(31):
        top(i)
        if i == 16: wE = {k[1]: p for k, p in g.pos.items() if k[0] == 'w'}
        g.pv(2 * i)
        if i == 16: wD = {}; [wD.setdefault(r, p) for p in range(g.pos['pv', 32], len(g.M)) for r in g.M[p].dst]
        g.vread(2 * i + 1)
        g.qk(2 * i + 2); g.xqk(2 * i + 2)
        if i == 14:
            g.at(g.bar[14] + 1, L(f'v_add_u32 v{T + 14}, {QXL}, v{KA}')); g.at(g.bar[14] + 2, L(f'v_add_u32 v{T + 15}, {QXL}, v{KA + 1}'))
            g.qxread(T + 14, g.bar[14] + 4)
        g.pv(2 * i + 1); g.vread(2 * i + 2); g.qk(2 * i + 3)
    top(31); g.pv(62); g.vread(63); g.pv(63)
    for kb in range(64): g.sm(kb)
    for kb in range(0, 64, 2): g.smx(kb)
    g.caps = [(g.pos['pv', 31] + 4, g.pos['pve', 32], CAPD), (g.pos['pv', 63] + 4, len(g.M), CAPT), (0, g.bar[0], CAPP), (g.bar[31], g.pos['pv', 63] + 3, CAPP)]
    for i, cp in ED('CR', '0:60,1:60,2:13,3:13,4:13,5:13,6:13').items(): g.caps.append((g.bar[i] + 1, g.bar[i + 1], cp))
    nq = sum(1 for x in SO.split(',') if x[0] == 'n'); ldit = {p: -1 for p in range(nq)}
    stp = list(range(9))
    for i in range(-1, 31):
        b0 = g.bar[i] + 1; nb = min(NB.get(i, 4), len(blks))
        while nb and grp(*blks[nb - 1]) > i + 3: nb -= 1
        if i < 0: pos = list(range(18, 70, 3)); xg = [4, 8, 12]
        else:
            pos = DMG if nb <= 4 else [6 + (134 * k) // (2 * nb - 1) for k in range(2 * nb)]
            xg = DMG[2 * nb::2] + XG if nb < 4 else XG
        for k in range(nb):
            p, d = blk(*blks.pop(0))
            g.vm(b0 + pos[2 * k], [c for c in p if c.kind != 'nop'], d[0]); g.vm(b0 + pos[2 * k + 1], [], d[1])
        prs = []
        if XL == i: prs.append(xld(1))
        for _ in range(QL.get(i, 0)): prs.append([qld(2 * nq + k, 1, a_(aR + 8 * nq + 4 * k, 4)) for k in range(2)]); ldit[nq] = i; nq += 1
        for _ in range(ST.get(i, 0)):
            if stp: p = stp.pop(0); prs.append([pstore(park(p, k), p, k, 0) for k in range(2)]); assert i >= 17
        for pr, x in zip(prs, xg):
            x = g.vm(b0 + x, [], pr[0]); g.vm(x + XD, [], pr[1])
            if f'v{GX},' in pr[0].text and pr[0].kind == 'vst': g.reads.append({'reg': None, 'rd': [xread(0), xread(1)], 'e': max(g.bar[17], x - 60), 'first': x, 'it': 99})
        assert len(prs) <= len(xg)
    assert not blks and nq == 8 and not stp, (blks, nq, stp)
    g.drain(0, wE, wD)
    g.drain(1, {k[1]: p for k, p in g.pos.items() if k[0] == 'w'}, {})
    g.S.append(St('xadr', L(f'v_lshrrev_b32 v{XW}, 1, v{QN}\nv_and_b32 v{XR}, 0x30, v{QN}\nv_and_b32 v{XW}, 0x780, v{XW}\nv_add3_u32 v{XR}, v{PXR}, v{XR}, s{sXc + 1}\nv_add3_u32 v{XW}, v{GO}, v{XW}, s{sXc}\nv_add_u32 v{GX}, s{sXc + 2}, v{PXR}'), g.pos['qk', 32], g.pos['pv', 31], prio=1))
    xs = St('xs', xs_block(1), g.bar[XL + QLAG], g.bar[14] - BARW, prio=1); g.S.append(xs)
    dn = [i for i in sorted(DN) for _ in range(DN[i])]
    prev = None; seq = []
    for f in range(16):
        if f < len(dn): e = g.bar[dn[f]] + 40; seq.append((e, St(f'q{f}', qfrag(f, T, E('PKD', 1)), e, e, prio=1)))
        else: e = g.bar[min(14, ldit[f >> 1] + QLAG)]; seq.append((e, St(f'q{f}', qfrag(f, T, PK), e, g.pos['qk', 32] - 3, prio=1)))
    seq.append((xs.earliest, xs)); seq.sort(key=lambda x: x[0])
    for _, s in seq:
        s.after = prev; prev = s
        if s is not xs: g.S.append(s)
    start = fixh(lgk(st))
    main_ = g.build(start[-24:])
    if VERB: print('; last gaps:', [(s.name, [i for i in g.bar if g.bar[i] <= s.lastg][-1]) for _, s in seq], file=sys.stderr)
    prog = vmfix(start + main_)
    prog = fixh(lgk(prog))
    if VERB: print('; nops', sum(1 for c in prog if c.kind == 'nop'), 'young waits', [int(c.info['age']) for c in prog if c.tag == 'autowait' and c.info['age'] < 150], file=sys.stderr)
    prog += fixh(ending(), prog[-24:]) + slow()
    out = [f'; @launch grid=(256,1,1) block=(256,1,1) lds={LDSZ}',
           '.amdgcn_target "amdgcn-amd-amdhsa--gfx950"', '.text', f'.globl {NAME}', '.p2align 8', f'.type {NAME},@function', f'{NAME}:']
    dg = E('DIAG', 0); nbar = 0
    for c in prog:
        if c.kind == 'barrier': nbar += 1
        if nbar > 8 and ((dg & 1 and c.kind == 'barrier') or (dg & 2 and c.kind == 'dma') or (dg & 4 and c.tag == 'autowait')): continue
        if c.kind == 'vst' and c.info.get('name') == 'st' and ((dg & 32 and nbar > 32) or dg & 64): continue
        out.append(c.text)
    out += ['.section .rodata,"a"', '.p2align 6', f'.amdhsa_kernel {NAME}',
            '  .amdhsa_next_free_vgpr 512', '  .amdhsa_next_free_sgpr 102', '  .amdhsa_accum_offset 256',
            '  .amdhsa_group_segment_fixed_size 0', '  .amdhsa_kernarg_size 48', '  .amdhsa_user_sgpr_count 2',
            '  .amdhsa_user_sgpr_kernarg_segment_ptr 1', '  .amdhsa_system_sgpr_workgroup_id_x 1', '.end_amdhsa_kernel']
    print('\n'.join(out))


main()
```

```python
import os, sys, struct, math
sys.path.insert(0, os.path.dirname(os.path.abspath(__file__)))
from asmlib import *

E = lambda k, d: int(os.environ.get(k, d))
F = lambda k, d: float(os.environ.get(k, d))
EL = lambda k, d: [int(x) for x in os.environ.get(k, d).split(',') if x]
ED = lambda k, d: dict(tuple(int(y) for y in x.split(':')) for x in os.environ.get(k, d).split(',') if x)
STAMP = E('STAMP', 0); VERB = E('VERB', 0); FINE = E('FINE', 0)
CAP = F('CAP', 9.5); DSC = F('DSC', 4.0); CAPD = F('CAPD', 9.5); CAPT = F('CAPT', 13); CAPP = F('CAPP', 14)
SETTLE = E('SETTLE', 170)
LEAD = E('LEAD', 12); BARW = E('BARW', 8); URG = E('URG', 4); DSS = E('DSS', 2)
DMG = EL('DMG', '6,25,44,63,82,101,120,138')
XG = EL('XG', '14,46,78,110,30,62,94,126'); XD = E('XD', 1)
LDP = os.environ.get('LDP', ' nt'); STP = os.environ.get('STP', ' sc0 sc1'); STX = os.environ.get('STX', '')
SO = os.environ.get('SO', 'q0,q1,x,q2,q3,b,U,s0,b,b,s1,X,b,b,s2,s3')
NB = ED('NB', '-1:4,1:5,2:5,20:5,22:5,24:5,26:5')
QL = ED('QL', '1:1,2:1,3:1,4:1,5:1,6:1,7:1,8:1'); XL = E('XL', 0)
QLAG = E('QLAG', 2)
DN = ED('DN', '')
ST = ED('ST', '28:3,29:3,30:3')
DS = EL('DS', '')
TM = E('TM', 1); MIDB = ED('MIDB', ''); EL0 = E('EL0', 2); CQ = E('CQ', 6); CL = E('CL', 3); LMI = EL('LMI', '1,3'); ZDS = E('ZDS', 1); NOD = EL('NOD', ''); XB = E('XB', 13); PK = E('PK', 0); SWM = E('SWM', 1); D0 = E('D0', 8); DSTEP = F('DSTEP', 5.3); DLAG = E('DLAG', 3)
NAME = 'standalone__mha_softmax__near_ridge_kernel'
KA = 1; KX = 3; VA = 5; PXW = 9; PXR = 10; VOD = 11; QN = 12; GO = 13
SS = [16, 48]; SX = 80; OX = 88; LM = 104; LX = 108; T = 112; O = 128
aQ = 0; aQX = 64; aR = 96; aV = 160; aK = 192; aX = 224; aC = 240; aL = 244; IDX = LX + 2
sQ, sK, sV, sO = 4, 8, 12, 16
sW, sN, sQb, sMask, sC, sLo, sRg, sM, sF, sQo, sXo, sNv = 20, 21, 22, 25, 26, 28, 29, 30, 34, 35, 36, 37
sOf = 68
sT = 48; sWS = 64; sP = 40; PFN = 4
PXL = 0x20000; QXL = 0x22000; STG = 0x22000; XST = 0x24400; LDSZ = 0x26600
XW, XR, GX = T + 4, T + 5, QN; sXc = 44
f2u = lambda x: struct.unpack('<I', struct.pack('<f', x))[0]
CSC = f2u(math.log2(math.e) / math.sqrt(128.0))
LOB = f2u(2.0 ** -20); HIB = f2u(2.0 ** 30)
HK = 262144; HQ = 73728

v = lambda a, n=1: f'v{a}' if n == 1 else f'v[{a}:{a + n - 1}]'
a_ = lambda a, n=1: f'a{a}' if n == 1 else f'a[{a}:{a + n - 1}]'
s_ = lambda a, n=1: f's{a}' if n == 1 else f's[{a}:{a + n - 1}]'
COST = {'valu': 4.65, 'trans': 8.7, 'salu': 0.3, 'wait': 0.3, 'barrier': 1.0, 'dsw': DSC, 'dsr': DSC, 'vst': 8.0, 'dma': 9.0, 'vld': 9.0, 'smem': 1.0, 'branch': 1.0}


class I2(I):
    __slots__ = ('info', 'mlen')


def J(text, **kw):
    x = I2(text)
    if x.kind in COST: x.cost = COST[x.kind]
    if x.kind == 'smem': x.kind = 'salu'
    if x.op.startswith('v_permlane'): x.cost = 8.7
    x.tag = kw.get('tag'); x.earliest = kw.get('earliest'); x.info = kw; x.mlen = 0
    if x.kind == 'mfma': x.mlen = 16 if '16x16' in x.op else 32
    if x.op.startswith('v_writelane'): x.src = x.src | x.dst
    if x.op.startswith('s_bitcmp'): x.src = x.src | (x.dst - {('scc', 0)}); x.dst = {('scc', 0)}
    return x


def L(txt, **kw): return [J(x.strip(), **kw) for x in txt.strip().split('\n') if x.strip()]
def mfma(d, a, b, c): return J(f'v_mfma_f32_32x32x16_bf16 {d}, {a}, {b}, {c}')
def mfs(d, a, b, c): return J(f'v_mfma_f32_16x16x32_bf16 {d}, {a}, {b}, {c}')
def smf(k, b): return J(f'v_smfmac_f32_16x16x64_bf16 {a_(aL + 4 * k, 4)}, {a_(aC, 4)}, {b}, v{IDX}')
sreg = lambda b, t, hf: SS[b] + 8 * t + 4 * (hf ^ (~t & 1))
preg = lambda b, t: SS[b] + 8 * t + 4 * (~t & 1)
def isv(c): return c.kind in ('valu', 'trans')


def rpad(prev, c):
    dist = 0; pad = 0
    for p in reversed(prev):
        if p.kind == 'label': continue
        n = need_states(p, c)
        if n and p.kind == 'mfma' and p.mlen == 16: n = {12: 8, 10: 6, 7: 3}[n]
        if n > dist: pad = max(pad, n - dist)
        dist += p.states
        if dist >= 13: break
    return pad


def fixh(seq, prefix=()):
    out = list(prefix); n0 = len(out)
    for c in seq:
        if c.kind != 'label':
            pad = rpad(out[-24:], c)
            if pad: out.append(J(f's_nop {pad - 1}'))
        out.append(c)
    return out[n0:]


def edge_pad(prev, nxt):
    for k in range(0, 14):
        seq = list(prev[-24:]) + ([J(f's_nop {k - 1}')] if k else [])
        ok = True
        for c in nxt[:16]:
            if c.kind != 'label' and rpad(seq, c): ok = False; break
            seq.append(c)
        if ok: return k
    raise RuntimeError('edge')


def dma(voff, srd, soff, imm, name):
    o = f' offset:{imm}' if imm else ''
    return J(f'buffer_load_dwordx4 {v(voff)}, {s_(srd, 4)}, {s_(soff)} offen{o}{LDP} lds', name=name)


slotK = lambda b: ((b - 2) & 7) * 0x2000
slotV = lambda b: ((b - 1) & 7) * 0x2000
grp = lambda kind, b: ((b - 2) if kind == 'K' else (b - 1)) >> 1
BORD = os.environ.get('BORD', 'VKVK')
BLKS = [('K', 0), ('K', 1), ('V', 0)]
for j in range(32):
    nx = {'V': 2 * j + 1, 'K': 2 * j + 2}
    for c in BORD:
        if nx[c] < 64: BLKS.append((c, nx[c]))
        nx[c] += 1


def blk(kind, b):
    sn = sN if kind == 'K' else sNv
    pre = [J(f's_add_u32 m0, s{sM}, {hex(slotK(b) if kind == "K" else slotV(b) + 0x10000)}')]
    pre.append(J(f's_add_u32 s{sn}, s{sn}, 0x2000') if b else J('s_nop 0'))
    srd = sK if kind == 'K' else sV
    return pre, [dma(VOD, srd, sn, 0, (kind, b)), dma(VOD, srd, sn, 2048, (kind, b))]


def vwait(*names, lg=False): return J('s_waitcnt vmcnt(0)' + (' lgkmcnt(0)' if lg else ''), need=list(names), lg=lg)
def qld(f, h, dst): return J(f'buffer_load_dwordx4 {dst}, v{QN}, {s_(sQ, 4)}, s{sOf + 6 * h + (f >> 2)} offen offset:{(1024 if E("DIAG", 0) & 16 else 64) * (f & 3)}{LDP}'.replace(f'v{QN},', 'v80,' if E('DIAG', 0) & 16 and h == 0 else f'v{QN},'), name=('Q', h, f))
def xld(h): return [J(f'buffer_load_dwordx4 {v(T + 8 + 4 * k, 4)}, v{VOD}, {s_(sQ, 4)}, s{sOf + 6 * h + 4} offen{" offset:2048" if k else ""}{LDP}', name=('X', h)) for k in range(2)]


def scale4(r, t, pk=1):
    o = [J(f'v_lshlrev_b32 v{t + 2 * i}, 16, v{r + i}') for i in range(4)]
    o += [J(f'v_and_b32 v{t + 2 * i + 1}, s{sMask}, v{r + i}') for i in range(4)]
    if pk: o += [J(f'v_pk_mul_f32 {v(t + 2 * i, 2)}, {v(t + 2 * i, 2)}, {s_(sC, 2)}') for i in range(4)]
    else: o += [J(f'v_mul_f32 v{t + i}, s{sC}, v{t + i}') for i in range(8)]
    o += [J(f'v_cvt_pk_bf16_f32 v{r + i}, v{t + 2 * i}, v{t + 2 * i + 1}') for i in range(4)]
    return o


def xs_block(h):
    o = [vwait(('X', h))] + scale4(T + 8, T, 1 - h) + scale4(T + 12, T, 1 - h)
    o += L(f'v_add_u32 v{T}, s{sXo}, v{PXR}')
    return o + [J(f'ds_write_b128 v{T}, {v(T + 8 + 4 * k, 4)} offset:{2048 * k}') for k in range(2)]


def qfrag(f, t, pk=1):
    o = [vwait(('Q', 1, f))] + [J(f'v_accvgpr_read_b32 v{t + 2 * i + 1}, a{aR + 4 * f + i}') for i in range(4)]
    o += [J(f'v_lshlrev_b32 v{t + 2 * i}, 16, v{t + 2 * i + 1}') for i in range(4)]
    o += [J(f'v_and_b32 v{t + 2 * i + 1}, s{sMask}, v{t + 2 * i + 1}') for i in range(4)]
    if pk: o += [J(f'v_pk_mul_f32 {v(t + 2 * i, 2)}, {v(t + 2 * i, 2)}, {s_(sC, 2)}') for i in range(4)]
    else: o += [J(f'v_mul_f32 v{t + i}, s{sC}, v{t + i}') for i in range(8)]
    o += [J(f'v_cvt_pk_bf16_f32 v{t + 2 * i}, v{t + 2 * i}, v{t + 2 * i + 1}') for i in range(4)]
    return o + [J(f'v_accvgpr_write_b32 a{aR + 4 * f + i}, v{t + 2 * i}') for i in range(4)]


def stamp(idx):
    if not STAMP: return [], []
    return L('s_memtime s[98:99]\ns_memrealtime s[100:101]'), L(f'v_writelane_b32 v0, s98, {idx}\nv_writelane_b32 v0, s100, {idx + 32}')


def setup():
    o = L(f"""
s_mov_b32 s{sMask}, 0xffff0000
s_mov_b32 s{sC}, {hex(CSC)}
s_mov_b32 s{sC + 1}, {hex(CSC)}
s_mov_b32 s{sLo}, {hex(LOB)}
s_mov_b32 s{sRg}, {hex(HIB - LOB)}
s_mov_b32 s{sF}, 0
s_add_u32 s{sXo}, s{sM}, {QXL - PXL}
v_lshrrev_b32 v18, 3, v16
v_lshlrev_b32 v18, 11, v18
v_and_b32 v19, 7, v16
v_lshl_add_u32 v18, v19, 7, v18
v_and_b32 v19, 6, v16
v_xor_b32 v19, v19, v17
v_lshl_add_u32 v{KA}, v19, 4, v18
v_xor_b32 v{KA + 1}, 64, v{KA}
s_lshl_b32 s48, s{sW}, 12
v_add_u32 v{KX}, s48, v{KA}
v_add_u32 v{KX + 1}, s48, v{KA + 1}
v_lshlrev_b32 v{PXR}, 4, v0
v_add_u32 v{PXR}, {PXL}, v{PXR}
s_lshl_b32 s48, s58, 11
s_lshl_b32 s49, s59, 3
s_add_u32 s48, s48, s49
v_add_u32 v{PXW}, s48, v{PXR}
v_lshrrev_b32 v18, 5, v0
v_lshlrev_b32 v18, 11, v18
v_bfe_u32 v19, v0, 2, 3
v_lshl_add_u32 v18, v19, 7, v18
v_and_b32 v19, 6, v19
v_bfe_u32 v20, v0, 1, 1
v_or_b32 v19, v19, v20
v_lshl_add_u32 v18, v19, 4, v18
v_and_b32 v20, 1, v0
v_lshl_add_u32 v18, v20, 3, v18
s_mul_i32 s49, s{sW}, 2304
s_add_u32 s49, s49, {STG}
v_mul_u32_u24 v19, 144, v16
v_lshl_add_u32 v19, v17, 3, v19
v_add_u32 v{GO}, s49, v19
v_lshrrev_b32 v19, 3, v0
v_and_b32 v20, 7, v0
v_lshlrev_b32 v20, 4, v20
v_mul_u32_u24 v21, 144, v19
v_add3_u32 v{GO + 1}, v21, v20, s49
s_lshl_b32 s48, s{sW}, 5
v_xor_b32 v20, s48, v20
v_lshl_add_u32 v{GO + 2}, v19, 8, v20
s_sub_u32 s{sXc}, s48, s49
s_add_u32 s{sXc}, s{sXc}, {XST}
s_mul_i32 s{sXc + 1}, s{sW}, 2176
s_add_u32 s{sXc + 1}, s{sXc + 1}, {XST - PXL}
s_lshl_b32 s{sXc + 2}, s{sW}, 11
s_sub_u32 s{sXc + 2}, s{sXc + 2}, {PXL}
s_add_u32 s48, s48, 0x10000
v_xor_b32 v{VA}, s48, v18
v_xor_b32 v{VA + 1}, 32, v{VA}
v_xor_b32 v{VA + 2}, 64, v{VA}
v_xor_b32 v{VA + 3}, 0x60, v{VA}
v_lshrrev_b32 v18, 4, v0
v_xor_b32 v18, v18, v0
v_and_b32 v18, 2, v18
v_mov_b32 v19, 0x3f803f80
v_and_b32 v20, 1, v0
v_mul_u32_u24 v20, 0xaaaa, v20
v_add_u32 v{IDX}, 0x4444, v20
v_add_u32 v{LM}, {QXL}, v{KA}
v_add_u32 v{LM + 1}, {QXL}, v{KA + 1}
""")
    o += L(f's_add_u32 s{sOf + 5}, s{sOf + 4}, 4096')
    o += [J(f's_add_u32 s{sOf + 6 + k}, s{sOf + k}, {HQ}') for k in range(6)]
    o += L(f'v_cmp_eq_u32 vcc, 0, v18\nv_cndmask_b32 v20, 0, v19, vcc')
    o += [J(f'v_accvgpr_write_b32 a{aC + k}, v20') for k in range(4)]
    o += [J(f'v_accvgpr_write_b32 a{aL + k}, 0') for k in range(12)]
    if STAMP: o += L(f'v_writelane_b32 v0, s94, 0\nv_writelane_b32 v0, s96, 32')
    return o


def startup(blks):
    o = L(f"""
s_cmp_ge_u32 s2, 256
s_cbranch_scc1 L_end
s_load_dwordx4 s[48:51], s[0:1], 0
s_load_dwordx4 s[52:55], s[0:1], 16
""")
    if E('PF', 1):
        o += L(f'''
s_getpc_b64 s[{sP}:{sP + 1}]
L_pc:
s_mov_b32 s{sP + 2}, L_end-L_pc
s_mov_b32 s{sP + 3}, 0x20000
s_and_b32 s{sP + 1}, s{sP + 1}, 0xffff
s_bfe_u32 s62, s2, {hex(0x20003 if PFN == 4 else 0x10003)}
s_lshl_b32 s62, s62, 15
v_lshlrev_b32 v21, 7, v0
''') + [J(f'buffer_load_dword v40, v21, {s_(sP, 4)}, s62 offen', name='pf')]
    if STAMP: o += L(f's_load_dwordx2 s[56:57], s[0:1], {32 if STAMP == 2 else 40}\ns_memtime s[94:95]\ns_memrealtime s[96:97]')
    o += L(f"""
v_lshrrev_b32 v16, 6, v0
v_and_b32 v0, 63, v0
v_readfirstlane_b32 s{sW}, v16
v_and_b32 v16, 15, v0
v_lshlrev_b32 v80, 4, v0
v_lshrrev_b32 v17, 4, v0
v_lshlrev_b32 v{QN}, 8, v16
v_lshl_add_u32 v{QN}, v17, 4, v{QN}
v_lshrrev_b32 v18, 3, v0
v_and_b32 v19, 6, v18
v_and_b32 v20, 7, v0
v_xor_b32 v19, v19, v20
v_lshlrev_b32 v18, 8, v18
v_lshl_add_u32 v{VOD}, v19, 4, v18
s_lshr_b32 s58, s{sW}, 1
s_and_b32 s59, s{sW}, 1
s_mul_i32 s{sQb}, s2, {2 * HQ}
s_lshl_b32 s60, s{sW}, 14
s_add_u32 s{sQo}, s{sQb}, s60
s_lshl_b32 s{sN}, s2, 19
s_mov_b32 s{sNv}, s{sN}
s_lshl_b32 s61, s58, 12
s_lshl_b32 s62, s59, 10
s_add_u32 s{sM}, s61, s62
s_lshl_b32 s63, s59, 7
s_add_u32 s63, s63, s61
v_add_u32 v{VOD}, s63, v{VOD}
s_mov_b32 s{sOf}, s{sQo}
s_add_u32 s{sOf + 1}, s{sQo}, 4096
s_add_u32 s{sOf + 2}, s{sQo}, 8192
s_add_u32 s{sOf + 3}, s{sQo}, 12288
s_add_u32 s{sOf + 4}, s{sQb}, 0x10000
s_mov_b32 s{sK + 2}, 134217728
s_mov_b32 s{sV + 2}, 134217728
s_mov_b32 s{sQ + 2}, 37748736
s_mov_b32 s{sO + 2}, 37748736
s_mov_b32 s{sQ + 3}, 0x20000
s_mov_b32 s{sK + 3}, 0x20000
s_mov_b32 s{sV + 3}, 0x20000
s_mov_b32 s{sO + 3}, 0x20000
s_waitcnt lgkmcnt(0)
""")
    srd = lambda d, b: L(f's_mov_b32 s{d}, s{b}\ns_and_b32 s{d + 1}, s{b + 1}, 0xffff')
    o += srd(sQ, 48) + srd(sK, 50) + srd(sV, 52) + srd(sO, 54)
    if STAMP: o += srd(sWS, 56) + L(f's_mov_b32 s{sWS + 2}, {256 if STAMP == 2 else 0x100000}\ns_mov_b32 s{sWS + 3}, 0x20000')
    nf = 0
    for x in SO.split(','):
        if x[0] == 'q': o += [qld(4 * int(x[1]) + k, 0, v(O + 16 * int(x[1]) + 4 * k, 4)) for k in range(4)]
        elif x[0] == 'n': o += [qld(2 * int(x[1]) + k, 1, a_(aR + 8 * int(x[1]) + 4 * k, 4)) for k in range(2)]
        elif x == 'x': o += xld(0)
        elif x == 'b': p, d = blk(*blks.pop(0)); o += p + d
        elif x == 'U': o += setup()
        elif x == 'T': o += L('s_branch L_far\nL_back:')
        elif x == 'I':
            o += L('v_mul_u32_u24 v200, 0x9e3779, v0\nv_and_b32 v200, 0xbfffbfff, v200\nv_or_b32 v200, 0x3e003e00, v200')
            for k in range(1, 16): o += L(f'v_mul_lo_u32 v{200 + k}, v{199 + k}, v{199 + k}\nv_and_b32 v{200 + k}, 0xbfffbfff, v{200 + k}\nv_or_b32 v{200 + k}, 0x3e013e01, v{200 + k}')
        elif x[0] == 'm': o += [mfs(v(216 + 4 * (k % 8), 4), v(200 + 4 * (k & 3), 4), v(200 + 4 * ((k >> 2) & 3), 4), '0' if k < 8 else v(216 + 4 * (k % 8), 4)) for k in range(int(x[1:]))]
        elif x == 'X': o += xs_block(0)
        elif x[0] == 's':
            for f in range(4 * int(x[1]), 4 * int(x[1]) + 4):
                o += [vwait(('Q', 0, f))] + scale4(O + 4 * f, SS[0] + 8 * (f & 1)) + [J(f'v_accvgpr_write_b32 a{aQ + 4 * f + i}, v{O + 4 * f + i}') for i in range(4)]
        if FINE and STAMP == 1 and (x[0] in 'sXU') == (FINE == 1) and nf < 12:
            o += L(f's_memrealtime s[100:101]\ns_waitcnt lgkmcnt(0)\ns_mov_b32 s{82 + nf}, s100'); nf += 1
    o += [J(f'v_writelane_b32 v0, s{82 + k}, {51 + k}') for k in range(nf)]
    return o


class St:
    def __init__(self, name, ins, earliest=-1, deadline=10 ** 9, after=None, prio=0):
        self.name = name; self.ins = list(ins); self.earliest = earliest; self.pos = 0; self.after = after; self.prio = prio
        self.dl = [deadline] * (len(self.ins) + 1)
        for k in range(len(self.ins) - 1, -1, -1): self.dl[k] = min(self.dl[k + 1], self.ins[k].info.get('d', 10 ** 9))
    def done(self): return self.pos >= len(self.ins)


VORD = [1, 5, 2, 6, 3, 7, 0, 4]
UB = [O + 8 * k for k in range(16)] + [OX, OX + 8]
def pstore(data, p, i, h):
    vo, so, im = (GO + 2, p >> 1, (p & 1) * 128 + i * 2048) if p < 8 else (GX, 4, i * 1024)
    return J(f'buffer_store_dwordx4 {data}, v{vo}, {s_(sO, 4)}, s{sOf + 6 * h + so} offen{f" offset:{im}" if im else ""}{STP}', name='st')
def park(p, i): return a_(aQ + 8 * p + 4 * i, 4) if p < 8 else v(T + 8 + 4 * i, 4)
def xread(i): return J(f'ds_read_b128 {park(8, i)}, v{XR} offset:{1088 * i}')


class G:
    def __init__(self):
        self.M = []; self.reads = []; self.S = []; self.last = {}; self.pos = {}; self.fix = {}; self.resv = set(); self.it = -1
        self.bar = {}; self.caps = []; self.post = {}; self.nods = set(); self.emin = -1
    def at(self, g, xs): self.fix.setdefault(g, []).extend(xs)
    def top(self, i, ins):
        self.it = i; self.bar[i] = len(self.M) - 1; self.at(len(self.M) - 1, ins)
    def frag(self, reg, rd, it=None, e=None):
        f = {'reg': reg, 'rd': rd, 'e': max(self.last.get(reg, -1), self.emin, self.bar[self.it] if e is None else e), 'first': None, 'it': self.it if it is None else it}
        self.reads.append(f); return f
    def use(self, m, *fs):
        for f in fs:
            if f['first'] is None: f['first'] = len(self.M)
            self.last[f['reg']] = len(self.M)
        for r in m.dst: self.pos['w', r] = len(self.M)
        self.M.append(m)
    def vread(self, b):
        self.vf = {}
        for i in range(8):
            dt = VORD[i]; r = (aK if b == 63 else aV) + 4 * i
            self.vf[dt] = self.frag(r, [J(f'ds_read_b64_tr_b16 {a_(r + 2 * u, 2)}, v{VA + (dt & 3)} offset:{slotV(b) + (dt >> 2) * 1024 + u * 4096}') for u in range(2)])
    def qxread(self, adr, e):
        self.qx = {(u, k): self.frag(aQX + 16 * u + 4 * k, [J(f'ds_read_b128 {a_(aQX + 16 * u + 4 * k, 4)}, v{adr + (k & 1)} offset:{u * 4096 + (k >> 1) * 1024}')], e=e) for k in range(4) for u in range(2)}
    def qk(self, kb, ts=range(4)):
        b = kb & 1; q = aQ if kb < 32 else aR
        self.pos['qk', kb] = len(self.M)
        for hf in range(2):
            for k4 in range(4):
                r = aK + 4 * (4 * hf + k4)
                f = self.frag(r, [J(f'ds_read_b128 {a_(r, 4)}, v{KA + (k4 & 1)} offset:{slotK(kb) + hf * 4096 + (k4 >> 1) * 1024}')])
                for t in ts:
                    d = v(sreg(b, t, hf), 4)
                    self.use(mfs(d, a_(r, 4), a_(q + 16 * t + 4 * k4, 4), '0' if k4 == 0 else d), f)
                    if k4 == 3: self.pos['s', kb, t, hf] = len(self.M) - 1
    def xqk(self, kb):
        for k4 in range(4):
            r = aX + 4 * ((k4 + 2) & 3)
            f = self.frag(r, [J(f'ds_read_b128 {a_(r, 4)}, v{KX + (k4 & 1)} offset:{slotK(kb) + (k4 >> 1) * 1024}')])
            for u in range(2):
                d = v(SX + 4 * u, 4)
                self.use(mfs(d, a_(r, 4), a_(aQX + 16 * u + 4 * k4, 4), '0' if k4 == 0 else d), f, self.qx[u, k4])
        self.pos['x', kb] = len(self.M) - 1
    def pv(self, kb, raw=False, wx=True):
        b = kb & 1; buf = (kb >> 1) & 1; z = kb % 32 == 0; vf = self.vf
        self.pos['pv', kb] = len(self.M)
        px = [self.frag(aX + 8 * b + 4 * u, [J(f'ds_read_b128 {a_(aX + 8 * b + 4 * u, 4)}, v{PXR} offset:{buf * 4096 + b * 2048 + u * 1024}')]) for u in range(2)] if wx else None
        def o(t, dt):
            d = v(O + 32 * t + 4 * dt, 4); f = vf[dt]; self.pos.setdefault(('p', kb, t), len(self.M))
            self.use(mfs(d, a_(f['reg'], 4), v(preg(b, t), 4), '0' if z else d), f)
        def lm(t):
            if t & 1: return
            for k in (t, t + 1): self.pos.setdefault(('p', kb, k), len(self.M)); self.pos['lm', kb, k] = len(self.M)
            self.use(smf(t >> 1, v(preg(b, t), 8)))
        def x(h):
            f = vf[4 * h]
            for u in range(2):
                d = v(OX + 8 * u + 4 * h, 4)
                self.use(mfs(d, a_(f['reg'], 4), a_(px[u]['reg'], 4), '0' if z else d), f, px[u])
            if h != (kb == 32): return
            self.pos['lx', kb, 0] = self.pos['lx', kb, 1] = len(self.M)
            self.use(smf(2, a_(px[0]['reg'], 8)), px[0], px[1])
        if raw: return o, lm, x
        if kb % 32 == 31:
            if kb == 63: x(0); x(1)
            for t in range(4):
                lm(t)
                for dt in range(8): o(t, dt)
            if kb == 31: x(0); x(1)
        elif kb == 32:
            for t in range(4):
                for dt in range(8):
                    o(t, dt)
                    if t == 3 and dt in (3, 7): lm(dt >> 1 & 2)
            x(0); x(1)
        else:
            for i in range(8):
                for t in range(4): o(t, VORD[i])
                if i in LMI: lm(2 * LMI.index(i))
                if VORD[i] & 3 == 0: x(VORD[i] >> 2)
        self.pos['pve', kb] = len(self.M) - 1
    def sm(self, kb):
        for t in range(4):
            prev = None; P = preg(kb & 1, t); dl = self.pos['p', kb, t] - 2
            for hf in range(2):
                S = sreg(kb & 1, t, hf)
                x = [J(f'v_exp_f32 v{S + r}, v{S + r}') for r in range(4)]
                y = [J(f'v_cvt_pk_bf16_f32 v{P + 2 * hf + k}, v{S + 2 * k}, v{S + 2 * k + 1}', dep=x[2 * k + 1], cv=1) for k in range(2)]
                self.S.append(St(f'sm{kb}.{t}{hf}', x, self.pos['s', kb, t, hf], dl - EL0 - (4 if hf == 0 else 0)))
                prev = St(f'cv{kb}.{t}{hf}', y, self.pos['s', kb, t, hf], dl - (1 if hf == 0 else 0), after=prev); self.S.append(prev)
    def smx(self, kb):
        for u in range(2):
            S = SX + 4 * u
            x = [J(f'v_exp_f32 v{S + r}, v{S + r}') for r in range(4)]
            y = [J(f'v_cvt_pk_bf16_f32 v{S + k}, v{S + 2 * k}, v{S + 2 * k + 1}', dep=x[2 * k + 1], cv=1) for k in range(2)]
            y += [J(f'ds_write_b64 v{PXW}, {v(S, 2)} offset:{((kb >> 1) & 1) * 4096 + u * 1024}')]
            self.S.append(St(f'smx{kb}.{u}', x, self.pos['x', kb], self.bar[kb >> 1] - BARW - 4))
            self.S.append(St(f'cvx{kb}.{u}', y, self.pos['x', kb], self.bar[kb >> 1] - BARW))
    def vm(self, g, pre, c):
        while g in self.resv: g += 1
        self.resv.add(g); self.at(g - 1, pre); self.at(g, [c])
        for k in NOD: self.nods.add(g + k)
        return g

    def drain(self, h, wE, wD):
        kb = 32 * h + 31; big = len(self.M) - 1
        def tag(xs, e=None, d=None):
            for c in xs:
                if e is not None: c.info['e'] = e
                if d is not None: c.info['d'] = d
            return xs
        order = list(range(18)) if h == 0 else [16, 17] + list(range(16)) if not TM else list(range(8)) + [None, None][:2 * (TM == 2)] + [16, 17] + list(range(8, 16))
        n = len(order)
        dd = lambda k: min(wD['v', UB[k]], wD['v', UB[k] + 4]) - 2
        Gk = []
        for j in range(n + 2):
            x = self.pos['pv', kb] + (D0 + int(DSTEP * j) if h == 0 else 0)
            if j < n and order[j] is not None: x = max(x, wE['v', UB[order[j]] + 4] + DLAG, (self.pos['lx', kb, order[j] - 16] + DLAG + 2) if order[j] >= 16 else 0)
            if j: x = max(x, Gk[-1] + (E('TSTEP', 2) if h and j <= 9 else 2))
            while x in self.resv or x in self.bar.values(): x += 1
            Gk.append(min(x, big))
        grpof = lambda k: 1 if k is None else k >> 2 if k < 16 else k - 12
        lastuse = {}; st = []; pend = []; ls = None
        for j in range(n + 1):
            o = []; x = []
            if j >= 1 and order[j - 1] is None: x = tag(pend, Gk[j] + 1); pend = []
            elif j >= 1:
                k = order[j - 1]; b = UB[k]
                o += [J(f'v_cvt_pk_bf16_f32 v{b + i}, v{b + 2 * i}, v{b + 2 * i + 1}') for i in range(4)]
                if k < 16:
                    x = [J(f'ds_write2_b64 v{GO}, {v(b, 2)}, {v(b + 2, 2)} offset0:{8 * (k & 1)} offset1:{8 * (k & 1) + 4}')]; x[0].cost = 9
                else:
                    x = [J(f'ds_write_b64 v{XW}, {v(b + 2 * i, 2)} offset:{(k - 16) * 4352 + 128 * i}') for i in range(2)]
                    for c in x: c.dst = {('x', 0)}; c.cost = 9
                tag(x, Gk[j] + 1, dd(k) if h == 0 else Gk[j + 1])
                if h == 0: assert Gk[j] < dd(k), k
                if k < 16 and k & 1:
                    dst = [park(k >> 1, i) if h == 0 else v(b - 4 + 8 * i, 4) for i in range(2)]
                    x += tag(pend, d=Gk[j + 1]) + [J(f'ds_read_b128 {dst[i]}, v{GO + 1} offset:{1152 * i}') for i in range(2)]
                    pend = [pstore(dst[i], k >> 1, i, 1) for i in range(2)] if h else []
                if h and j == XB:
                    bb = J('s_barrier'); bb.src = {('x', 0)}
                    x += [bb, xread(0), xread(1)]
                if h and j == XB + 3: x += [pstore(park(8, i), 8, i, 1) for i in range(2)]
            if j < n and order[j] is not None:
                k = order[j]; b = UB[k]; r = T + 2 * (len(set(map(grpof, order[:j + 1]))) & 1)
                if j == 0 or grpof(k) != grpof(order[j - 1]):
                    l = LX + k - 16 if k >= 16 else LM + (k >> 2)
                    e = self.pos['lx', kb, k - 16] if k >= 16 else self.pos['lm', kb, k >> 2]
                    ac = aL + 2 * grpof(k)
                    y = tag(L(f'v_accvgpr_read_b32 v{l}, a{ac}\nv_accvgpr_read_b32 v{IDX + 1}, a{ac + 1}\nv_add_f32 v{l}, v{l}, v{IDX + 1}'), d=Gk[j] - 1)
                    ls = St(f'l{h}.{k}', y, e, big, after=ls); self.S.append(ls)
                    if h == 0: self.S.append(St(f'z{k}', L(f'v_accvgpr_write_b32 a{ac}, 0\nv_accvgpr_write_b32 a{ac + 1}, 0'), e, self.pos['lx' if k >= 16 else 'lm', 32, (k - 16) if k >= 16 else k >> 2] - 2, after=ls))
                    self.S.append(St(f'rcp{h}.{k}', L(f'v_rcp_f32 v{r}, v{l}\nv_rcp_f32 v{r + 1}, v{l}'), max(e, lastuse.get(r, -1) + 1), Gk[j], after=ls))
                    assert lastuse.get(r, -1) < Gk[j]
                o += [J(f'v_pk_mul_f32 {v(b + 2 * i, 2)}, {v(b + 2 * i, 2)}, {v(r, 2)}') for i in range(4)]; lastuse[r] = Gk[j]
            if Gk[j] == big: o += x
            else: st += x
            self.post.setdefault(Gk[j], []).extend(o)
        self.S.append(St(f'dr{h}', st, Gk[0], big if h else self.bar[17] - BARW))
        c = tag(L(f"""
v_subrev_u32 v{T + 6}, s{sLo}, v{LM}
v_subrev_u32 v{T + 7}, s{sLo}, v{LM + 1}
v_max_u32 v{T + 6}, v{T + 6}, v{T + 7}
v_subrev_u32 v{T + 7}, s{sLo}, v{LM + 2}
v_cmp_lt_u32 s[48:49], s{sRg}, v{T + 6}
v_subrev_u32 v{T + 6}, s{sLo}, v{LM + 3}
v_max_u32 v{T + 6}, v{T + 6}, v{T + 7}
v_subrev_u32 v{T + 7}, s{sLo}, v{LX}
v_cmp_lt_u32 s[50:51], s{sRg}, v{T + 6}
v_subrev_u32 v{T + 6}, s{sLo}, v{LX + 1}
""")) + L(f"""
v_max_u32 v{T + 6}, v{T + 6}, v{T + 7}
s_lshl_b32 s{sF}, s{sF}, 3
v_cmp_lt_u32 s[52:53], s{sRg}, v{T + 6}
""")
        for k in range(3): c += [J(f's_cmp_lg_u64 s[{48 + 2 * k}:{49 + 2 * k}], 0\ns_cselect_b32 s55, {1 << k}, 0\ns_or_b32 s{sF}, s{sF}, s55')]
        if h: self.post[big].extend(c + pend)
        else: self.S.append(St(f'chk{h}', c, self.pos['pve', kb], self.bar[18], after=ls, prio=1))

    def build(self, prefix):
        M = self.M; n = len(M); fix = self.fix
        items = []
        for f in self.reads:
            d = min(f['first'] - LEAD, self.bar.get(f['it'] + 1, 10 ** 9) - BARW)
            for r in f['rd']: items.append((f['e'], d, len(items), r, f))
        items.sort(key=lambda x: x[0]); ip = 0; act = []; lastg = -100
        for g in range(-1, n):
            while ip < len(items) and items[ip][0] <= g: act.append(items[ip][1:]); ip += 1
            k = 0
            while k < (4 if g < 0 else 1) and g not in self.resv and g not in self.nods and act:
                act.sort(key=lambda x: x[:2])
                urgent = (ZDS and g >= 0 and M[g].op.startswith('v_smf')) or any(x[0] - g <= URG + DSS * i for i, x in enumerate(act))
                if not (g - lastg >= DSS or urgent or g < 0): break
                x = act.pop(0); self.at(g, [x[2]]); lastg = g; k += 1
                assert g < x[3]['first'] and g < self.bar.get(x[3]['it'] + 1, 10 ** 9), (g, x[2].text)
        assert not act and ip == len(items)
        S = sorted(self.S, key=lambda s: s.earliest); sp = 0; act = []
        out = []; hist = list(prefix); rep = []; forced = {}; npend = 0
        for g in range(-1, n):
            while sp < len(S) and S[sp].earliest <= g: act.append(S[sp]); sp += 1
            if g >= 0: out.append(M[g]); hist.append(M[g])
            fx = fix.get(g, [])
            for c in fx: out.append(c); hist.append(c)
            used = sum(c.cost for c in fx)
            nds = sum(1 for c in fx if c.kind in ('dsr', 'dsw', 'dma', 'vld', 'vst'))
            cap = 0 if g < 0 else CAP
            for lo, hi, cp in self.caps:
                if lo <= g <= hi: cap = cp
            nval = 0; zg = g >= 0 and M[g].op.startswith('v_smf')
            while True:
                cand = []
                for s in act:
                    if s.done() or (s.after is not None and not s.after.done()): continue
                    c = s.ins[s.pos]; force = s.dl[s.pos] <= g
                    if c.info.get('e', -1) > g:
                        assert not force, (s.name, c.text); continue
                    if 'dep' in c.info and not c.info['dep'].info.get('done'):
                        assert not force, s.name; continue
                    if c.kind in ('dsw', 'vst') and not force and (nval or nds): continue
                    if c.kind == 'dsr' and not force and (nval or nds > 1): continue
                    if zg and isv(c) and not force and (nval or c.cost > 5): continue
                    cand.append((c.kind not in ('dsw', 'dsr', 'vst'), s.prio, s.dl[s.pos], s, c, force))
                cv = [x for x in cand if x[4].info.get('cv')]
                lazy = used < 1 and not zg and not (npend >= CQ or any(x[2] - g <= CL for x in cv))
                cand.sort(key=lambda x: (x[0], x[1], lazy and bool(x[4].info.get('cv')), not lazy and used < 1 and not x[4].info.get('cv'), x[2]))
                pick = None
                for _, _, _, s, c, force in cand:
                    if (used + c.cost <= cap or force) and rpad(hist, c) == 0:
                        pick = (s, c)
                        if used + c.cost > cap: forced[s.name] = forced.get(s.name, 0) + 1
                        break
                if pick is None:
                    fl = [x for x in cand if x[5]]
                    if fl:
                        p = J(f's_nop {rpad(hist, fl[0][4]) - 1}'); out.append(p); hist.append(p); used += p.cost
                        continue
                    break
                s, c = pick; s.pos += 1; s.lastg = g; c.info['done'] = 1
                npend += 0.5 if c.op == 'v_exp_f32' else -1 if c.info.get('cv') else 0
                out.append(c); hist.append(c); used += c.cost
                if isv(c): nval += 1
                elif c.kind not in ('salu', 'wait'): nds += 1
            for s in act: assert s.done() or s.dl[s.pos] > g, ('late', s.name, g)
            for c in self.post.get(g, []): out.append(c); hist.append(c); used += c.cost
            rep.append(used); hist = hist[-24:]; act = [s for s in act if not s.done()]
        assert not act and sp == len(S), [(s.name, s.pos) for s in act]
        if VERB:
            bs = sorted(self.bar.items()) + [(99, n - 1)]
            for (i, a), (_, b) in zip(bs, bs[1:]):
                r = rep[a + 1:b + 1]
                print(f'; it {i}: n={b - a} est={sum(max(16, x + 6.5) for x in r):.0f} free={sum(1 for x in r if x < 4.8)}', ' '.join('%d' % x for x in r) if VERB > 1 else '', file=sys.stderr)
            print('; forced', forced, file=sys.stderr)
        return out


def lgk(seq):
    out = []; t = 0; pipe = 0; q = []
    for c in seq:
        if c.kind == 'label': out.append(c); continue
        if c.kind == 'wait':
            k = parse_wait(c.text)
            if k is not None: del q[:max(0, len(q) - k)]
        else:
            touch = c.src | (c.dst if c.kind != 'dsw' else set())
            k = -1
            for idx, (regs, ti) in enumerate(q):
                if regs & touch and not (c.kind == 'dsr' and not (regs & c.src)): k = idx
            if len(q) >= 15 and c.kind in ('dsr', 'dsw'): k = max(k, 0)
            if k >= 0:
                while k + 1 < len(q) and t - q[k + 1][1] >= SETTLE: k += 1
                w = J(f's_waitcnt lgkmcnt({len(q) - 1 - k})', tag='autowait'); w.info['age'] = t - q[k][1]
                out.append(w); del q[:k + 1]
        if c.kind == 'mfma':
            t = max(t, pipe); pipe = t + c.mlen
        if c.kind in ('dsr', 'dsw'): q.append((set(c.dst), t))
        t += c.cost
        out.append(c)
    return out


def vmfix(seq):
    ops = []; done = -1; out = []
    for c in seq:
        if c.kind in ('dma', 'vst', 'vld'): ops.append(c.info.get('name'))
        elif c.kind == 'wait' and 'need' in c.info:
            k = -1
            for nm in c.info['need']:
                idx = [i for i, x in enumerate(ops) if x == nm]
                assert len(idx) == (1 if nm[0] == 'Q' else 2), (nm, idx)
                k = max(k, idx[-1])
            if k <= done:
                if not c.info['lg']: continue
                c.text = 's_waitcnt lgkmcnt(0)'
            else:
                done = k; nn = len(ops) - 1 - k
                assert nn <= 63
                c.text = c.text.replace('vmcnt(0)', f'vmcnt({nn})')
                if VERB: print('; vm', c.info['need'][-1], nn, end=' ', file=sys.stderr)
        out.append(c)
    if VERB: print(file=sys.stderr)
    return out


def ending():
    o = L('L_fin:')
    if STAMP:
        pre, post = stamp(18)
        o += L('s_waitcnt vmcnt(0)') + pre + L('s_waitcnt lgkmcnt(0)') + post
    if STAMP == 2:
        sel = [32 + x for x in (1, 2, 4, 6, 8, 10, 11, 13, 15, 17, 18)] + [2, 10, 18]
        o += L('v_mov_b32 v23, s96\ns_mov_b32 exec_hi, 0\nv_mov_b32 v23, s94\ns_mov_b64 exec, -1\nv_sub_u32 v22, v0, v23\nv_mov_b32 v21, 0')
        o += [J(f'v_writelane_b32 v21, {8 + 4 * k}, {x}') for k, x in enumerate(sel)]
        m = sum(1 << x for x in sel)
        o += L(f's_mov_b32 exec_lo, {hex(m & 0xffffffff)}\ns_mov_b32 exec_hi, {hex(m >> 32)}\ns_nop 4\nbuffer_atomic_add v22, v21, {s_(sWS, 4)}, 0 offen sc1')
        o += L(f's_mov_b64 exec, 1\ns_not_b32 s48, s96\nv_mov_b32 v16, s48\nv_mov_b32 v17, s100\nbuffer_atomic_umax v16, off, {s_(sWS, 4)}, 0 sc1\nbuffer_atomic_umax v17, off, {s_(sWS, 4)}, 0 offset:4 sc1\ns_mov_b64 exec, -1')
    elif STAMP:
        o += L(f'''
v_mov_b32 v16, s96
v_mov_b32 v17, s97
v_mov_b32 v18, s100
v_mov_b32 v19, s101
s_lshl_b32 s48, s2, 6
s_lshl_b32 s49, s{sW}, 4
s_add_u32 s48, s48, s49
v_mov_b32 v20, 0
v_mov_b32 v22, v0
v_mov_b32 v23, v0
v_permlane32_swap_b32 v22, v23
v_subrev_u32 v21, {PXL}, v{PXR}
v_lshrrev_b32 v21, 1, v21
s_lshl_b32 s49, s48, 5
s_add_u32 s49, s49, 0x40000
buffer_store_dwordx2 v[22:23], v21, {s_(sWS, 4)}, s49 offen
s_mov_b64 exec, 1
buffer_store_dwordx4 v[16:19], v20, {s_(sWS, 4)}, s48 offen
s_mov_b64 exec, -1
''')
    o += L(f's_cmp_lg_u32 s{sF}, 0\ns_cbranch_scc1 L_slow\nL_end:\ns_endpgm' + ('\nL_far:\ns_branch L_back' if 'T' in SO else ''))
    return o


def slow():
    sB = sT + 1; sR = sT + 2; sKV = sT + 3; sJ = sT + 4; sY = sT + 5; sP = sT + 7
    LN = 1; VO = 2; VAs = 3; VD = 5; m = 6; l = 7; t = 8; GX = 13; Q = 128; OO = 160; KF = 16; S = 48; VF = 64; QT = 240
    o = L(f'''
L_slow:
s_waitcnt vmcnt(0) lgkmcnt(0)
s_and_b32 s{sB}, s{sF}, 0x24
s_cbranch_scc0 L_sl1
s_barrier
s_cmp_eq_u32 s{sW}, 0
s_cbranch_scc1 L_sl1
s_and_b32 s{sF}, s{sF}, 0x1b
s_cbranch_scc0 L_end
L_sl1:
v_subrev_u32 v{LN}, {PXL}, v{PXR}
v_lshrrev_b32 v{LN}, 4, v{LN}
v_and_b32 v{VO}, 31, v{LN}
v_lshrrev_b32 v{t}, 5, v{LN}
v_lshlrev_b32 v{VO}, 8, v{VO}
v_lshl_add_u32 v{GX}, v{t}, 5, v{VO}
v_lshl_add_u32 v{VO}, v{t}, 4, v{VO}
v_lshrrev_b32 v17, 3, v{LN}
v_and_b32 v18, 7, v{LN}
v_and_b32 v19, 2, v17
v_lshlrev_b32 v19, 1, v19
v_xor_b32 v18, v18, v19
v_lshlrev_b32 v17, 8, v17
v_lshl_add_u32 v{VD}, v18, 4, v17
v_bfe_u32 v16, v{LN}, 2, 2
v_lshl_add_u32 v18, v{t}, 2, v16
v_lshlrev_b32 v18, 7, v18
v_lshrrev_b32 v16, 1, v16
v_lshl_add_u32 v18, v16, 6, v18
v_and_b32 v16, 1, v{LN}
v_lshl_add_u32 v18, v16, 5, v18
v_bfe_u32 v16, v{LN}, 4, 1
v_lshl_add_u32 v18, v16, 4, v18
v_bfe_u32 v16, v{LN}, 1, 1
v_lshl_add_u32 v18, v16, 3, v18
s_lshl_b32 s{sP}, s{sW}, 13
v_add_u32 v{VAs}, s{sP}, v18
v_xor_b32 v{VAs + 1}, 64, v{VAs}
L_sl2:
s_ff1_i32_b32 s{sB}, s{sF}
s_bitset0_b32 s{sF}, s{sB}
s_cmp_ge_u32 s{sB}, 3
s_cselect_b32 s{sR}, 0, {HQ}
s_cselect_b32 s{sKV}, 0, {HK}
s_cselect_b32 s{sY}, 3, 0
s_sub_u32 s{sB}, s{sB}, s{sY}
s_lshl_b32 s{sY}, s2, 19
s_add_u32 s{sKV}, s{sKV}, s{sY}
s_lshl_b32 s{sY}, s{sB}, 13
s_add_u32 s{sY}, s{sY}, s{sQo}
s_add_u32 s{sJ}, s{sQb}, 0x10000
s_cmp_eq_u32 s{sB}, 2
s_cselect_b32 s{sY}, s{sJ}, s{sY}
s_add_u32 s{sR}, s{sR}, s{sY}
''')
    o += [J(f'buffer_load_dwordx4 {v(Q + 4 * k, 4)}, v{VO}, {s_(sQ, 4)}, s{sR} offen offset:{32 * k}') for k in range(8)]
    o += [J(f'v_mov_b64 {v(OO + 2 * k, 2)}, 0') for k in range(32)]
    o += L(f'v_mov_b32 v{m}, 0xff800000\nv_mov_b32 v{l}, 0\ns_mov_b32 s{sJ}, 0\ns_waitcnt vmcnt(0)')
    for k in range(8): o += scale4(Q + 4 * k, QT)
    o += L('L_sl3:')
    o += [J(f'buffer_load_dwordx4 {v(KF + 4 * k, 4)}, v{VO}, {s_(sK, 4)}, s{sKV} offen offset:{32 * k}') for k in range(8)]
    for w in range(4):
        o += L(f's_add_u32 m0, s{sP}, {(w >> 1) * 4096 + (w & 1) * 1024}\ns_add_u32 s{sY}, s{sKV}, {(w >> 1) * 4096 + (w & 1) * 128}')
        o += [dma(VD, sV, sY, 0, None), dma(VD, sV, sY, 2048, None)]
    o += L('s_waitcnt vmcnt(0)')
    o += [mfma(v(S, 16), v(KF + 4 * k, 4), v(Q + 4 * k, 4), '0' if k == 0 else v(S, 16)) for k in range(8)]
    for s in range(2):
        for d in range(4):
            o += [J(f'ds_read_b64_tr_b16 {v(VF + 16 * s + 4 * d + 2 * u, 2)}, v{VAs + (d & 1)} offset:{(2 * s + u) * 2048 + (d >> 1) * 1024}') for u in range(2)]
        o += L('s_waitcnt lgkmcnt(0)')
    o += L(f'v_max3_f32 v{t}, v{S}, v{S + 1}, v{m}')
    o += [J(f'v_max3_f32 v{t}, v{t}, v{S + 2 * k}, v{S + 2 * k + 1}') for k in range(1, 8)]
    o += L(f'''v_mov_b32 v{t + 1}, v{t}
v_permlane32_swap_b32 v{t}, v{t + 1}
v_max_f32 v{t}, v{t}, v{t + 1}
v_sub_f32 v{t + 1}, v{m}, v{t}
v_mov_b32 v{m}, v{t}
v_exp_f32 v{t + 1}, v{t + 1}''')
    o += [J(f'v_sub_f32 v{S + k}, v{S + k}, v{m}') for k in range(16)]
    o += L(f'v_mul_f32 v{l}, v{l}, v{t + 1}')
    o += [J(f'v_mul_f32 v{OO + k}, v{OO + k}, v{t + 1}') for k in range(64)]
    o += [J(f'v_exp_f32 v{S + k}, v{S + k}') for k in range(16)]
    o += [J(f'v_add_f32 v{l}, v{l}, v{S + k}') for k in range(16)]
    o += [J(f'v_cvt_pk_bf16_f32 v{S + 8 * s + k}, v{S + 8 * s + 2 * k}, v{S + 8 * s + 2 * k + 1}') for s in range(2) for k in range(4)]
    for s in range(2):
        for d in range(4):
            o.append(mfma(v(OO + 16 * d, 16), v(VF + 16 * s + 4 * d, 4), v(S + 8 * s, 4), v(OO + 16 * d, 16)))
    o += L(f'''s_nop 15
s_add_u32 s{sKV}, s{sKV}, 0x2000
s_add_u32 s{sJ}, s{sJ}, 1
s_cmp_lt_u32 s{sJ}, 32
s_cbranch_scc1 L_sl3
v_mov_b32 v{t}, v{l}
v_permlane32_swap_b32 v{l}, v{t}
v_add_f32 v{l}, v{l}, v{t}
v_rcp_f32 v{l}, v{l}''')
    o += [J(f'v_mul_f32 v{OO + k}, v{OO + k}, v{l}') for k in range(64)]
    o += [J(f'v_cvt_pk_bf16_f32 v{OO + k}, v{OO + 2 * k}, v{OO + 2 * k + 1}') for k in range(32)]
    o += [J(f'buffer_store_dwordx4 {v(OO + 4 * k, 4)}, v{GX}, {s_(sO, 4)}, s{sR} offen offset:{64 * (k >> 1) + 16 * (k & 1)}') for k in range(8)]
    o += L(f's_waitcnt vmcnt(0)\ns_cmp_lg_u32 s{sF}, 0\ns_cbranch_scc1 L_sl2\ns_endpgm')
    return fixh(o)


def main():
    blks = list(BLKS)
    st = startup(blks)
    g = G()
    def top(i):
        k = 1 if i < 0 else (2 + i // 2 if i % 2 == 0 else None)
        pre, post = stamp(k) if k else ([], [])
        if i >= 0: g.at(len(g.M) - 7, pre); pre = []
        g.top(i, pre + [vwait(*[x for x in BLKS if grp(*x) == i and not (i in MIDB and x in late(i))], lg=True)] + post + L('s_barrier'))
    late = lambda i: [('V', 2 * i + 2), ('K', 2 * i + 3)]
    def mid(i):
        if i in MIDB: g.emin = g.pos['qk', 2 * i + 2] + MIDB[i]; g.at(g.emin, [vwait(*late(i))] + L('s_barrier'))
    top(-1)
    g.qxread(LM, -1)
    g.qk(0); mid(-1); g.xqk(0); g.vread(0); g.qk(1)
    for i in range(31 - (TM == 2)):
        top(i)
        if i == 16: wE = {k[1]: p for k, p in g.pos.items() if k[0] == 'w'}
        g.pv(2 * i)
        if i == 16: wD = {}; [wD.setdefault(r, p) for p in range(g.pos['pv', 32], len(g.M)) for r in g.M[p].dst]
        g.vread(2 * i + 1)
        g.qk(2 * i + 2); mid(i); g.xqk(2 * i + 2)
        if i == 14:
            g.at(g.bar[14] + 1, L(f'v_add_u32 v{T + 14}, {QXL}, v{KA}')); g.at(g.bar[14] + 2, L(f'v_add_u32 v{T + 15}, {QXL}, v{KA + 1}'))
            g.qxread(T + 14, g.bar[14] + 4)
        g.pv(2 * i + 1); g.vread(2 * i + 2); g.qk(2 * i + 3)
    def pvh(kb, p, nat=False):
        o, l, x = g.pv(kb, True, p == 2)
        for i, dt in enumerate(VORD):
            if nat: o(p + (i >> 2), 2 * i & 7); o(p + (i >> 2), (2 * i & 7) + 1)
            else: o(p, dt); o(p + 1, dt)
            if i == LP[kb & 1 if kb > 61 else 0]: l(p)
            if p == 2 and dt & 3 == 0: x(dt >> 2)
    if TM == 2:
        LP = EL('LP', '1,1')
        top(30)
        pvh(60, 0); g.vread(61); g.qk(62, (0, 1)); g.xqk(62); pvh(61, 0); g.vread(62); g.qk(63, (0, 1))
        top(31)
        pvh(62, 0); g.vread(63); pvh(63, 0, True); p63 = g.pos['pv', 63]
        g.vread(60); pvh(60, 2); g.vread(61); g.qk(62, (2, 3)); pvh(61, 2); g.vread(62); g.qk(63, (2, 3))
        o2, l2, x2 = g.pv(62, True); g.vread(63); o3, l3, x3 = g.pv(63, True); g.pos['pv', 63] = p63
        for i, dt in enumerate(VORD):
            o2(2, dt); o2(3, dt)
            if i == 1: l2(2)
        x2(0); x2(1); x3(0); l3(2); x3(1)
        for t in (2, 3):
            for dt in range(8): o3(t, dt)
    elif TM:
        top(31)
        o2, l2, x2 = g.pv(62, True); g.vread(63); o3, l3, x3 = g.pv(63, True)
        for i, dt in enumerate(VORD):
            o2(0, dt); o2(1, dt)
            if i in (1, 5): l2(i >> 1 & 2)
        x2(0); l3(0); x2(1); g.pos['pv', 63] = len(g.M)
        for t in (0, 1):
            for dt in range(8): o3(t, dt)
        x3(0); l3(2); x3(1)
        for t in (2, 3):
            for dt in range(0, 8, 2): o2(t, dt); o2(t, dt + 1); o3(t, dt); o3(t, dt + 1)
    else: top(31); g.pv(62); g.vread(63); g.pv(63)
    for kb in range(64): g.sm(kb)
    for kb in range(0, 64, 2): g.smx(kb)
    g.caps = [(g.pos['pv', 31] + 4, g.pos['pve', 32], CAPD), (g.pos['pv', 63] + 4, len(g.M), CAPT), (0, g.bar[0], CAPP), (g.bar[31], g.pos['pv', 63] + 3, F('CAPE', 13))]
    for i, cp in ED('CR', '0:60,1:60,2:14,3:13,4:13').items(): g.caps.append((g.bar[i] + 1, g.bar[i + 1], cp))
    nq = sum(1 for x in SO.split(',') if x[0] == 'n'); ldit = {p: -1 for p in range(nq)}
    stp = list(range(9))
    for i in range(-1, 31):
        b0 = g.bar[i] + 1; nb = min(NB.get(i, 4), len(blks))
        while nb and grp(*blks[nb - 1]) > i + 3: nb -= 1
        if i < 0: pos = list(range(18, 70, 3)); xg = [4, 8, 12]
        else:
            pos = DMG if nb <= 4 else [6 + (134 * k) // (2 * nb - 1) for k in range(2 * nb)]
            xg = DMG[2 * nb::2] + XG if nb < 4 else XG
        for k in range(nb):
            p, d = blk(*blks.pop(0))
            g.vm(b0 + pos[2 * k], [c for c in p if c.kind != 'nop'], d[0]); g.vm(b0 + pos[2 * k + 1], [], d[1])
        prs = []
        if XL == i: prs.append(xld(1))
        for _ in range(QL.get(i, 0)): prs.append([qld(2 * nq + k, 1, a_(aR + 8 * nq + 4 * k, 4)) for k in range(2)]); ldit[nq] = i; nq += 1
        for _ in range(ST.get(i, 0)):
            if stp: p = stp.pop(0); prs.append([pstore(park(p, k), p, k, 0) for k in range(2)]); assert i >= 17
        for pr, x in zip(prs, xg):
            x = g.vm(b0 + x, [], pr[0]); g.vm(x + XD, [], pr[1])
            if f'v{GX},' in pr[0].text and pr[0].kind == 'vst': g.reads.append({'reg': None, 'rd': [xread(0), xread(1)], 'e': max(g.bar[17], x - 60), 'first': x, 'it': 99})
        assert len(prs) <= len(xg)
    assert not blks and nq == 8 and not stp, (blks, nq, stp)
    g.drain(0, wE, wD)
    g.drain(1, {k[1]: p for k, p in g.pos.items() if k[0] == 'w'}, {})
    g.S.append(St('xadr', L(f'v_lshrrev_b32 v{XW}, 1, v{QN}\nv_and_b32 v{XR}, 0x30, v{QN}\nv_and_b32 v{XW}, 0x780, v{XW}\nv_add3_u32 v{XR}, v{PXR}, v{XR}, s{sXc + 1}\nv_add3_u32 v{XW}, v{GO}, v{XW}, s{sXc}\nv_add_u32 v{GX}, s{sXc + 2}, v{PXR}'), g.pos['qk', 32], g.pos['pv', 31], prio=1))
    xs = St('xs', xs_block(1), g.bar[XL + QLAG], g.bar[14] - BARW, prio=1); g.S.append(xs)
    dn = [i for i in sorted(DN) for _ in range(DN[i])]
    prev = None; seq = []
    for f in range(16):
        if f < len(dn): e = g.bar[dn[f]] + 40; seq.append((e, St(f'q{f}', qfrag(f, T, E('PKD', 1)), e, e, prio=1)))
        else: e = g.bar[min(14, ldit[f >> 1] + QLAG)]; seq.append((e, St(f'q{f}', qfrag(f, T, PK), e, g.pos['qk', 32] - 3, prio=1)))
    seq.append((xs.earliest, xs)); seq.sort(key=lambda x: x[0])
    for _, s in seq:
        s.after = prev; prev = s
        if s is not xs: g.S.append(s)
    start = fixh(lgk(st))
    main_ = g.build(start[-24:])
    if VERB: print('; last gaps:', [(s.name, [i for i in g.bar if g.bar[i] <= s.lastg][-1]) for _, s in seq], file=sys.stderr)
    prog = vmfix(start + main_)
    prog = fixh(lgk(prog))
    if VERB: print('; nops', sum(1 for c in prog if c.kind == 'nop'), 'young waits', [int(c.info['age']) for c in prog if c.tag == 'autowait' and c.info['age'] < 150], file=sys.stderr)
    prog += fixh(ending(), prog[-24:]) + slow()
    out = [f'; @launch grid=(256,1,1) block=(256,1,1) lds={LDSZ}',
           '.amdgcn_target "amdgcn-amd-amdhsa--gfx950"', '.text', f'.globl {NAME}', '.p2align 8', f'.type {NAME},@function', f'{NAME}:']
    dg = E('DIAG', 0); nbar = 0
    for c in prog:
        if c.kind == 'barrier': nbar += 1
        if nbar > 8 and ((dg & 1 and c.kind == 'barrier') or (dg & 2 and c.kind == 'dma') or (dg & 4 and c.tag == 'autowait')): continue
        if c.kind == 'vst' and c.info.get('name') == 'st' and ((dg & 32 and nbar > 32) or dg & 64): continue
        out.append(c.text)
    out += ['.section .rodata,"a"', '.p2align 6', f'.amdhsa_kernel {NAME}',
            '  .amdhsa_next_free_vgpr 512', '  .amdhsa_next_free_sgpr 102', '  .amdhsa_accum_offset 256',
            '  .amdhsa_group_segment_fixed_size 0', '  .amdhsa_kernarg_size 48', '  .amdhsa_user_sgpr_count 2',
            '  .amdhsa_user_sgpr_kernarg_segment_ptr 1', '  .amdhsa_system_sgpr_workgroup_id_x 1', '.end_amdhsa_kernel']
    print('\n'.join(out))


main()
```
